```python
import torch

def _softmax(x, axis=-1):
    return torch.softmax(x, dim=axis)
def _gelu(x):
    return torch.nn.functional.gelu(x, approximate="tanh")
def _silu(x):
    return torch.nn.functional.silu(x)
def _sigmoid(x):
    return torch.sigmoid(x)
def _layernorm(x, axis=-1, eps=1e-5):
    m = x.mean(dim=axis, keepdim=True)
    v = x.var(dim=axis, keepdim=True, unbiased=False)
    return (x - m) / torch.sqrt(v + eps)
def _scatter_add(tgt, idx, src, axis=0):
    return tgt.clone().index_add_(axis, idx, src)
def _segment_sum(src, seg, n):
    out = torch.zeros((n,) + src.shape[1:], dtype=src.dtype)
    return out.index_add_(0, seg, src)
def _pad(x, pw):
    flat = tuple(v for pair in reversed(pw) for v in pair)
    return torch.nn.functional.pad(x, flat)

kernel_name = 'concat_heads__ssm_conv_s4d__ssm_conv_h3__prompt'

def setup_inputs():

    _w = (lambda a: (lambda t: t.to(torch.bfloat16) if t.is_floating_point() else t)(torch.as_tensor(a)))
    def _A_setup():
        Bsz, L, D, N = 1, 2048, 640, 192
        return {
            "u": _w((lambda *s: torch.randn(*s, dtype=torch.bfloat16) * 0.05)(Bsz, L, D)),
            "log_A_real": _w((lambda *s: torch.randn(*s, dtype=torch.bfloat16) * 3.2)(D, N) * 0.5),
            "A_imag": _w((lambda *s: torch.randn(*s, dtype=torch.bfloat16) * 0.05)(D, N) * 3.14),
            "C_real": _w((lambda *s: torch.randn(*s, dtype=torch.bfloat16) * 0.1)(D, N) / N ** 0.5),
            "C_imag": _w((lambda *s: torch.randn(*s, dtype=torch.bfloat16) * 0.1)(D, N) / N ** 0.5),
            "log_dt": _w((lambda *s: torch.randn(*s, dtype=torch.bfloat16) * 0.05)(D) * 0.5 - 4.0),
            "D_skip": _w((lambda *s: torch.randn(*s, dtype=torch.bfloat16) * 0.05)(D)),
        }
    _A_in = _A_setup()

    def _B_setup():
        B, S, D = 1, 2048, 640
        ks = 4
        return {
            "q": _w((lambda *s: torch.randn(*s, dtype=torch.bfloat16) * 0.05)(B, S, D)),
            "k": _w((lambda *s: torch.randn(*s, dtype=torch.bfloat16) * 0.2)(B, S, D)),
            "v": _w((lambda *s: torch.randn(*s, dtype=torch.bfloat16) * 0.2)(B, S, D)),
            "shift_k": _w((lambda *s: torch.randn(*s, dtype=torch.bfloat16) * 0.2)(D, ks) * 0.5),
            "ssm_k": _w((lambda *s: torch.randn(*s, dtype=torch.bfloat16) * 0.8)(D, S) * (1.0 / S ** 0.5)),
            "ssm_D": _w((lambda *s: torch.randn(*s, dtype=torch.bfloat16) * 0.2)(D)),
        }
    _B_in = _B_setup()

    return {
        "A_u": _A_in["u"],
        "A_log_A_real": _A_in["log_A_real"],
        "A_A_imag": _A_in["A_imag"],
        "A_C_real": _A_in["C_real"],
        "A_C_imag": _A_in["C_imag"],
        "A_log_dt": _A_in["log_dt"],
        "A_D_skip": _A_in["D_skip"],
        "B_q": _B_in["q"],
        "B_k": _B_in["k"],
        "B_v": _B_in["v"],
        "B_shift_k": _B_in["shift_k"],
        "B_ssm_k": _B_in["ssm_k"],
        "B_ssm_D": _B_in["ssm_D"],
    }

def reference(A_u, A_log_A_real, A_A_imag, A_C_real, A_C_imag, A_log_dt, A_D_skip, B_q, B_k, B_v, B_shift_k, B_ssm_k, B_ssm_D):
    def _A_ref(u, log_A_real, A_imag, C_real, C_imag, log_dt, D_skip):
        L = u.shape[1]
        dt = torch.exp(log_dt)
        A = -torch.exp(log_A_real) + 1j * A_imag
        C = (C_real + 1j * C_imag) * dt[:, None]
        pos = (lambda x, dt: x.to(dt))(torch.arange(L), log_dt.dtype)
        P = torch.exp((A * dt[:, None])[:, :, None] * pos[None, None, :])
        K = 2.0 * torch.einsum("dn,dnl->dl", C, P).real
        L2 = 2 * L
        u_t = (lambda x, *d: x.permute(*d))(u, 0, 2, 1)
        Kf = (lambda x, *a, **k: torch.fft.rfft(x.float(), *a, **k))(K, L2)
        Uf = (lambda x, *a, **k: torch.fft.rfft(x.float(), *a, **k))(u_t, L2)
        y = (lambda x, *a, **k: torch.fft.irfft(x, *a, **k).to(torch.bfloat16))(Uf * Kf[None, :, :], L2)[:, :, :L]
        y = (lambda x, *d: x.permute(*d))(y, 0, 2, 1)
        return y + u * D_skip[None, None, :]

    def _B_ref(q, k, v, shift_k, ssm_k, ssm_D):
        B, S, D = q.shape
        ks = shift_k.shape[-1]
        k_pad = _pad(k, ((0, 0), (ks - 1, 0), (0, 0)))
        k_shift = torch.zeros_like(k)
        for t in range(ks):
            k_shift = k_shift + k_pad[:, t:t + S, :] * shift_k[:, ks - 1 - t][None, None, :]
        kv = k_shift * v
        L = 2 * S
        kv_pad = _pad(kv, ((0, 0), (0, S), (0, 0)))
        kf_pad = _pad(ssm_k, ((0, 0), (0, S)))
        kv_f = (lambda x, axes=(-2,-1): torch.fft.rfft2(x.float(), dim=axes))(kv_pad[:, None, :, :], axes=(1, 2))
        kf_f = (lambda x, axes=(-2,-1): torch.fft.rfft2(x.float(), dim=axes))(kf_pad[:, None, :], axes=(1, 2))
        kf_f = (lambda x, *d: x.permute(*d))(kf_f, 1, 2, 0)
        y_f = kv_f * kf_f[None, :, :, :]
        y = (lambda x, s, axes=(-2,-1): torch.fft.irfft2(x, s=s, dim=axes).to(torch.bfloat16))(y_f, (1, L), axes=(1, 2))[:, 0, :S, :]
        y = y + kv * ssm_D[None, None, :]
        return q * y

    a = _A_ref(A_u, A_log_A_real, A_A_imag, A_C_real, A_C_imag, A_log_dt, A_D_skip)
    b = _B_ref(B_q, B_k, B_v, B_shift_k, B_ssm_k, B_ssm_D)
    return torch.concatenate([a, b], axis=-1)
```

```python
import sys

NAME = "concat_heads__ssm_conv_s4d__ssm_conv_h3__prompt"

L = 2048
D = 640
NM = 192
ROWB = 1280
TENS = L * ROWB

WS_UT = 0
WS_KA = 1280 * 4096
WS_END = WS_KA + 640 * 4096

P_U, P_LOGA, P_AIM, P_CR, P_CI, P_LDT, P_DSK, P_Q, P_K, P_V, P_SHK, P_SSK, P_SSD, P_OUT, P_DBG, P_WS = [16 + 2 * i for i in range(16)]


class Asm:
    def __init__(self):
        self.lines = []
        self.nlab = 0

    def __call__(self, s):
        self.lines.append("    " + s)

    def raw(self, s):
        self.lines.append(s)

    def label(self, s):
        self.lines.append(s + ":")

    def c(self, s):
        self.lines.append("    ; " + s)

    def newlabel(self, base):
        self.nlab += 1
        return f"L_{base}_{self.nlab}"

    def text(self):
        return "\n".join(self.lines) + "\n"


def vr(i, n=1):
    return f"v{i}" if n == 1 else f"v[{i}:{i + n - 1}]"


def ar(i, n=1):
    return f"a{i}" if n == 1 else f"a[{i}:{i + n - 1}]"


def sr(i, n=1):
    return f"s{i}" if n == 1 else f"s[{i}:{i + n - 1}]"


def make_srd(a, dst, ptr, nbytes):
    a(f"s_mov_b32 s{dst}, s{ptr}")
    a(f"s_and_b32 s{dst + 1}, s{ptr + 1}, 0xffff")
    a(f"s_mov_b32 s{dst + 2}, {nbytes}")
    a(f"s_mov_b32 s{dst + 3}, 0x00020000")


def load_kernargs(a):
    a("s_load_dwordx16 s[16:31], s[0:1], 0")
    a("s_load_dwordx16 s[32:47], s[0:1], 64")


T2_OFF = 17408
K1_LDS = 27648


def emit_tile_common(a):
    a("s_lshr_b32 s6, s5, 1")
    a("s_lshr_b32 s7, s6, 5")
    a("s_and_b32 s8, s6, 31")
    a("s_mul_i32 s9, s8, 81920")
    a("s_lshl_b32 s10, s7, 7")
    a("s_add_u32 s9, s9, s10")
    a("v_lshrrev_b32 v3, 3, v2")
    a("v_and_b32 v4, 7, v2")
    a("v_mul_u32_u24 v5, 1280, v3")
    a("v_lshl_add_u32 v5, v4, 4, v5")
    a("v_lshrrev_b32 v6, 4, v2")
    a("v_bfe_u32 v7, v2, 2, 2")
    a("v_and_b32 v8, 3, v2")
    a("v_sub_u32 v7, 3, v7")
    a("v_lshlrev_b32 v7, 7, v7")
    a("v_lshl_add_u32 v7, v6, 5, v7")
    a("v_lshl_add_u32 v7, v8, 3, v7")
    a("s_mul_i32 s11, s3, 5")
    a("s_cmp_gt_u32 s3, 0")
    a("s_addc_u32 s11, s11, 0")
    a("s_lshl_b32 s12, s11, 9")
    a("v_add_u32 v7, s12, v7")
    a("s_lshl_b32 s12, s11, 3")
    a(f"s_sub_u32 s12, {T2_OFF + 120 - 40}, s12")
    a("v_mul_u32_u24 v9, 144, v2")
    a("v_add_u32 v9, s12, v9")
    a("v_mul_u32_u24 v10, 144, v3")
    a("v_lshl_add_u32 v10, v4, 4, v10")
    a(f"v_add_u32 v10, {T2_OFF}, v10")
    a("v_lshlrev_b32 v11, 12, v3")
    a("v_lshl_add_u32 v11, v4, 4, v11")


def emit_tile_tail(a, tau):
    a("s_waitcnt lgkmcnt(0)")
    a("s_barrier")
    a("s_lshl_b32 s13, s7, 18")
    a(f"s_add_u32 s13, s13, {tau * 640 * 4096 + 3968}")
    a("s_lshl_b32 s14, s8, 7")
    a("s_sub_u32 s13, s13, s14")
    for k in range(3):
        skip = a.newlabel("tskip")
        a(f"s_add_u32 s14, s3, {3 * k}")
        if k == 2:
            a("s_cmp_lt_u32 s14, 8")
            a(f"s_cbranch_scc0 {skip}")
        a("s_mul_i32 s15, s14, 1152")
        a(f"v_add_u32 v12, s15, v10")
        a(f"ds_read_b128 v[{16 + 4 * k}:{19 + 4 * k}], v12")
        a("s_lshl_b32 s15, s14, 15")
        a("s_add_u32 s15, s15, s13")
        a(f"v_add_u32 v{13 + k}, s15, v11")
        a("s_waitcnt lgkmcnt(0)")
        a(f"buffer_store_dwordx4 v[{16 + 4 * k}:{19 + 4 * k}], v{13 + k}, s[56:59], 0 offen")
        a.label(skip)
    a("s_endpgm")


def emit_tile_u(a):
    a.c("---- u tile ----")
    make_srd(a, 48, P_U, TENS)
    make_srd(a, 56, P_WS, WS_END)
    for k in range(3):
        skip = a.newlabel("uskip")
        a(f"s_add_u32 s14, s3, {3 * k}")
        if k == 2:
            a("s_cmp_lt_u32 s14, 8")
            a(f"s_cbranch_scc0 {skip}")
        a("s_lshl_b32 m0, s14, 10")
        a("s_mul_i32 s15, s14, 10240")
        a("s_add_u32 s15, s15, s9")
        a("v_add_u32 v12, s15, v5")
        a("buffer_load_dwordx4 v12, s[48:51], 0 offen lds")
        a.label(skip)
    a("s_waitcnt vmcnt(0)")
    a("s_barrier")
    for i in range(5):
        a(f"ds_read_b64_tr_b16 v[{16 + 2 * i}:{17 + 2 * i}], v7 offset:{512 * i}")
    skip = a.newlabel("uq5")
    a("s_cmp_eq_u32 s3, 0")
    a(f"s_cbranch_scc0 {skip}")
    a(f"ds_read_b64_tr_b16 v[26:27], v7 offset:{512 * 5}")
    a("s_waitcnt lgkmcnt(0)")
    a("ds_write_b64 v9, v[26:27] offset:0")
    a.label(skip)
    a("s_waitcnt lgkmcnt(0)")
    for i in range(5):
        a(f"ds_write_b64 v9, v[{16 + 2 * i}:{17 + 2 * i}] offset:{8 * (5 - i)}")
    emit_tile_tail(a, 0)


def emit_tile_kv(a):
    a.c("---- kv tile ----")
    make_srd(a, 48, P_K, TENS)
    make_srd(a, 52, P_V, TENS)
    make_srd(a, 56, P_WS, WS_END)
    make_srd(a, 60, P_SHK, 640 * 8)
    a("s_lshl_b32 s14, s7, 9")
    a("v_lshl_add_u32 v12, v2, 3, s14")
    a("buffer_load_dwordx2 v[40:41], v12, s[60:63], 0 offen")
    for k in range(6):
        skip = a.newlabel("kvskip")
        a(f"s_add_u32 s14, s3, {3 * k}")
        if k == 5:
            a("s_cmp_lt_u32 s14, 17")
            a(f"s_cbranch_scc0 {skip}")
        a("s_lshl_b32 m0, s14, 10")
        a("s_mul_i32 s15, s14, 10240")
        off = -10240 if k < 3 else -9 * 10240
        a("s_add_u32 s15, s15, s9")
        a(f"s_add_u32 s15, s15, {off & 0xffffffff:#x}")
        a("v_add_u32 v12, s15, v5")
        srd = "s[48:51]" if k < 3 else "s[52:55]"
        a(f"buffer_load_dwordx4 v12, {srd}, 0 offen lds")
        a.label(skip)
    a("s_waitcnt vmcnt(0)")
    a("v_alignbit_b32 v42, v41, v40, 16")
    a("v_lshlrev_b32 v43, 16, v40")
    a("v_lshrrev_b32 v44, 16, v41")
    a("s_barrier")
    a(f"v_add_u32 v8, 512, v7")
    for i in range(-1, 5):
        a(f"ds_read_b64_tr_b16 v[{16 + 2 * (i + 1)}:{17 + 2 * (i + 1)}], v8 offset:{512 * (i + 1)}")
    for i in range(5):
        a(f"ds_read_b64_tr_b16 v[{30 + 2 * i}:{31 + 2 * i}], v7 offset:{9216 + 512 * i}")

    def quad(i, kc, kp, vv, wait):
        if wait is not None:
            a(f"s_waitcnt lgkmcnt({wait})")
        t = 48
        a(f"v_dot2_f32_bf16 v{t + 0}, v{kc}, v40, 0")
        a(f"v_dot2_f32_bf16 v{t + 1}, v{kc}, v43, 0")
        a(f"v_dot2_f32_bf16 v{t + 2}, v{kc + 1}, v40, 0")
        a(f"v_dot2_f32_bf16 v{t + 3}, v{kc + 1}, v43, 0")
        a(f"v_dot2_f32_bf16 v{t + 0}, v{kc + 1}, v41, v{t + 0}")
        a(f"v_dot2_f32_bf16 v{t + 1}, v{kc + 1}, v42, v{t + 1}")
        a(f"v_dot2_f32_bf16 v{t + 2}, v{kp}, v41, v{t + 2}")
        a(f"v_dot2_f32_bf16 v{t + 3}, v{kp}, v42, v{t + 3}")
        a(f"v_dot2_f32_bf16 v{t + 1}, v{kp}, v44, v{t + 1}")
        a(f"v_dot2_f32_bf16 v{t + 3}, v{kp + 1}, v44, v{t + 3}")
        a(f"v_lshlrev_b32 v{t + 4}, 16, v{vv}")
        a(f"v_and_b32 v{t + 5}, 0xffff0000, v{vv}")
        a(f"v_lshlrev_b32 v{t + 6}, 16, v{vv + 1}")
        a(f"v_and_b32 v{t + 7}, 0xffff0000, v{vv + 1}")
        a(f"v_mul_f32 v{t + 0}, v{t + 0}, v{t + 4}")
        a(f"v_mul_f32 v{t + 1}, v{t + 1}, v{t + 5}")
        a(f"v_mul_f32 v{t + 2}, v{t + 2}, v{t + 6}")
        a(f"v_mul_f32 v{t + 3}, v{t + 3}, v{t + 7}")
        a(f"v_cvt_pk_bf16_f32 v{t + 8}, v{t + 0}, v{t + 1}")
        a(f"v_cvt_pk_bf16_f32 v{t + 9}, v{t + 2}, v{t + 3}")
        a(f"ds_write_b64 v9, v[{t + 8}:{t + 9}] offset:{8 * (5 - i)}")

    a("s_waitcnt lgkmcnt(0)")
    skip = a.newlabel("kvq5")
    a("s_cmp_eq_u32 s3, 0")
    a(f"s_cbranch_scc0 {skip}")
    a(f"ds_read_b64_tr_b16 v[60:61], v8 offset:{512 * 6}")
    a(f"ds_read_b64_tr_b16 v[62:63], v7 offset:{9216 + 512 * 5}")
    quad(5, 60, 16 + 2 * 5, 62, 0)
    a.label(skip)
    for i in range(5):
        quad(i, 16 + 2 * (i + 1), 16 + 2 * i, 30 + 2 * i, None)
    emit_tile_tail(a, 1)


LOG2E = 0x3fb8aa3b
INV2PI = 0x3e22f983


def cmul(a, d, x, y, t):
    a(f"v_pk_mul_f32 v[{t}:{t + 1}], v[{x}:{x + 1}], v[{y}:{y + 1}] op_sel:[0,0] op_sel_hi:[0,1]")
    a(f"v_pk_fma_f32 v[{d}:{d + 1}], v[{x}:{x + 1}], v[{y}:{y + 1}], v[{t}:{t + 1}] op_sel:[1,1,0] op_sel_hi:[1,0,1] neg_lo:[0,1,0]")


KG_BUF = 4608
KG_WAVE = 2 * KG_BUF


def emit_kgen(a):
    a.c("---- S4D kernel generation: one channel per workgroup, 64 modes per wave ----")
    make_srd(a, 48, P_LOGA, 640 * 192 * 2)
    make_srd(a, 52, P_AIM, 640 * 192 * 2)
    make_srd(a, 56, P_CR, 640 * 192 * 2)
    make_srd(a, 60, P_CI, 640 * 192 * 2)
    make_srd(a, 64, P_LDT, 640 * 2)
    make_srd(a, 68, P_DSK, 640 * 2)
    make_srd(a, 72, P_WS, WS_END)
    a("s_mul_i32 s6, s5, 384")
    a("s_lshl_b32 s7, s3, 7")
    a("s_add_u32 s6, s6, s7")
    a("v_lshl_add_u32 v3, v2, 1, s6")
    a("s_lshl_b32 s7, s5, 1")
    a("v_mov_b32 v4, s7")
    for r in range(10, 16):
        a(f"v_mov_b32 v{r}, 0")
    a("buffer_load_short_d16_hi v10, v3, s[48:51], 0 offen")
    a("buffer_load_short_d16_hi v11, v3, s[52:55], 0 offen")
    a("buffer_load_short_d16_hi v12, v3, s[56:59], 0 offen")
    a("buffer_load_short_d16_hi v13, v3, s[60:63], 0 offen")
    a("buffer_load_short_d16_hi v14, v4, s[64:67], 0 offen")
    a("buffer_load_short_d16_hi v15, v4, s[68:71], 0 offen")
    a(f"s_mul_i32 s8, s3, {KG_WAVE}")
    a("s_mov_b32 m0, s8")
    a("v_and_b32 v5, 15, v2")
    a("v_lshrrev_b32 v6, 4, v2")
    a("v_mul_u32_u24 v7, 288, v5")
    a("v_lshl_add_u32 v7, v6, 4, v7")
    a("v_add_u32 v7, s8, v7")
    a(f"s_mov_b32 s9, {LOG2E:#x}")
    a(f"s_mov_b32 s10, {INV2PI:#x}")
    a("s_waitcnt vmcnt(0)")
    a("v_mul_f32 v14, s9, v14")
    a("v_mul_f32 v10, s9, v10")
    a("v_exp_f32 v14, v14")
    a("v_exp_f32 v10, v10")
    a("s_nop 0")
    a("v_cvt_pk_bf16_f32 v14, v14, v10")
    a("v_and_b32 v10, 0xffff0000, v14")
    a("v_lshlrev_b32 v14, 16, v14")
    a("v_mul_f32 v10, v10, v14")
    a("v_mul_f32 v11, v11, v14")
    a("v_add_f32 v14, v14, v14")
    a("v_mul_f32 v16, v12, v14")
    a("v_mul_f32 v17, v13, v14")
    a("v_mul_f32 v10, s9, v10")
    a("v_sub_f32 v10, 0, v10")
    a("v_mul_f32 v11, s10, v11")
    def cexp(dst, scale):
        t0, t1, t2 = 24, 25, 26
        if scale == 1:
            a(f"v_mov_b32 v{t0}, v10")
            a(f"v_mov_b32 v{t1}, v11")
        else:
            a(f"v_mul_f32 v{t0}, {f32hex(scale)}, v10")
            a(f"v_mul_f32 v{t1}, {f32hex(scale)}, v11")
        a(f"v_rndne_f32 v{t2}, v{t1}")
        a(f"v_exp_f32 v{t0}, v{t0}")
        a(f"v_sub_f32 v{t1}, v{t1}, v{t2}")
        a(f"v_cos_f32 v{t2}, v{t1}")
        a(f"v_sin_f32 v{t1}, v{t1}")
        a("s_nop 0")
        a(f"v_mul_f32 v{dst}, v{t0}, v{t2}")
        a(f"v_mul_f32 v{dst + 1}, v{t0}, v{t1}")
    cexp(18, 1)
    cexp(20, 8)
    cexp(22, 128)
    E1, E8, E128, C2 = 18, 20, 22, 16
    TMP = [24, 26, 28, 30]
    R = [32 + 2 * j for j in range(8)]
    EJ, YB = 48, 50
    CV = [52, 53, 54, 55]
    def wr_row(src, buf, row, negim, cv):
        neg = "-" if negim else ""
        a(f"v_cvt_pk_bf16_f32 v{cv}, v{src}, {neg}v{src + 1}")
        a(f"ds_write_addtid_b32 v{cv} offset:{buf * KG_BUF + row * 288}")

    a("v_mov_b32 v52, 0x3f80")
    a("ds_write_addtid_b32 v52 offset:0")
    wr_row(E8, 0, 1, True, 53)
    a(f"v_mov_b32 v{R[0]}, v{C2}")
    a(f"v_mov_b32 v{R[0] + 1}, v{C2 + 1}")
    ycur = E8
    for b in range(2, 16):
        src = ycur
        cmul_y = (YB, src, E8, TMP[0])
        if b - 1 <= 7:
            j = b - 1
            a(f"v_pk_mul_f32 v[{TMP[0]}:{TMP[0] + 1}], v[{src}:{src + 1}], v[{E8}:{E8 + 1}] op_sel:[0,0] op_sel_hi:[0,1]")
            a(f"v_pk_mul_f32 v[{TMP[1]}:{TMP[1] + 1}], v[{R[j - 1]}:{R[j - 1] + 1}], v[{E1}:{E1 + 1}] op_sel:[0,0] op_sel_hi:[0,1]")
            a(f"v_pk_fma_f32 v[{YB}:{YB + 1}], v[{src}:{src + 1}], v[{E8}:{E8 + 1}], v[{TMP[0]}:{TMP[0] + 1}] op_sel:[1,1,0] op_sel_hi:[1,0,1] neg_lo:[0,1,0]")
            a(f"v_pk_fma_f32 v[{R[j]}:{R[j] + 1}], v[{R[j - 1]}:{R[j - 1] + 1}], v[{E1}:{E1 + 1}], v[{TMP[1]}:{TMP[1] + 1}] op_sel:[1,1,0] op_sel_hi:[1,0,1] neg_lo:[0,1,0]")
            wr_row(R[j - 1], 1, j - 1, False, 54)
        else:
            cmul(a, YB, src, E8, TMP[0])
            j = b - 9
            if j == 0:
                wr_row(R[7], 1, 7, False, 54)
            cmul(a, R[j], R[j], E128, TMP[1])
            wr_row(R[j], 1, 8 + j, False, 54)
        wr_row(YB, 0, b, True, 53)
        ycur = YB
    cmul(a, R[7], R[7], E128, TMP[1])
    wr_row(R[7], 1, 15, False, 54)
    YOP, XOP, ACC = 64, 80, 96
    a("s_waitcnt lgkmcnt(0)")
    for ks in range(4):
        a(f"ds_read_b128 v[{YOP + 4 * ks}:{YOP + 4 * ks + 3}], v7 offset:{64 * ks}")
    for ks in range(4):
        a(f"ds_read_b128 v[{XOP + 4 * ks}:{XOP + 4 * ks + 3}], v7 offset:{KG_BUF + 64 * ks}")
    for idx, j in enumerate([0, 2, 4, 6]):
        cmul(a, R[j], R[j], E128, TMP[idx % 4])
    a("s_waitcnt lgkmcnt(4)")
    for idx, j in enumerate([0, 2, 4, 6]):
        wr_row(R[j], 0, idx, False, CV[idx])
    for idx, j in enumerate([0, 2, 4, 6]):
        cmul(a, R[j], R[j], E128, TMP[idx % 4])
    a("s_waitcnt lgkmcnt(4)")
    for ks in range(4):
        c = "0" if ks == 0 else f"v[{ACC}:{ACC + 3}]"
        a(f"v_mfma_f32_16x16x32_bf16 v[{ACC}:{ACC + 3}], v[{XOP + 4 * ks}:{XOP + 4 * ks + 3}], v[{YOP + 4 * ks}:{YOP + 4 * ks + 3}], {c}")
    for idx, j in enumerate([0, 2, 4, 6]):
        wr_row(R[j], 0, 4 + idx, False, CV[idx])
    for aa in range(4):
        for idx, j in enumerate([0, 4]):
            cmul(a, R[j], R[j], E128, TMP[idx])
        for idx, j in enumerate([0, 4]):
            wr_row(R[j], 0, 8 + 2 * aa + idx, False, CV[(2 * aa + idx) % 4])
    for aa in range(9):
        cmul(a, R[0], R[0], E128, TMP[aa % 2])
        wr_row(R[0], 1, aa, False, CV[aa % 4])
    a("s_waitcnt lgkmcnt(9)")
    for ks in range(4):
        a(f"ds_read_b128 v[{XOP + 4 * ks}:{XOP + 4 * ks + 3}], v7 offset:{64 * ks}")
    a("s_waitcnt lgkmcnt(0)")
    for ks in range(4):
        c = "0" if ks == 0 else f"v[{ACC + 4}:{ACC + 7}]"
        a(f"v_mfma_f32_16x16x32_bf16 v[{ACC + 4}:{ACC + 7}], v[{XOP + 4 * ks}:{XOP + 4 * ks + 3}], v[{YOP + 4 * ks}:{YOP + 4 * ks + 3}], {c}")
    XO2 = 108
    for ks in range(4):
        a(f"ds_read_b128 v[{XO2 + 4 * ks}:{XO2 + 4 * ks + 3}], v7 offset:{KG_BUF + 64 * ks}")
    a("s_waitcnt lgkmcnt(0)")
    for ks in range(4):
        c = "0" if ks == 0 else f"v[{ACC + 8}:{ACC + 11}]"
        a(f"v_mfma_f32_16x16x32_bf16 v[{ACC + 8}:{ACC + 11}], v[{XO2 + 4 * ks}:{XO2 + 4 * ks + 3}], v[{YOP + 4 * ks}:{YOP + 4 * ks + 3}], {c}")
    a("v_lshlrev_b32 v8, 4, v2")
    a("v_add_u32 v9, s8, v8")
    a("s_nop 7")
    a("s_nop 1")
    done = a.newlabel("kg_w0")
    a("s_cmp_eq_u32 s3, 0")
    a(f"s_cbranch_scc1 {done}")
    for t in range(3):
        a(f"ds_write_b128 v9, v[{ACC + 4 * t}:{ACC + 4 * t + 3}] offset:{1024 * t}")
    a("s_waitcnt lgkmcnt(0)")
    a("s_barrier")
    a("s_endpgm")
    a.label(done)
    a("s_barrier")
    for wv in (1, 2):
        for t in range(3):
            a(f"ds_read_b128 v[{32 + 12 * (wv - 1) + 4 * t}:{35 + 12 * (wv - 1) + 4 * t}], v8 offset:{wv * KG_WAVE + 1024 * t}")
    a("v_lshlrev_b32 v60, 4, v5")
    a("v_and_b32 v61, 1, v6")
    a("v_lshrrev_b32 v62, 1, v6")
    a("v_lshl_add_u32 v63, v61, 3, v60")
    a("v_lshl_add_u32 v63, v62, 8, v63")
    a("v_lshl_add_u32 v64, v6, 8, v60")
    a("v_add_u32 v64, 512, v64")
    a("v_lshl_add_u32 v65, v6, 9, v60")
    a("v_cmp_gt_u32 vcc, 2, v6")
    a("s_nop 1")
    a("v_cndmask_b32 v64, v65, v64, vcc")
    a("v_mov_b32 v66, 8")
    a("v_mov_b32 v67, 4")
    a("v_cndmask_b32 v66, v66, v67, vcc")
    a("v_add_u32 v65, v64, v66")
    a("v_mov_b32 v66, 256")
    a("v_mov_b32 v67, 8")
    a("v_cndmask_b32 v66, v66, v67, vcc")
    a("v_add_u32 v66, v64, v66")
    a("v_mov_b32 v67, 264")
    a("v_mov_b32 v68, 12")
    a("v_cndmask_b32 v67, v67, v68, vcc")
    a("v_add_u32 v67, v64, v67")
    a("v_lshl_add_u32 v68, v6, 10, v60")
    a("v_add_u32 v68, 2048, v68")
    a("v_cmp_eq_u32 vcc, 0, v2")
    a("s_nop 1")
    a("v_cndmask_b32 v15, 0, v15, vcc")
    a("s_waitcnt lgkmcnt(0)")
    for i in range(12):
        a(f"v_add_f32 v{ACC + i}, v{ACC + i}, v{32 + i}")
    for i in range(12):
        a(f"v_add_f32 v{ACC + i}, v{ACC + i}, v{44 + i}")
    a(f"v_add_f32 v{ACC}, v{ACC}, v15")
    for i in range(6):
        a(f"v_cvt_pk_bf16_f32 v{56 + i - 24}, v{ACC + 2 * i}, v{ACC + 2 * i + 1}")
    a("ds_write_b16 v63, v32 offset:0")
    a("ds_write_b16_d16_hi v63, v32 offset:2")
    a("ds_write_b16 v63, v33 offset:4")
    a("ds_write_b16_d16_hi v63, v33 offset:6")
    a("ds_write_b16 v64, v34")
    a("ds_write_b16_d16_hi v65, v34")
    a("ds_write_b16 v66, v35")
    a("ds_write_b16_d16_hi v67, v35")
    a("s_mov_b32 exec_hi, 0xffff")
    a("ds_write_b16 v68, v36 offset:0")
    a("s_mov_b32 exec_hi, 0")
    a("ds_write_b16_d16_hi v68, v36 offset:256")
    a("ds_write_b16 v68, v37 offset:512")
    a("ds_write_b16_d16_hi v68, v37 offset:768")
    a("s_mov_b64 exec, -1")
    a("s_mul_i32 s6, s5, 4096")
    a(f"s_add_u32 s6, s6, {WS_KA}")
    a("v_add_u32 v9, s6, v8")
    a("s_mov_b32 s12, 0x01000100")
    a("s_mov_b32 s13, 0x05040100")
    a("v_and_b32 v60, 1, v2")
    a("v_cmp_eq_u32 vcc, 1, v60")
    a("v_mov_b32 v61, s13")
    a("v_mov_b32 v62, 0x05040504")
    a("v_cndmask_b32 v61, v61, v62, vcc")
    a("v_cmp_gt_u32 vcc, 32, v2")
    a("s_waitcnt lgkmcnt(0)")
    for s in range(4):
        a(f"ds_read_b128 v[{40 + 8 * s}:{43 + 8 * s}], v8 offset:{1024 * s}")
        a(f"ds_read_b32 v{44 + 8 * s}, v8 offset:{1024 * s + 16}")
    a("s_waitcnt lgkmcnt(0)")
    def perm(d, s0, s1, sel):
        a(f"v_perm_b32 v{d}, v{s0}, v{s1}, {sel}")
    perm(72, 40, 40, "s12"); perm(73, 42, 41, "s13"); perm(74, 42, 42, "s12"); perm(75, 44, 43, "s13")
    for i in range(4):
        a(f"v_cndmask_b32 v{72 + i}, v{72 + i}, v{40 + i}, vcc")
    a(f"buffer_store_dwordx4 v[72:75], v9, s[72:75], 0 offen")
    perm(76, 48, 48, "s12"); perm(77, 50, 48, "s13"); perm(78, 50, 50, "s12"); perm(79, 52, 52, "s12")
    a(f"buffer_store_dwordx4 v[76:79], v9, s[72:75], 0 offen offset:1024")
    for s, o in ((2, 80), (3, 84)):
        d0, d4 = 40 + 8 * s, 44 + 8 * s
        perm(o, d0, d0, "s12"); perm(o + 1, d0, d0, "s12"); perm(o + 2, d4, d0, "v61"); perm(o + 3, d4, d4, "s12")
        a(f"buffer_store_dwordx4 v[{o}:{o + 3}], v9, s[72:75], 0 offen offset:{1024 * s}")
    a("s_endpgm")


def f32hex(x):
    import struct
    return hex(struct.unpack("<I", struct.pack("<f", float(x)))[0])


def emit_prep(a):
    k = "prep_kernel"
    a.raw(f".globl {k}")
    a.raw(".p2align 8")
    a.raw(f".type {k},@function")
    a.label(k)
    a("s_cmp_ge_u32 s2, 1280")
    a("s_cbranch_scc1 L_prep_exit")
    load_kernargs(a)
    a("v_lshrrev_b32 v1, 6, v0")
    a("v_and_b32 v2, 63, v0")
    a("s_and_b32 s4, s2, 1")
    a("v_readfirstlane_b32 s3, v1")
    a("s_lshr_b32 s5, s2, 1")
    a("s_waitcnt lgkmcnt(0)")
    a("s_cmp_eq_u32 s4, 1")
    a("s_cbranch_scc1 L_kgen")
    emit_tile_common(a)
    a("s_and_b32 s4, s5, 1")
    a("s_cmp_eq_u32 s4, 1")
    a("s_cbranch_scc1 L_kv")
    emit_tile_u(a)
    a.label("L_kv")
    emit_tile_kv(a)
    a.label("L_kgen")
    emit_kgen(a)
    a.label("L_prep_exit")
    a("s_endpgm")


U_PITCH = 4608
U_OFF = 0
K_OFF = 8 * U_PITCH
PO_REL = 4160
K_PITCH = 8320
Y_OFF = K_OFF + 8 * K_PITCH
Y_PITCH = 4160
K2_LDS = Y_OFF + 8 * Y_PITCH


class Stream:
    def __init__(self, a, max_out=14):
        self.a = a
        self.q = []
        self.n = 0
        self.max_out = max_out
        self.done = set()

    def ins(self, txt):
        self.a(txt)
        self.n += 1

    def lds(self, txt, tag):
        if len(self.q) >= self.max_out:
            keep = self.max_out - 1
            self._wait(keep)
        self.ins(txt)
        self.q.append(tag)

    def _wait(self, keep):
        if len(self.q) > keep:
            self.ins(f"s_waitcnt lgkmcnt({keep})")
            for t in self.q[:len(self.q) - keep]:
                self.done.add(t)
            self.q = self.q[len(self.q) - keep:]

    def need(self, tags):
        last = -1
        for i, t in enumerate(self.q):
            if t in tags:
                last = i
        if last >= 0:
            self._wait(len(self.q) - 1 - last)

    def pad_since(self, n0, states):
        k = states - (self.n - n0)
        while k > 0:
            c = min(k, 16)
            self.ins(f"s_nop {c - 1}")
            self.n += c - 1
            k -= c


def emit_conv(a, rounds=2, tiles=range(0, 8)):
    k = "conv_kernel"
    a.raw(f".globl {k}")
    a.raw(".p2align 8")
    a.raw(f".type {k},@function")
    a.label(k)
    a("s_cmp_ge_u32 s2, 160")
    a("s_cbranch_scc1 L_conv_exit")
    load_kernargs(a)
    a("v_lshrrev_b32 v1, 6, v0")
    a("v_and_b32 v2, 63, v0")
    a("s_and_b32 s6, s2, 7")
    a("v_readfirstlane_b32 s3, v1")
    a("s_lshr_b32 s7, s2, 3")
    a("s_cmp_ge_u32 s7, 10")
    a("s_cselect_b32 s4, 1, 0")
    a("s_mul_i32 s8, s4, 10")
    a("s_sub_u32 s7, s7, s8")
    a("s_mul_i32 s5, s6, 10")
    a("s_add_u32 s5, s5, s7")
    a("v_and_b32 v3, 15, v2")
    a("v_lshrrev_b32 v4, 4, v2")
    a("s_waitcnt lgkmcnt(0)")
    make_srd(a, 48, P_WS, WS_KA)
    a(f"s_add_u32 s8, s{P_WS}, {WS_KA}")
    a(f"s_addc_u32 s9, s{P_WS + 1}, 0")
    a("s_cmp_eq_u32 s4, 1")
    a(f"s_cselect_b32 s52, s{P_SSK}, s8")
    a(f"s_cselect_b32 s53, s{P_SSK + 1}, s9")
    a("s_and_b32 s53, s53, 0xffff")
    a(f"s_mov_b32 s54, {640 * 4096}")
    a("s_mov_b32 s55, 0x00020000")
    make_srd(a, 56, P_Q, TENS)
    make_srd(a, 60, P_OUT, L * 2560)
    make_srd(a, 64, P_SSD, 1280)
    a("s_cmp_eq_u32 s4, 1")
    a(f"s_cselect_b32 s58, {TENS}, 0")
    a("s_cselect_b32 s66, 1280, 0")
    a("s_lshl_b32 s8, s5, 3")
    a("s_add_u32 s8, s8, s3")
    a("s_mul_i32 s9, s4, 640")
    a("s_add_u32 s9, s9, s8")
    for r in range(24, 28):
        a(f"v_mov_b32 v{r}, 0")
    a("s_lshl_b32 s10, s8, 12")
    a("s_lshl_b32 s11, s8, 1")
    a("v_mov_b32 v20, s10")
    a("v_mov_b32 v21, s11")
    a("buffer_load_short_d16_hi v24, v20, s[52:55], 0 offen")
    a("s_add_u32 s12, s10, 16384")
    a("v_mov_b32 v22, s12")
    a("buffer_load_short_d16_hi v25, v22, s[52:55], 0 offen")
    a("buffer_load_short_d16_hi v26, v21, s[64:67], 0 offen")
    a("buffer_load_short_d16_hi v27, v21, s[64:67], 0 offen offset:8")
    a("v_lshlrev_b32 v20, 4, v2")
    a("s_lshl_b32 s13, s9, 12")
    for rd in range(rounds):
        chl = f"(wave + {4 * rd})"
        a(f"s_add_u32 s14, s3, {4 * rd}")
        a(f"s_mul_i32 s{70 + 2 * rd}, s14, {U_PITCH}")
        a(f"s_mul_i32 s{71 + 2 * rd}, s14, {K_PITCH}")
        a(f"s_add_u32 s{71 + 2 * rd}, s{71 + 2 * rd}, {K_OFF}")
        a(f"s_add_u32 s15, s13, {rd * 16384}")
        a(f"s_mov_b32 m0, s{70 + 2 * rd}")
        a("s_nop 0")
        for kk in range(4):
            a(f"buffer_load_dwordx4 v20, s[48:51], s15 offen offset:{1024 * kk} lds")
        a(f"s_add_u32 s15, s10, {rd * 16384}")
        a(f"s_add_u32 m0, s{71 + 2 * rd}, 32")
        a("s_nop 0")
        for kk in range(4):
            a(f"buffer_load_dwordx4 v20, s[52:55], s15 offen offset:{1024 * kk} lds")
        a("s_add_u32 s15, s15, 2")
        a(f"s_add_u32 m0, s{71 + 2 * rd}, {PO_REL + 32}")
        a("s_nop 0")
        for kk in range(4):
            a(f"buffer_load_dwordx4 v20, s[52:55], s15 offen offset:{1024 * kk} lds")
    a("s_lshl_b32 s14, s3, 6")
    a("v_add_u32 v28, s14, v2")
    a("v_mul_u32_u24 v19, 1280, v28")
    a("s_lshl_b32 s15, s5, 4")
    a("v_add_u32 v19, s15, v19")
    for m in range(8):
        a(f"s_mov_b32 s68, {m * 256 * 1280}")
        a(f"buffer_load_dwordx4 v[{128 + 4 * m}:{131 + 4 * m}], v19, s[56:59], s68 offen")
    a("v_mul_u32_u24 v18, 2560, v28")
    a("s_mul_i32 s14, s4, 1280")
    a("s_add_u32 s14, s14, s15")
    a("v_add_u32 v18, s14, v18")
    for rd in range(rounds):
        su, sk = 70 + 2 * rd, 71 + 2 * rd
        a(f"v_lshlrev_b32 v28, 5, v3")
        a(f"v_lshlrev_b32 v29, 4, v4")
        a(f"v_sub_u32 v28, v29, v28")
        a(f"s_add_u32 s14, s{su}, 480")
        a(f"v_add_u32 v{5 + rd}, s14, v28")
        a("v_add_u32 v28, 1, v3")
        a("v_and_b32 v29, 1, v28")
        a("v_lshl_add_u32 v28, v4, 3, v28")
        a("v_lshrrev_b32 v28, 1, v28")
        a("v_lshlrev_b32 v28, 2, v28")
        a(f"v_mul_u32_u24 v29, {PO_REL}, v29")
        a("v_add_u32 v28, v28, v29")
        a(f"v_add_u32 v{7 + 4 * rd}, s{sk}, v28")
        for kk in range(1, 4):
            a(f"v_add_u32 v{7 + 4 * rd + kk}, {1024 * kk}, v{7 + 4 * rd}")
        a(f"s_add_u32 s14, s3, {4 * rd}")
        a(f"s_mul_i32 s14, s14, {Y_PITCH}")
        a(f"s_add_u32 s14, s14, {Y_OFF}")
        a("v_lshlrev_b32 v28, 5, v3")
        a("v_lshl_add_u32 v28, v4, 3, v28")
        a(f"v_add_u32 v{15 + rd}, s14, v28")
        a(f"s_add_u32 s14, s{su}, 4096")
        a(f"v_lshl_add_u32 v28, v2, 4, s14")
        a(f"s_sub_u32 s14, s{sk}, {30 * 16}")
        a(f"v_lshl_add_u32 v29, v2, 4, s14")
        a(f"s_add_u32 s14, s{sk}, {PO_REL - 32 * 16}")
        a(f"v_lshl_add_u32 v30, v2, 4, s14")
        a("v_cmp_gt_u32 vcc, 30, v2")
        a("s_nop 1")
        a("v_cndmask_b32 v29, v29, v28, vcc")
        a("v_cmp_gt_u32 vcc, 32, v2")
        a("s_nop 1")
        a("v_cndmask_b32 v29, v30, v29, vcc")
        for r in range(160, 164):
            a(f"v_mov_b32 v{r}, 0")
        a("s_mov_b32 exec_lo, -1")
        a("s_mov_b32 exec_hi, 3")
        a("ds_write_b128 v29, v[160:163]")
        a("s_mov_b64 exec, -1")
    a("v_bfe_u32 v28, v2, 2, 2")
    a(f"v_mul_u32_u24 v28, {Y_PITCH}, v28")
    a("v_and_b32 v29, 3, v2")
    a("v_lshl_add_u32 v28, v29, 3, v28")
    a("v_lshl_add_u32 v28, v4, 5, v28")
    a("s_lshl_b32 s14, s3, 7")
    a(f"s_add_u32 s14, s14, {Y_OFF}")
    a("v_add_u32 v17, s14, v28")

    st = Stream(a)

    def patch(rd):
        st.ins(f"v_add_f32 v{24 + rd}, v{24 + rd}, v{26 + rd}")
        st.ins(f"v_cvt_pk_bf16_f32 v{24 + rd}, v{24 + rd}, v{24 + rd}")
        st.ins(f"v_mov_b32 v28, s{71 + 2 * rd}")
        st.lds(f"ds_write_b16 v28, v{24 + rd} offset:32", ("patch", rd, 0))
        st.lds(f"ds_write_b16 v28, v{24 + rd} offset:{PO_REL + 30}", ("patch", rd, 1))

    tiles = list(tiles)
    nlo, nhi = tiles[0], tiles[-1]
    mf = []
    gstep = 0
    seen = set()
    for rd in range(rounds):
        for m in range(0, nhi + 1):
            for r in range(8):
                bslot = (gstep * 8 + r) % 16
                for n in range(nhi, max(m, nlo) - 1, -1):
                    cp = n - m
                    first = (rd, n) not in seen
                    seen.add((rd, n))
                    mf.append(dict(rd=rd, m=m, r=r, n=n, cp=cp, aslot=8 * cp + r, bslot=bslot, first=first,
                                   atag=("A", rd, 8 * cp + r), btag=("B", rd, m, r)))
            gstep += 1
    nM = len(mf)
    loads = []
    have = set()
    last_use_a = {}
    last_use_b = {}
    for i, x in enumerate(mf):
        if x['btag'] not in have:
            have.add(x['btag'])
            loads.append(dict(tag=x['btag'], kind='B', need=i, free=last_use_b.get(x['bslot'], -1), x=x))
        if x['atag'] not in have:
            have.add(x['atag'])
            loads.append(dict(tag=x['atag'], kind='A', need=i, free=last_use_a.get(x['aslot'], -1), x=x))
        last_use_a[x['aslot']] = i
        last_use_b[x['bslot']] = i
    first_idx_round = {}
    for i, x in enumerate(mf):
        first_idx_round.setdefault(x['rd'], i)

    def emit_load(ld):
        x = ld['x']
        rd = x['rd']
        if ld['kind'] == 'B':
            gamma = 8 * x['m'] - x['r']
            off = 3584 - 64 * gamma
            d = 64 + 4 * x['bslot']
            st.lds(f"ds_read_b128 v[{d}:{d + 3}], v{5 + rd} offset:{off}", ld['tag'])
        else:
            cidx = x['aslot']
            base = 7 + 4 * rd + (cidx >> 4)
            o = 16 * (cidx & 15)
            d = 4 * cidx
            st.lds(f"ds_read2_b32 a[{d}:{d + 1}], v{base} offset0:{o} offset1:{o + 1}", (ld['tag'], 0))
            st.lds(f"ds_read2_b32 a[{d + 2}:{d + 3}], v{base} offset0:{o + 2} offset1:{o + 3}", ld['tag'])

    aux = {}

    def add_aux(i, fn):
        aux.setdefault(min(i, nM), []).append(fn)

    acc_base = lambda rd: 32 if rd % 2 == 0 else 192
    last_of_tile = {}
    for i, x in enumerate(mf):
        last_of_tile[(x['rd'], x['n'])] = i
    mf_pos = {}

    def epi1(rd, n):
        def fn():
            i = last_of_tile[(rd, n)]
            st.pad_since(mf_pos[i], 8)
            ab = acc_base(rd) + 4 * n
            t = 164 + 2 * (n % 2)
            st.ins(f"v_cvt_pk_bf16_f32 v{t}, v{ab}, v{ab + 1}")
            st.ins(f"v_cvt_pk_bf16_f32 v{t + 1}, v{ab + 2}, v{ab + 3}")
            st.lds(f"ds_write_b64 v{15 + rd}, v[{t}:{t + 1}] offset:{512 * n}", ("Y", rd, n))
        return fn

    def epi2a(rd, n):
        def fn():
            st.need({("Y", rd, n)})
            st.ins("s_barrier")
            t = 168 + 4 * (n % 2)
            st.lds(f"ds_read_b64_tr_b16 v[{t}:{t + 1}], v17 offset:{512 * n}", ("T", n, 0))
            st.lds(f"ds_read_b64_tr_b16 v[{t + 2}:{t + 3}], v17 offset:{512 * n + 4 * Y_PITCH}", ("T", n, 1))
        return fn

    first_store = [True]

    def epi2b(rd, n):
        def fn():
            t = 168 + 4 * (n % 2)
            st.need({("T", n, 0), ("T", n, 1)})
            if first_store[0]:
                st.ins("s_waitcnt vmcnt(0)")
                first_store[0] = False
            skip = a.newlabel("noq")
            a("s_cmp_eq_u32 s4, 0")
            a(f"s_cbranch_scc1 {skip}")
            qb = 128 + 4 * n
            u = 176
            for i2 in range(4):
                a(f"v_lshlrev_b32 v{u}, 16, v{t + i2}")
                a(f"v_and_b32 v{u + 1}, 0xffff0000, v{t + i2}")
                a(f"v_lshlrev_b32 v{u + 2}, 16, v{qb + i2}")
                a(f"v_and_b32 v{u + 3}, 0xffff0000, v{qb + i2}")
                a(f"v_mul_f32 v{u}, v{u}, v{u + 2}")
                a(f"v_mul_f32 v{u + 1}, v{u + 1}, v{u + 3}")
                a(f"v_cvt_pk_bf16_f32 v{t + i2}, v{u}, v{u + 1}")
            a.label(skip)
            st.ins(f"s_mov_b32 s68, {n * 256 * 2560}")
            st.ins(f"buffer_store_dwordx4 v[{t}:{t + 3}], v18, s[60:63], s68 offen")
        return fn

    for rd in range(rounds):
        for n in tiles:
            i = last_of_tile[(rd, n)]
            add_aux(i + 1 + 4, epi1(rd, n))
            if rd == rounds - 1:
                add_aux(i + 1 + 10, epi2a(rd, n))
                add_aux(i + 1 + 16, epi2b(rd, n))

    gate = {}
    for rd in range(1, rounds):
        gi = 8
        gi = first_idx_round[rd - 1] + 40
        gate[rd] = gi

        def mk(rd):
            def fn():
                st.ins(f"s_waitcnt vmcnt({8 + 12 * (rounds - 1 - rd)})")
                patch(rd)
            return fn
        add_aux(gi, mk(rd))

    st.ins(f"s_waitcnt vmcnt({8 + 12 * (rounds - 1)})")
    patch(0)
    qa = [ld for ld in loads if ld['kind'] == 'A']
    qb = [ld for ld in loads if ld['kind'] == 'B']
    pos = {'A': 0, 'B': 0}

    def ok(ld, i):
        rd = ld['x']['rd']
        if ld['free'] >= i:
            return False
        if rd in gate and i <= gate[rd]:
            return False
        return True

    def issue_loads(i, budget):
        cnt = 0
        while cnt < budget:
            cand = None
            if pos['B'] < len(qb) and ok(qb[pos['B']], i) and len(st.q) + 1 <= st.max_out:
                cand = 'B'
            if pos['A'] < len(qa) and ok(qa[pos['A']], i) and len(st.q) + 2 <= st.max_out:
                if cand is None or qa[pos['A']]['need'] < qb[pos['B']]['need']:
                    cand = 'A'
            if cand is None:
                break
            ld = (qa if cand == 'A' else qb)[pos[cand]]
            emit_load(ld)
            pos[cand] += 1
            cnt += 2 if cand == 'A' else 1

    for i, x in enumerate(mf):
        for fn in aux.get(i, []):
            fn()
        while pos['B'] < len(qb) and qb[pos['B']]['need'] <= i:
            emit_load(qb[pos['B']])
            pos['B'] += 1
        while pos['A'] < len(qa) and qa[pos['A']]['need'] <= i:
            emit_load(qa[pos['A']])
            pos['A'] += 1
        issue_loads(i, 4 if x['rd'] == 0 and x['m'] == 0 else 2)
        st.need({x['atag'], x['btag']})
        ab = acc_base(x['rd']) + 4 * x['n']
        src_c = "0" if x['first'] else f"v[{ab}:{ab + 3}]"
        bs = 64 + 4 * x['bslot']
        st.ins(f"v_mfma_f32_16x16x32_bf16 v[{ab}:{ab + 3}], a[{4 * x['aslot']}:{4 * x['aslot'] + 3}], v[{bs}:{bs + 3}], {src_c}")
        mf_pos[i] = st.n
    for fn in aux.get(nM, []):
        fn()
    a("s_endpgm")
    a.label("L_conv_exit")
    a("s_endpgm")


def kd(name, vgpr, sgpr, accum):
    return f""".amdhsa_kernel {name}
  .amdhsa_next_free_vgpr {vgpr}
  .amdhsa_next_free_sgpr {sgpr}
  .amdhsa_accum_offset {accum}
  .amdhsa_group_segment_fixed_size 0
  .amdhsa_kernarg_size 128
  .amdhsa_user_sgpr_count 2
  .amdhsa_user_sgpr_kernarg_segment_ptr 1
  .amdhsa_system_sgpr_workgroup_id_x 1
.end_amdhsa_kernel
"""


HEADER = open("cdna_kernels/" + NAME + ".s.ref").read().split("; Override launch geometry")[0]


def build():
    a = Asm()
    a.raw(HEADER.rstrip("\n"))
    a.raw(f"; @launch kernel=prep_kernel grid=(1280,1,1) block=(192,1,1) lds={K1_LDS}")
    a.raw(f"; @launch kernel=conv_kernel grid=(160,1,1) block=(256,1,1) lds={K2_LDS}")
    a.raw('.amdgcn_target "amdgcn-amd-amdhsa--gfx950"')
    a.raw(".text")
    emit_prep(a)
    emit_conv(a)
    a.raw('.section .rodata,"a"')
    a.raw(".p2align 6")
    a.raw(kd("prep_kernel", 124, 80, 124))
    a.raw(".p2align 6")
    a.raw(kd("conv_kernel", 512, 80, 256))
    return a.text()


if __name__ == "__main__":
    out = sys.argv[1] if len(sys.argv) > 1 else "cdna_kernels/" + NAME + ".s"
    open(out, "w").write(build())
    print("wrote", out)
```

```python
import sys

NAME = "concat_heads__ssm_conv_s4d__ssm_conv_h3__prompt"

L = 2048
D = 640
NM = 192
ROWB = 1280
TENS = L * ROWB

WS_UT = 0
WS_KA = 1280 * 4096
WS_END = WS_KA + 640 * 4096

P_U, P_LOGA, P_AIM, P_CR, P_CI, P_LDT, P_DSK, P_Q, P_K, P_V, P_SHK, P_SSK, P_SSD, P_OUT, P_DBG, P_WS = [16 + 2 * i for i in range(16)]


import os
STAMP = bool(int(os.environ.get("STAMP", "0")))
STEPSTAMP = int(os.environ.get("STEPSTAMP", "-1"))
OPT_MPF = int(os.environ.get("OPT_MPF", "1"))
OPT_XMAP = int(os.environ.get("OPT_XMAP", "0"))
OPT_SCOUT = int(os.environ.get("OPT_SCOUT", "0"))
KGREP = int(os.environ.get("KGREP", "0"))
NOKGEN = int(os.environ.get("NOKGEN", "0"))
OPT_PF = int(os.environ.get("OPT_PF", "1"))
OPT_RBM = int(os.environ.get("OPT_RBM", "0"))
OPT_LATE = int(os.environ.get("OPT_LATE", "0"))


def code_prefetch(a, endlabel, vtmp, vdst):
    if not OPT_PF:
        return
    lab = a.newlabel("pc")
    a("s_getpc_b64 s[10:11]")
    a.label(lab)
    a(f"v_lshlrev_b32 v{vtmp}, 7, v0")
    a(f"v_min_u32 v{vtmp}, {endlabel}-{lab}-4, v{vtmp}")
    a(f"global_load_dword v{vdst}, v{vtmp}, s[10:11]")


WS_STAMP = 16 << 20
ST0 = 84


def stamp(a, i, k2=False):
    if STAMP and not (k2 and STEPSTAMP >= 0):
        a(f"s_memrealtime s[{ST0 + 2 * i}:{ST0 + 2 * i + 1}]")


def stamp_flush(a, n, kern):
    if not STAMP:
        return
    a("s_waitcnt lgkmcnt(0)")
    make_srd(a, 76, P_WS, WS_STAMP + (4 << 20))
    a("s_lshl_b32 s80, s2, 4")
    a("s_add_u32 s80, s80, s3")
    a("s_lshl_b32 s80, s80, 5")
    a(f"s_add_u32 s80, s80, {WS_STAMP + kern * (1 << 20)}")
    a("s_mov_b64 exec, 1")
    a("v_mov_b32 v250, s80" if False else "v_mov_b32 v9, s80")
    for i in range(n):
        a(f"v_mov_b32 v8, s{ST0 + 2 * i}")
        a(f"buffer_store_dword v8, v9, s[76:79], 0 offen offset:{4 * i}")
    a("s_mov_b64 exec, -1")


class Asm:
    def __init__(self):
        self.lines = []
        self.nlab = 0

    def __call__(self, s):
        self.lines.append("    " + s)

    def raw(self, s):
        self.lines.append(s)

    def label(self, s):
        self.lines.append(s + ":")

    def c(self, s):
        self.lines.append("    ; " + s)

    def newlabel(self, base):
        self.nlab += 1
        return f"L_{base}_{self.nlab}"

    def text(self):
        return "\n".join(self.lines) + "\n"


def vr(i, n=1):
    return f"v{i}" if n == 1 else f"v[{i}:{i + n - 1}]"


def ar(i, n=1):
    return f"a{i}" if n == 1 else f"a[{i}:{i + n - 1}]"


def sr(i, n=1):
    return f"s{i}" if n == 1 else f"s[{i}:{i + n - 1}]"


def make_srd(a, dst, ptr, nbytes):
    a(f"s_mov_b32 s{dst}, s{ptr}")
    a(f"s_and_b32 s{dst + 1}, s{ptr + 1}, 0xffff")
    a(f"s_mov_b32 s{dst + 2}, {nbytes}")
    a(f"s_mov_b32 s{dst + 3}, 0x00020000")


def load_kernargs(a):
    a("s_load_dwordx16 s[16:31], s[0:1], 0")
    a("s_load_dwordx16 s[32:47], s[0:1], 64")


TW_RAWK = 0
TW_RAWV = 12288
TW_RAWU = TW_RAWV + 10240
TW_STG = TW_RAWU + 10240
KG_OFF = TW_STG + 5 * 5120
KG_CNT = KG_OFF + 9 * 9216
K1_LDS = KG_CNT + 64


def lds_signal(a, addr_v, one_v):
    a("s_mov_b64 exec, 1")
    a(f"ds_add_u32 v{addr_v}, v{one_v}")
    a("s_mov_b64 exec, -1")


def lds_wait_count(a, addr_v, tmp_v, tmp_s, count, name):
    spin = a.newlabel(name)
    a.label(spin)
    a(f"ds_read_b32 v{tmp_v}, v{addr_v}")
    a("s_waitcnt lgkmcnt(0)")
    a(f"v_readfirstlane_b32 s{tmp_s}, v{tmp_v}")
    a(f"s_cmp_lt_u32 s{tmp_s}, {count}")
    a(f"s_cbranch_scc1 {spin}")


def emit_tilewave(a):
    a.c("---- tile waves: workgroup tile = 32 rows x 160 channels of u, k, v ; wave w owns 32 channels ----")
    if OPT_XMAP:
        a("s_lshr_b32 s7, s2, 5")
        a("s_lshl_b32 s7, s7, 3")
        a("s_and_b32 s8, s2, 7")
        a("s_add_u32 s8, s8, s7")
        a("s_bfe_u32 s7, s2, 0x20003")
    else:
        a("s_lshr_b32 s8, s2, 2")
        a("s_and_b32 s7, s2, 3")
    a("s_mul_i32 s9, s8, 40960")
    a("s_mul_i32 s10, s7, 320")
    a("s_add_u32 s9, s9, s10")
    a("s_lshl_b32 s11, s3, 6")
    a("s_add_u32 s10, s10, s11")
    a("s_lshl_b32 s12, s3, 6")
    a("v_add_u32 v3, s12, v2")
    a("v_mul_u32_u24 v4, 52429, v3")
    a("v_lshrrev_b32 v4, 20, v4")
    a("v_mul_u32_u24 v5, 20, v4")
    a("v_sub_u32 v5, v3, v5")
    a("v_mul_u32_u24 v6, 1280, v4")
    a("v_lshl_add_u32 v6, v5, 4, v6")
    a("v_add_u32 v5, s9, v6")
    a("v_add_u32 v6, 20480, v5")
    a("v_subrev_u32 v7, 5120, v5")
    a("s_lshl_b32 s12, s3, 10")
    a("s_waitcnt lgkmcnt(0)")
    stamp(a, 1)
    make_srd(a, 48, P_U, TENS)
    make_srd(a, 52, P_K, TENS)
    make_srd(a, 56, P_V, TENS)
    make_srd(a, 60, P_SHK, 640 * 8)
    a("s_barrier")
    a(f"s_add_u32 m0, s12, {TW_RAWK + 1280}")
    a("s_nop 0")
    a("buffer_load_dwordx4 v5, s[52:55], 0 offen lds")
    a(f"s_add_u32 m0, s12, {TW_RAWK + 1280 + 5120}")
    a("s_nop 0")
    a("buffer_load_dwordx4 v6, s[52:55], 0 offen lds")
    nohalo = a.newlabel("nohalo")
    a("s_cmp_gt_u32 s3, 1")
    a(f"s_cbranch_scc1 {nohalo}")
    a("s_cmp_eq_u32 s3, 0")
    a("s_cselect_b32 exec_hi, -1, 0")
    a("s_cselect_b32 exec_lo, -1, 0xffff")
    a(f"s_add_u32 m0, s12, {TW_RAWK}")
    a("s_nop 0")
    a("buffer_load_dwordx4 v7, s[52:55], 0 offen lds")
    a("s_mov_b64 exec, -1")
    a.label(nohalo)
    for srd, base in ((56, TW_RAWV), (48, TW_RAWU)):
        a(f"s_add_u32 m0, s12, {base}")
        a("s_nop 0")
        a(f"buffer_load_dwordx4 v5, s[{srd}:{srd + 3}], 0 offen lds")
        a(f"s_add_u32 m0, s12, {base + 5120}")
        a("s_nop 0")
        a(f"buffer_load_dwordx4 v6, s[{srd}:{srd + 3}], 0 offen lds")
    stamp(a, 2)
    a("v_lshrrev_b32 v3, 2, v2")
    a("v_and_b32 v4, 3, v2")
    a("v_bfe_u32 v8, v2, 4, 1")
    a("v_lshrrev_b32 v9, 5, v2")
    a("v_and_b32 v10, 15, v2")
    a("v_lshl_add_u32 v11, v8, 4, v10")
    a("s_lshl_b32 s13, s10, 2")
    a("v_lshl_add_u32 v12, v11, 3, s13")
    a("buffer_load_dwordx2 v[40:41], v12, s[60:63], 0 offen")
    make_srd(a, 64, P_WS, WS_END)
    a("v_and_b32 v13, 3, v3")
    a("v_sub_u32 v13, 3, v13")
    a("v_lshl_add_u32 v13, v9, 2, v13")
    a("v_mul_u32_u24 v13, 320, v13")
    a("v_lshl_add_u32 v13, v8, 5, v13")
    a("v_lshl_add_u32 v13, v4, 3, v13")
    a("v_add_u32 v13, s11, v13")
    a("s_mul_i32 s12, s3, 5120")
    a(f"s_add_u32 s12, s12, {TW_STG}")
    a("v_mul_u32_u24 v14, 80, v11")
    a("v_lshlrev_b32 v15, 3, v9")
    a("v_sub_u32 v14, v14, v15")
    a("s_add_u32 s13, s12, 8")
    a("v_add_u32 v14, s13, v14")
    a("v_mul_u32_u24 v15, 80, v3")
    a("v_lshl_add_u32 v15, v4, 4, v15")
    a("v_add_u32 v15, s12, v15")
    a("s_lshl_b32 s13, s10, 11")
    a("s_lshl_b32 s14, s8, 6")
    a("s_sub_u32 s13, s13, s14")
    a("s_add_u32 s13, s13, 4032")
    a("v_lshlrev_b32 v16, 12, v3")
    a("v_lshl_add_u32 v16, v4, 4, v16")
    a("v_add_u32 v16, s13, v16")
    a(f"v_mov_b32 v36, {KG_CNT + 12}")
    a("v_mov_b32 v37, 1")
    if OPT_SCOUT:
        a("s_mov_b32 s70, 0")
        a("s_mov_b64 exec, 0")
        for w_, nm in enumerate(("K0", "K1", "K2", "K3", "K4")):
            a(f"s_cmp_eq_u32 s3, {w_}")
            a(f"s_cbranch_scc1 L_sc_{nm}")
        a.label("L_scout_ret")
        a("s_add_u32 s70, s70, 1")
        a("s_cmp_eq_u32 s70, 1")
        a("s_cbranch_scc0 L_scout_p2")
        a("s_cmp_eq_u32 s3, 0")
        a("s_cbranch_scc1 L_sc_F0")
        a("s_cmp_eq_u32 s3, 1")
        a("s_cbranch_scc1 L_sc_F1")
        a("s_add_u32 s70, s70, 1")
        a.label("L_scout_p2")
        a("s_cmp_eq_u32 s70, 2")
        a("s_cbranch_scc1 L_tproc")
        a("s_mov_b64 exec, -1")
    a("s_setprio 2")
    a("s_waitcnt vmcnt(0)")
    lds_signal(a, 36, 37)
    stamp(a, 3)
    if OPT_MPF:
        nopf = a.newlabel("nopf")
        a("s_cmp_ge_u32 s3, 4")
        a(f"s_cbranch_scc1 {nopf}")
        a("s_cmp_ge_u32 s3, 2")
        a(f"s_cselect_b32 s68, s{P_Q}, s{P_SSK}")
        a(f"s_cselect_b32 s69, s{P_Q + 1}, s{P_SSK + 1}")
        a("s_and_b32 s69, s69, 0xffff")
        a(f"s_mov_b32 s70, {TENS}")
        a("s_mov_b32 s71, 0x00020000")
        a("s_mul_i32 s15, s2, 10240")
        a("s_and_b32 s14, s3, 1")
        a("s_lshl_b32 s14, s14, 13")
        a("s_add_u32 s15, s15, s14")
        a("v_lshlrev_b32 v39, 7, v2")
        a("v_add_u32 v39, s15, v39")
        a("s_and_b32 s14, s3, 1")
        a("s_cmp_eq_u32 s14, 1")
        a("s_cselect_b32 exec_lo, 0xffff, -1")
        a("s_cselect_b32 exec_hi, 0, -1")
        a("buffer_load_dword v45, v39, s[68:71], 0 offen")
        a("s_mov_b64 exec, -1")
        a.label(nopf)
    a("v_alignbit_b32 v42, v41, v40, 16")
    a("v_lshlrev_b32 v43, 16, v40")
    a("v_lshrrev_b32 v44, 16, v41")
    lds_wait_count(a, 36, 38, 14, 5, "tile_spin")
    a.label("L_tproc")
    for j in range(4):
        a(f"ds_read_b64_tr_b16 v[{18 + 2 * j}:{19 + 2 * j}], v13 offset:{TW_RAWK + 1280 + 2560 * j}")
        a(f"ds_read_b64_tr_b16 v[{26 + 2 * j}:{27 + 2 * j}], v13 offset:{TW_RAWK + 2560 * j}")
        a(f"ds_read_b64_tr_b16 v[{46 + 2 * j}:{47 + 2 * j}], v13 offset:{TW_RAWV + 2560 * j}")
    for j in range(3):
        a(f"ds_read_b64_tr_b16 v[{54 + 2 * j}:{55 + 2 * j}], v13 offset:{TW_RAWU + 2560 * j}")
    for j in range(4):
        kc, kp, vv = 18 + 2 * j, 26 + 2 * j, 46 + 2 * j
        t = 64 + 10 * (j & 1)
        a(f"s_waitcnt lgkmcnt({12 - 3 * j})")
        if j == 0:
            a(f"ds_read_b64_tr_b16 v[60:61], v13 offset:{TW_RAWU + 2560 * 3}")
        a(f"v_dot2_f32_bf16 v{t + 0}, v{kc}, v40, 0")
        a(f"v_dot2_f32_bf16 v{t + 1}, v{kc}, v43, 0")
        a(f"v_dot2_f32_bf16 v{t + 2}, v{kc + 1}, v40, 0")
        a(f"v_dot2_f32_bf16 v{t + 3}, v{kc + 1}, v43, 0")
        a(f"v_dot2_f32_bf16 v{t + 0}, v{kc + 1}, v41, v{t + 0}")
        a(f"v_dot2_f32_bf16 v{t + 1}, v{kc + 1}, v42, v{t + 1}")
        a(f"v_dot2_f32_bf16 v{t + 2}, v{kp}, v41, v{t + 2}")
        a(f"v_dot2_f32_bf16 v{t + 3}, v{kp}, v42, v{t + 3}")
        a(f"v_dot2_f32_bf16 v{t + 1}, v{kp}, v44, v{t + 1}")
        a(f"v_dot2_f32_bf16 v{t + 3}, v{kp + 1}, v44, v{t + 3}")
        a(f"v_lshlrev_b32 v{t + 4}, 16, v{vv}")
        a(f"v_and_b32 v{t + 5}, 0xffff0000, v{vv}")
        a(f"v_lshlrev_b32 v{t + 6}, 16, v{vv + 1}")
        a(f"v_and_b32 v{t + 7}, 0xffff0000, v{vv + 1}")
        a(f"v_mul_f32 v{t + 0}, v{t + 0}, v{t + 4}")
        a(f"v_mul_f32 v{t + 1}, v{t + 1}, v{t + 5}")
        a(f"v_mul_f32 v{t + 2}, v{t + 2}, v{t + 6}")
        a(f"v_mul_f32 v{t + 3}, v{t + 3}, v{t + 7}")
        a(f"v_cvt_pk_bf16_f32 v{t + 8}, v{t + 0}, v{t + 1}")
        a(f"v_cvt_pk_bf16_f32 v{t + 9}, v{t + 2}, v{t + 3}")
        a(f"ds_write_b64 v14, v[{t + 8}:{t + 9}] offset:{2560 + 16 * (3 - j)}")
    a("s_waitcnt lgkmcnt(4)")
    for j in range(4):
        a(f"ds_write_b64 v14, v[{54 + 2 * j}:{55 + 2 * j}] offset:{16 * (3 - j)}")
    a("s_waitcnt lgkmcnt(0)")
    for i in range(2):
        a(f"ds_read_b128 v[{18 + 4 * i}:{21 + 4 * i}], v15 offset:{2560 + 1280 * i}")
    for i in range(2):
        a(f"ds_read_b128 v[{26 + 4 * i}:{29 + 4 * i}], v15 offset:{1280 * i}")
    a(f"v_add_u32 v17, {640 * 4096}, v16")
    a("v_add_u32 v34, 65536, v17")
    a("v_add_u32 v35, 65536, v16")
    scout(a, None)
    a("s_waitcnt lgkmcnt(3)")
    a("buffer_store_dwordx4 v[18:21], v17, s[64:67], 0 offen")
    a("s_waitcnt lgkmcnt(2)")
    a("buffer_store_dwordx4 v[22:25], v34, s[64:67], 0 offen")
    a("s_waitcnt lgkmcnt(1)")
    a("buffer_store_dwordx4 v[26:29], v16, s[64:67], 0 offen")
    a("s_waitcnt lgkmcnt(0)")
    a("buffer_store_dwordx4 v[30:33], v35, s[64:67], 0 offen")
    if STAMP:
        stamp(a, 4)
        a("s_waitcnt vmcnt(0)")
        stamp(a, 5)
        stamp_flush(a, 6, 0)
    a("s_endpgm")


LOG2E = 0x3fb8aa3b
INV2PI = 0x3e22f983


def cmul(a, d, x, y, t):
    a(f"v_pk_mul_f32 v[{t}:{t + 1}], v[{x}:{x + 1}], v[{y}:{y + 1}] op_sel:[0,0] op_sel_hi:[0,1]")
    a(f"v_pk_fma_f32 v[{d}:{d + 1}], v[{x}:{x + 1}], v[{y}:{y + 1}], v[{t}:{t + 1}] op_sel:[1,1,0] op_sel_hi:[1,0,1] neg_lo:[0,1,0]")


KG_BUF = 4608
KG_WAVE = 2 * KG_BUF


def scout(a, entry):
    if OPT_SCOUT:
        a("s_cbranch_execz L_scout_ret")
        if entry:
            a.label("L_sc_" + entry)


def scout_entry(a, entry):
    if OPT_SCOUT:
        a.label("L_sc_" + entry)


def emit_kgen_issue(a):
    a.c("---- kgen waves: issue parameter loads as early as possible ----")
    a("s_sub_u32 s6, s3, 5")
    a("s_mul_i32 s7, s6, 43")
    a("s_lshr_b32 s7, s7, 7")
    a("s_mov_b32 s67, s7")
    a("s_mul_i32 s4, s7, 3")
    a("s_sub_u32 s4, s6, s4")
    a("s_lshr_b32 s5, s2, 1")
    a("s_mul_i32 s5, s5, 5")
    a("s_and_b32 s8, s2, 1")
    a("s_mul_i32 s9, s8, 3")
    a("s_add_u32 s5, s5, s9")
    a("s_add_u32 s5, s5, s7")
    a("s_lshr_b32 s9, s7, 1")
    a("s_and_b32 s9, s9, s8")
    a("s_cmp_eq_u32 s9, 1")
    a("s_cbranch_scc1 L_prep_exit")
    a("s_mul_i32 s9, s5, 384")
    a("s_lshl_b32 s7, s4, 7")
    a("s_add_u32 s9, s9, s7")
    a("v_lshl_add_u32 v3, v2, 1, s9")
    for r in range(10, 14):
        a(f"v_mov_b32 v{r}, 0")
    a("s_lshl_b32 s7, s5, 1")
    a("s_and_b32 s7, s7, 0xfffffffc")
    a("s_mov_b32 s50, 245760")
    a("s_mov_b32 s51, 0x00020000")
    a("s_mov_b32 s54, 245760")
    a("s_mov_b32 s55, 0x00020000")
    a("s_mov_b32 s58, 245760")
    a("s_mov_b32 s59, 0x00020000")
    a("s_mov_b32 s62, 245760")
    a("s_mov_b32 s63, 0x00020000")
    a("v_lshlrev_b32 v4, 2, v2")
    a(f"v_add_u32 v4, {KG_CNT}, v4")
    a("v_mov_b32 v5, 0")
    a("s_mov_b64 exec, 15")
    a("ds_write_b32 v4, v5")
    a("s_mov_b64 exec, -1")
    a("s_waitcnt lgkmcnt(0)")
    stamp(a, 1)
    for srd, p, dst in ((48, P_LOGA, 10), (52, P_AIM, 11), (56, P_CR, 12), (60, P_CI, 13)):
        a(f"s_mov_b32 s{srd}, s{p}")
        a(f"s_and_b32 s{srd + 1}, s{p + 1}, 0xffff")
        a(f"buffer_load_short_d16_hi v{dst}, v3, s[{srd}:{srd + 3}], 0 offen")
    a("s_barrier")
    a(f"s_load_dword s64, s[{P_LDT}:{P_LDT + 1}], s7")
    a(f"s_load_dword s65, s[{P_DSK}:{P_DSK + 1}], s7")
    if KGREP:
        a(f"s_mov_b32 s68, {KGREP}")
    a("s_branch L_kgen")


def emit_kgen(a):
    a.c("---- S4D kernel generation: 64 modes per wave ----")
    a(f"s_mul_i32 s8, s6, {KG_WAVE}")
    a(f"s_add_u32 s8, s8, {KG_OFF}")
    make_srd(a, 72, P_WS, WS_END)
    a("s_mov_b32 m0, s8")
    a("v_and_b32 v5, 15, v2")
    a("v_lshrrev_b32 v6, 4, v2")
    a("v_mul_u32_u24 v7, 288, v5")
    a("v_lshl_add_u32 v7, v6, 4, v7")
    a("v_add_u32 v7, s8, v7")
    a("v_lshlrev_b32 v8, 4, v2")
    a("v_add_u32 v9, s8, v8")
    a("v_lshlrev_b32 v60, 4, v5")
    a("v_add_u32 v60, s8, v60")
    a("v_and_b32 v61, 1, v6")
    a("v_lshrrev_b32 v62, 1, v6")
    a("v_lshl_add_u32 v56, v61, 3, v60")
    a("v_lshl_add_u32 v56, v62, 8, v56")
    a("v_lshl_add_u32 v57, v6, 8, v60")
    a("v_add_u32 v57, 512, v57")
    a("v_lshl_add_u32 v58, v6, 9, v60")
    a("v_cmp_gt_u32 vcc, 2, v6")
    a("v_mov_b32 v61, 8")
    a("v_mov_b32 v62, 4")
    a("v_cndmask_b32 v57, v58, v57, vcc")
    a("v_cndmask_b32 v61, v61, v62, vcc")
    a("v_add_u32 v58, v57, v61")
    a("v_mov_b32 v61, 256")
    a("v_mov_b32 v62, 8")
    a("v_cndmask_b32 v61, v61, v62, vcc")
    a("v_add_u32 v59, v57, v61")
    a("v_mov_b32 v61, 264")
    a("v_mov_b32 v62, 12")
    a("v_cndmask_b32 v61, v61, v62, vcc")
    a("v_add_u32 v124, v57, v61")
    a("v_lshl_add_u32 v61, v6, 10, v60")
    a("v_add_u32 v61, 2048, v61")
    a("v_lshlrev_b32 v62, 1, v2")
    a("v_add_u32 v62, s8, v62")
    a("v_add_u32 v62, 5120, v62")
    a("v_cndmask_b32 v126, v62, v61, vcc")
    a("v_cmp_gt_u32 vcc, 3, v6")
    a("s_nop 1")
    a("v_cndmask_b32 v125, v62, v61, vcc")
    a("v_and_b32 v60, 1, v2")
    a("v_cmp_eq_u32 vcc, 1, v60")
    a("v_mov_b32 v61, 0x05040100")
    a("v_mov_b32 v62, 0x05040504")
    a("v_cndmask_b32 v127, v61, v62, vcc")
    a("s_mul_i32 s6, s5, 4096")
    a(f"s_add_u32 s6, s6, {WS_KA}")
    a("v_add_u32 v63, s6, v8")
    a("s_mov_b32 s12, 0x01000100")
    a("s_mov_b32 s13, 0x05040100")
    a(f"s_mov_b32 s9, {LOG2E:#x}")
    a(f"s_mov_b32 s10, {INV2PI:#x}")
    (stamp(a, 2) if not KGREP else None)
    a("s_waitcnt lgkmcnt(0)")
    a("s_and_b32 s66, s5, 1")
    a("s_lshl_b32 s66, s66, 4")
    a("s_lshr_b32 s64, s64, s66")
    a("s_lshl_b32 s64, s64, 16")
    a("s_lshr_b32 s65, s65, s66")
    a("s_lshl_b32 s65, s65, 16")
    a("v_mov_b32 v14, s64")
    a("v_mov_b32 v15, s65")
    a("v_cmp_eq_u32 vcc, 0, v2")
    a("s_nop 1")
    a("v_cndmask_b32 v15, 0, v15, vcc")
    a("v_cmp_gt_u32 vcc, 32, v2")
    a("s_waitcnt vmcnt(0)")
    if KGREP:
        a("v_mov_b32 v56, v10")
        a("v_mov_b32 v57, v11")
        a("v_mov_b32 v58, v12")
        a("v_mov_b32 v59, v13")
        a.label("L_kg_again")
        a("v_mov_b32 v10, v56")
        a("v_mov_b32 v11, v57")
        a("v_mov_b32 v12, v58")
        a("v_mov_b32 v13, v59")
        a("v_mov_b32 v14, s64")
        a("s_cmp_eq_u32 s68, %d" % KGREP)
        a("s_cbranch_scc0 L_kg_n1")
        a("s_memrealtime s[86:87]")
        a("s_memtime s[88:89]")
        a.label("L_kg_n1")
        a("s_cmp_eq_u32 s68, %d" % (KGREP - 1))
        a("s_cbranch_scc0 L_kg_n2")
        a("s_memrealtime s[90:91]")
        a("s_memtime s[92:93]")
        a.label("L_kg_n2")
        a("s_cmp_eq_u32 s68, %d" % (KGREP - 2))
        a("s_cbranch_scc0 L_kg_n3")
        a("s_memrealtime s[94:95]")
        a("s_memtime s[96:97]")
        a.label("L_kg_n3")
    (stamp(a, 3) if not KGREP else None)
    a("s_setprio 0")
    scout_entry(a, "K0")
    a("v_mul_f32 v14, s9, v14")
    a("v_mul_f32 v10, s9, v10")
    a("v_exp_f32 v14, v14")
    a("v_exp_f32 v10, v10")
    a("s_nop 0")
    a("v_cvt_pk_bf16_f32 v14, v14, v10")
    a("v_and_b32 v10, 0xffff0000, v14")
    a("v_lshlrev_b32 v14, 16, v14")
    a("v_mul_f32 v10, v10, v14")
    a("v_mul_f32 v11, v11, v14")
    a("v_add_f32 v14, v14, v14")
    a("v_mul_f32 v16, v12, v14")
    a("v_mul_f32 v17, v13, v14")
    a("v_mul_f32 v10, s9, v10")
    a("v_sub_f32 v10, 0, v10")
    a("v_mul_f32 v11, s10, v11")
    def cexp(dst, scale):
        t0, t1, t2 = 24, 25, 26
        if scale == 1:
            a(f"v_mov_b32 v{t0}, v10")
            a(f"v_mov_b32 v{t1}, v11")
        else:
            a(f"v_mul_f32 v{t0}, {f32hex(scale)}, v10")
            a(f"v_mul_f32 v{t1}, {f32hex(scale)}, v11")
        a(f"v_rndne_f32 v{t2}, v{t1}")
        a(f"v_exp_f32 v{t0}, v{t0}")
        a(f"v_sub_f32 v{t1}, v{t1}, v{t2}")
        a(f"v_cos_f32 v{t2}, v{t1}")
        a(f"v_sin_f32 v{t1}, v{t1}")
        a("s_nop 0")
        a(f"v_mul_f32 v{dst}, v{t0}, v{t2}")
        a(f"v_mul_f32 v{dst + 1}, v{t0}, v{t1}")
    cexp(18, 1)
    cexp(20, 8)
    cexp(22, 128)
    E1, E8, E128, C2 = 18, 20, 22, 16
    TMP = [24, 26, 28, 30]
    R = [32 + 2 * j for j in range(8)]
    EJ, YB = 48, 50
    CV = [52, 53, 54, 55]
    def wr_row(src, buf, row, negim, cv):
        neg = "-" if negim else ""
        a(f"v_cvt_pk_bf16_f32 v{cv}, v{src}, {neg}v{src + 1}")
        a(f"ds_write_addtid_b32 v{cv} offset:{buf * KG_BUF + row * 288}")

    a("v_mov_b32 v52, 0x3f80")
    a("ds_write_addtid_b32 v52 offset:0")
    wr_row(E8, 0, 1, True, 53)
    a(f"v_mov_b32 v{R[0]}, v{C2}")
    a(f"v_mov_b32 v{R[0] + 1}, v{C2 + 1}")
    ycur = E8
    for b in range(2, 16):
        if b == 3:
            scout(a, "K1")
        if b == 10:
            scout(a, "K2")
        src = ycur
        cmul_y = (YB, src, E8, TMP[0])
        if b - 1 <= 7:
            j = b - 1
            a(f"v_pk_mul_f32 v[{TMP[0]}:{TMP[0] + 1}], v[{src}:{src + 1}], v[{E8}:{E8 + 1}] op_sel:[0,0] op_sel_hi:[0,1]")
            a(f"v_pk_mul_f32 v[{TMP[1]}:{TMP[1] + 1}], v[{R[j - 1]}:{R[j - 1] + 1}], v[{E1}:{E1 + 1}] op_sel:[0,0] op_sel_hi:[0,1]")
            a(f"v_pk_fma_f32 v[{YB}:{YB + 1}], v[{src}:{src + 1}], v[{E8}:{E8 + 1}], v[{TMP[0]}:{TMP[0] + 1}] op_sel:[1,1,0] op_sel_hi:[1,0,1] neg_lo:[0,1,0]")
            a(f"v_pk_fma_f32 v[{R[j]}:{R[j] + 1}], v[{R[j - 1]}:{R[j - 1] + 1}], v[{E1}:{E1 + 1}], v[{TMP[1]}:{TMP[1] + 1}] op_sel:[1,1,0] op_sel_hi:[1,0,1] neg_lo:[0,1,0]")
            wr_row(R[j - 1], 1, j - 1, False, 54)
        else:
            cmul(a, YB, src, E8, TMP[0])
            j = b - 9
            if j == 0:
                wr_row(R[7], 1, 7, False, 54)
            cmul(a, R[j], R[j], E128, TMP[1])
            wr_row(R[j], 1, 8 + j, False, 54)
        wr_row(YB, 0, b, True, 53)
        ycur = YB
    cmul(a, R[7], R[7], E128, TMP[1])
    wr_row(R[7], 1, 15, False, 54)
    scout(a, "K3")
    YOP, XOP, ACC = 64, 80, 96
    a("s_waitcnt lgkmcnt(0)")
    for ks in range(4):
        a(f"ds_read_b128 v[{YOP + 4 * ks}:{YOP + 4 * ks + 3}], v7 offset:{64 * ks}")
    for ks in range(4):
        a(f"ds_read_b128 v[{XOP + 4 * ks}:{XOP + 4 * ks + 3}], v7 offset:{KG_BUF + 64 * ks}")
    for idx, j in enumerate([0, 2, 4, 6]):
        cmul(a, R[j], R[j], E128, TMP[idx % 4])
    a("s_waitcnt lgkmcnt(4)")
    for idx, j in enumerate([0, 2, 4, 6]):
        wr_row(R[j], 0, idx, False, CV[idx])
    for idx, j in enumerate([0, 2, 4, 6]):
        cmul(a, R[j], R[j], E128, TMP[idx % 4])
    a("s_waitcnt lgkmcnt(4)")
    for ks in range(4):
        c = "0" if ks == 0 else f"v[{ACC}:{ACC + 3}]"
        a(f"v_mfma_f32_16x16x32_bf16 v[{ACC}:{ACC + 3}], v[{XOP + 4 * ks}:{XOP + 4 * ks + 3}], v[{YOP + 4 * ks}:{YOP + 4 * ks + 3}], {c}")
    for idx, j in enumerate([0, 2, 4, 6]):
        wr_row(R[j], 0, 4 + idx, False, CV[idx])
    scout(a, "K4")
    for aa in range(4):
        for idx, j in enumerate([0, 4]):
            cmul(a, R[j], R[j], E128, TMP[idx])
        for idx, j in enumerate([0, 4]):
            wr_row(R[j], 0, 8 + 2 * aa + idx, False, CV[(2 * aa + idx) % 4])
    for aa in range(9):
        cmul(a, R[0], R[0], E128, TMP[aa % 2])
        wr_row(R[0], 1, aa, False, CV[aa % 4])
    a("s_waitcnt lgkmcnt(9)")
    for ks in range(4):
        a(f"ds_read_b128 v[{XOP + 4 * ks}:{XOP + 4 * ks + 3}], v7 offset:{64 * ks}")
    a("s_waitcnt lgkmcnt(0)")
    for ks in range(4):
        c = "0" if ks == 0 else f"v[{ACC + 4}:{ACC + 7}]"
        a(f"v_mfma_f32_16x16x32_bf16 v[{ACC + 4}:{ACC + 7}], v[{XOP + 4 * ks}:{XOP + 4 * ks + 3}], v[{YOP + 4 * ks}:{YOP + 4 * ks + 3}], {c}")
    XO2 = 108
    for ks in range(4):
        a(f"ds_read_b128 v[{XO2 + 4 * ks}:{XO2 + 4 * ks + 3}], v7 offset:{KG_BUF + 64 * ks}")
    a("s_waitcnt lgkmcnt(0)")
    for ks in range(4):
        c = "0" if ks == 0 else f"v[{ACC + 8}:{ACC + 11}]"
        a(f"v_mfma_f32_16x16x32_bf16 v[{ACC + 8}:{ACC + 11}], v[{XO2 + 4 * ks}:{XO2 + 4 * ks + 3}], v[{YOP + 4 * ks}:{YOP + 4 * ks + 3}], {c}")
    if KGREP:
        a("s_nop 7")
        a("s_nop 7")
        a("s_sub_u32 s68, s68, 1")
        a("s_cmp_gt_u32 s68, 0")
        a("s_cbranch_scc1 L_kg_again")
        a("s_memrealtime s[98:99]")
    scout(a, None)
    a("s_nop 7")
    a("s_nop 1")
    done = a.newlabel("kg_w0")
    a("s_cmp_eq_u32 s4, 0")
    a(f"s_cbranch_scc1 {done}")
    for t in range(3):
        a(f"ds_write_b128 v9, v[{ACC + 4 * t}:{ACC + 4 * t + 3}] offset:{1024 * t}")
    a("s_lshl_b32 s15, s67, 2")
    a(f"s_add_u32 s15, s15, {KG_CNT}")
    a("v_mov_b32 v10, s15")
    a("v_mov_b32 v11, 1")
    a("s_waitcnt lgkmcnt(0)")
    lds_signal(a, 10, 11)
    if STAMP:
        (stamp(a, 4) if not KGREP else None)
        (stamp(a, 5) if not KGREP else None)
        stamp_flush(a, 8, 0)
    a("s_endpgm")
    a.label(done)
    a("s_lshl_b32 s15, s67, 2")
    a(f"s_add_u32 s15, s15, {KG_CNT}")
    a("v_mov_b32 v10, s15")
    lds_wait_count(a, 10, 11, 14, 2, "kg_spin")
    (stamp(a, 4) if not KGREP else None)
    scout_entry(a, "F0")
    for wv in (1, 2):
        for t in range(3):
            a(f"ds_read_b128 v[{32 + 12 * (wv - 1) + 4 * t}:{35 + 12 * (wv - 1) + 4 * t}], v9 offset:{wv * KG_WAVE + 1024 * t}")
    a("s_waitcnt lgkmcnt(0)")
    for i in range(12):
        a(f"v_add_f32 v{ACC + i}, v{ACC + i}, v{32 + i}")
    for i in range(12):
        a(f"v_add_f32 v{ACC + i}, v{ACC + i}, v{44 + i}")
    a(f"v_add_f32 v{ACC}, v{ACC}, v15")
    for i in range(6):
        a(f"v_cvt_pk_bf16_f32 v{56 + i - 24}, v{ACC + 2 * i}, v{ACC + 2 * i + 1}")
    scout(a, "F1")
    a("ds_write_b16 v56, v32 offset:0")
    a("ds_write_b16_d16_hi v56, v32 offset:2")
    a("ds_write_b16 v56, v33 offset:4")
    a("ds_write_b16_d16_hi v56, v33 offset:6")
    a("ds_write_b16 v57, v34")
    a("ds_write_b16_d16_hi v58, v34")
    a("ds_write_b16 v59, v35")
    a("ds_write_b16_d16_hi v124, v35")
    a("ds_write_b16 v125, v36 offset:0")
    a("ds_write_b16_d16_hi v126, v36 offset:256")
    a("ds_write_b16 v126, v37 offset:512")
    a("ds_write_b16_d16_hi v126, v37 offset:768")
    a("s_waitcnt lgkmcnt(0)")
    SL = [40, 48, 64, 70]
    for s in range(4):
        a(f"ds_read_b128 v[{SL[s]}:{SL[s] + 3}], v9 offset:{1024 * s}")
        a(f"ds_read_b32 v{SL[s] + 4}, v9 offset:{1024 * s + 16}")
    a("s_waitcnt lgkmcnt(0)")
    def perm(d, s0, s1, sel):
        a(f"v_perm_b32 v{d}, v{s0}, v{s1}, {sel}")
    perm(76, 40, 40, "s12"); perm(77, 42, 41, "s13"); perm(78, 42, 42, "s12"); perm(79, 44, 43, "s13")
    for i in range(4):
        a(f"v_cndmask_b32 v{76 + i}, v{76 + i}, v{40 + i}, vcc")
    perm(80, 48, 48, "s12"); perm(81, 50, 48, "s13"); perm(82, 50, 50, "s12"); perm(83, 52, 52, "s12")
    for s_, o in ((2, 84), (3, 88)):
        d0, d4 = SL[s_], SL[s_] + 4
        perm(o, d0, d0, "s12"); perm(o + 1, d0, d0, "s12"); perm(o + 2, d4, d0, "v127"); perm(o + 3, d4, d4, "s12")
    scout(a, None)
    for s_, o in ((0, 76), (1, 80), (2, 84), (3, 88)):
        a(f"buffer_store_dwordx4 v[{o}:{o + 3}], v63, s[72:75], 0 offen offset:{1024 * s_}")
    if STAMP:
        a("s_waitcnt vmcnt(0)")
        (stamp(a, 5) if not KGREP else None)
        stamp_flush(a, 8, 0)
    a("s_endpgm")


def f32hex(x):
    import struct
    return hex(struct.unpack("<I", struct.pack("<f", float(x)))[0])


def emit_prep(a):
    k = "prep_kernel"
    a.raw(f".globl {k}")
    a.raw(".p2align 8")
    a.raw(f".type {k},@function")
    a.label(k)
    a("s_cmp_ge_u32 s2, 256")
    a("s_cbranch_scc1 L_prep_exit")
    stamp(a, 0)
    load_kernargs(a)
    code_prefetch(a, "L_prep_exit", 120, 121)
    a("v_lshrrev_b32 v1, 6, v0")
    a("v_and_b32 v2, 63, v0")
    a("s_nop 0")
    a("v_readfirstlane_b32 s3, v1")
    a("s_nop 0")
    a("s_cmp_lt_u32 s3, 5")
    a("s_cbranch_scc1 L_tile")
    if NOKGEN:
        a("s_endpgm")
    a("s_setprio 3")
    emit_kgen_issue(a)
    a.label("L_tile")
    emit_tilewave(a)
    a.label("L_kgen")
    emit_kgen(a)
    a.label("L_prep_exit")
    a("s_endpgm")


class Lay:
    def __init__(self, name, half, tiles, jobs):
        self.name = name
        self.half = half
        self.tiles = list(tiles)
        self.jobs = jobs
        self.nslot = 8 * jobs
        self.ubytes = 2048 if half else 4096
        self.UP = self.ubytes + 512
        self.PO = self.ubytes + 64
        self.KP = 2 * self.PO
        self.YP = 2112
        self.U0 = 0
        self.K0 = self.nslot * self.UP
        self.Y0 = self.K0 + self.nslot * self.KP
        self.end = self.Y0 + self.nslot * self.YP
        self.nd = self.ubytes // 1024


T1 = Lay("T1", False, range(4, 8), 1)
T2 = Lay("T2", True, range(0, 4), 2)
K2_LDS = max(T1.end, T2.end)
assert T1.K0 % 128 == 0 and T1.KP % 128 == 0 and T1.PO % 128 == 64
assert T2.K0 % 128 == 0 and T2.KP % 128 == 0 and T2.PO % 128 == 64

V_U, V_KB, V_YW, V_TR, V_OUT, V_Q, V_L16, V_T0, V_T1 = 4, 5, 9, 10, 11, 12, 13, 14, 15
V_ACC = 16
V_B = 48
V_QD = 80
V_E = 88
V_K0 = 2


class Stream:
    def __init__(self, a, max_out=14):
        self.a = a
        self.q = []
        self.n = 0
        self.max_out = max_out
        self.done = set()

    def ins(self, txt):
        self.a(txt)
        self.n += 1

    def lds(self, txt, tag):
        if len(self.q) >= self.max_out:
            keep = self.max_out - 1
            self._wait(keep)
        self.ins(txt)
        self.q.append(tag)

    def _wait(self, keep):
        if len(self.q) > keep:
            self.ins(f"s_waitcnt lgkmcnt({keep})")
            for t in self.q[:len(self.q) - keep]:
                self.done.add(t)
            self.q = self.q[len(self.q) - keep:]

    def need(self, tags):
        last = -1
        for i, t in enumerate(self.q):
            if t in tags:
                last = i
        if last >= 0:
            self._wait(len(self.q) - 1 - last)

    def pad_since(self, n0, states):
        k = states - (self.n - n0)
        while k > 0:
            c = min(k, 16)
            self.ins(f"s_nop {c - 1}")
            self.n += c - 1
            k -= c


def emit_conv_body(a, T):
    J = T.jobs
    a("s_lshl_b32 s8, s5, 3")
    a("s_add_u32 s8, s8, s3")
    a("s_mul_i32 s9, s4, 640")
    a("s_add_u32 s9, s9, s8")
    a("s_lshl_b32 s10, s8, 12")
    a("s_lshl_b32 s13, s9, 12")
    if T.half:
        a("s_add_u32 s13, s13, 2048")
    a(f"s_mul_i32 s70, s3, {T.UP}")
    a(f"s_mul_i32 s71, s3, {T.KP}")
    a(f"s_add_u32 s71, s71, {T.K0}")
    a(f"v_lshlrev_b32 v{V_L16}, 4, v1")
    a("s_waitcnt lgkmcnt(0)")
    stamp(a, 1, True)
    make_srd(a, 48, P_WS, WS_KA)
    a(f"s_add_u32 s6, s{P_WS}, {WS_KA}")
    a(f"s_addc_u32 s7, s{P_WS + 1}, 0")
    a("s_cmp_eq_u32 s4, 1")
    a(f"s_cselect_b32 s6, s{P_SSK}, s6")
    a(f"s_cselect_b32 s7, s{P_SSK + 1}, s7")
    a("s_mov_b32 s52, s6")
    a("s_and_b32 s53, s7, 0xffff")
    a(f"s_mov_b32 s54, {640 * 4096}")
    a("s_mov_b32 s55, 0x00020000")

    def dma_one(job, kind, kk):
        if kind == "U":
            src, srd, dst = f"s_add_u32 s15, s13, {job * 32768}", "s[48:51]", f"s_add_u32 m0, s70, {job * 8 * T.UP}"
        elif kind == "E":
            src, srd, dst = f"s_add_u32 s15, s10, {job * 32768}", "s[52:55]", f"s_add_u32 m0, s71, {job * 8 * T.KP + 32}"
        else:
            src, srd, dst = f"s_add_u32 s15, s10, {job * 32768 + 2}", "s[52:55]", f"s_add_u32 m0, s71, {job * 8 * T.KP + T.PO + 32}"
        return [src, dst, "s_nop 0", f"buffer_load_dwordx4 v{V_L16}, {srd}, s15 offen offset:{1024 * kk} lds"]

    if not T.half:
        order = [("U", 3), ("E", 3), ("O", 3), ("E", 2), ("O", 2), ("E", 1), ("O", 1), ("U", 2), ("E", 0), ("O", 0), ("U", 1), ("U", 0)]
        nfirst = 7
    else:
        order = [("U", 1), ("E", 1), ("O", 1), ("E", 0), ("O", 0), ("U", 0)]
        nfirst = 5
    vm = []
    for kind, kk in order[:nfirst]:
        for ln in dma_one(0, kind, kk):
            a(ln)
        vm.append(("dma", 0, kind, kk))
    stamp(a, 2, True)
    for j in range(J):
        a(f"s_add_u32 s14, s10, {j * 32768}")
        a(f"s_load_dword s{72 + j}, s[6:7], s14")
    a("s_lshl_b32 s11, s8, 1")
    a("s_and_b32 s11, s11, 0xfffffffc")
    for j in range(J):
        a(f"s_add_u32 s14, s11, {16 * j}")
        a(f"s_load_dword s{76 + j}, s[{P_SSD}:{P_SSD + 1}], s14")
    make_srd(a, 56, P_Q, TENS)
    make_srd(a, 60, P_OUT, L * 2560)
    a("s_cmp_eq_u32 s4, 1")
    a(f"s_cselect_b32 s58, {TENS}, 0")
    a("v_and_b32 v88, 15, v1")
    a("v_lshrrev_b32 v89, 4, v1")
    a("s_and_b32 s12, s3, 3")
    a("s_lshl_b32 s14, s12, 6")
    a("v_add_u32 v90, s14, v1")
    a(f"v_mul_u32_u24 v{V_Q}, 1280, v90")
    a("s_lshl_b32 s11, s5, 4")
    a(f"v_add_u32 v{V_Q}, s11, v{V_Q}")
    a(f"v_mul_u32_u24 v{V_OUT}, 2560, v90")
    a("s_mul_i32 s14, s4, 1280")
    a("s_add_u32 s14, s14, s11")
    a(f"v_add_u32 v{V_OUT}, s14, v{V_OUT}")
    a("v_lshlrev_b32 v90, 5, v88")
    a("v_lshlrev_b32 v91, 4, v89")
    a("v_sub_u32 v90, v91, v90")
    a("s_add_u32 s14, s70, 480")
    a(f"v_add_u32 v{V_U}, s14, v90")
    a("v_add_u32 v90, 1, v88")
    a("v_and_b32 v91, 1, v90")
    a("v_lshl_add_u32 v90, v89, 3, v90")
    a("v_lshrrev_b32 v90, 1, v90")
    a("v_lshlrev_b32 v90, 2, v90")
    a(f"v_mul_u32_u24 v91, {T.PO}, v91")
    a("v_add_u32 v90, v90, v91")
    a(f"v_add_u32 v{V_KB}, s71, v90")
    nkb = 2 if T.half else 4
    for kk in range(1, nkb):
        a(f"v_add_u32 v{V_KB + kk}, {1024 * kk}, v{V_KB}")
    if T.half:
        for kk in range(2):
            a(f"v_add_u32 v{V_KB + 2 + kk}, {8 * T.KP + 1024 * kk}, v{V_KB}")
    a(f"s_mul_i32 s14, s3, {T.YP}")
    a(f"s_add_u32 s14, s14, {T.Y0}")
    a("v_lshlrev_b32 v90, 5, v88")
    a("v_lshl_add_u32 v90, v89, 3, v90")
    a(f"v_add_u32 v{V_YW}, s14, v90")
    a("v_bfe_u32 v90, v1, 2, 2")
    a(f"v_mul_u32_u24 v90, {T.YP}, v90")
    a("v_and_b32 v91, 3, v1")
    a("v_lshl_add_u32 v90, v91, 3, v90")
    a("v_lshl_add_u32 v90, v89, 5, v90")
    a("s_lshl_b32 s14, s12, 7")
    a(f"s_add_u32 s14, s14, {T.Y0}")
    a(f"v_add_u32 v{V_TR}, s14, v90")
    a(f"s_add_u32 s14, s70, {T.ubytes}")
    a("v_lshl_add_u32 v90, v1, 4, s14")
    a(f"s_sub_u32 s14, s71, {30 * 16}")
    a("v_lshl_add_u32 v91, v1, 4, s14")
    a(f"s_add_u32 s14, s71, {T.PO - 32 * 16}")
    a("v_lshl_add_u32 v92, v1, 4, s14")
    a("v_cmp_gt_u32 vcc, 32, v1")
    a(f"v_mov_b32 v93, {8 * T.KP}")
    a(f"v_mov_b32 v94, {8 * T.UP}")
    a("v_cndmask_b32 v91, v92, v91, vcc")
    a("v_cmp_gt_u32 vcc, 30, v1")
    for r in range(80, 84):
        a(f"v_mov_b32 v{r}, 0")
    a("v_cndmask_b32 v90, v91, v90, vcc")
    a("v_cndmask_b32 v93, v93, v94, vcc")
    a("s_mov_b32 exec_hi, 3")
    for j in range(J):
        a("ds_write_b128 v90, v[80:83]")
        if j + 1 < J:
            a("v_add_u32 v90, v90, v93")
    a("s_mov_b64 exec, -1")
    a("s_waitcnt lgkmcnt(0)")
    a("s_and_b32 s14, s8, 1")
    a("s_lshl_b32 s14, s14, 4")
    for j in range(J):
        a(f"s_lshl_b32 s{72 + j}, s{72 + j}, 16")
        a(f"s_lshr_b32 s{76 + j}, s{76 + j}, s14")
        a(f"s_lshl_b32 s{76 + j}, s{76 + j}, 16")
    a("s_cmp_eq_u32 s4, 1")
    for j in range(J):
        a(f"s_cselect_b32 s{76 + j}, s{76 + j}, 0")
    for j in range(J):
        a(f"v_mov_b32 v{V_K0 + j}, s{72 + j}")
        a(f"v_add_f32 v{V_K0 + j}, s{76 + j}, v{V_K0 + j}")
        a(f"v_cvt_pk_bf16_f32 v{V_K0 + j}, v{V_K0 + j}, v{V_K0 + j}")
    a(f"v_mov_b32 v{V_T0}, s71")
    lowp = a.newlabel("lowprio")
    a("s_cmp_ge_u32 s3, 4")
    a(f"s_cbranch_scc1 {lowp}")
    a("s_setprio 1")
    a.label(lowp)

    st = Stream(a)

    def patch(j):
        st.lds(f"ds_write_b16 v{V_T0}, v{V_K0 + j} offset:{j * 8 * T.KP + 32}", ("patch", j, 0))
        st.lds(f"ds_write_b16 v{V_T0}, v{V_K0 + j} offset:{j * 8 * T.KP + T.PO + 30}", ("patch", j, 1))

    tiles = T.tiles
    nlo, nhi = tiles[0], tiles[-1]

    def phys(j, cp):
        if not T.half:
            return cp % 5
        return cp if j == 0 else (cp + 1)

    mf = []
    seen = set()
    for j in range(J):
        for m in range(0, nhi + 1):
            for r in range(8):
                for n in range(nhi, max(m, nlo) - 1, -1):
                    cp = n - m
                    first = (j, n) not in seen
                    seen.add((j, n))
                    mf.append(dict(rd=j, m=m, r=r, n=n, cp=cp, c=8 * cp + r, aslot=8 * phys(j, cp) + r, bslot=r,
                                   first=first, atag=("A", j, 8 * cp + r), btag=("B", j, m, r)))
    nM = len(mf)
    loads = []
    have = set()
    last_use_a, last_use_b = {}, {}
    for i, x in enumerate(mf):
        if x['btag'] not in have:
            have.add(x['btag'])
            loads.append(dict(tag=x['btag'], kind='B', need=i, free=last_use_b.get(x['bslot'], -1), x=x))
        if x['atag'] not in have:
            have.add(x['atag'])
            loads.append(dict(tag=x['atag'], kind='A', need=i, free=last_use_a.get(x['aslot'], -1), x=x))
        last_use_a[x['aslot']] = i
        last_use_b[x['bslot']] = i
    first_idx = {}
    for i, x in enumerate(mf):
        first_idx.setdefault(x['rd'], i)

    uoff0 = 1536 if T.half else 3584

    def src_pieces(ld):
        x = ld['x']
        j = x['rd']
        if ld['kind'] == 'B':
            gamma = 8 * x['m'] - x['r']
            lo = uoff0 - 64 * gamma
            hi = lo + 528 + 16
            return {("dma", j, "U", k_) for k_ in range(T.nd) if lo < 1024 * (k_ + 1) and hi > 1024 * k_}
        c = x['c']
        lo = 64 * c - 32
        hi = 64 * c + 96
        out = set()
        for k_ in range(T.nd):
            if lo < 1024 * (k_ + 1) and hi > 1024 * k_:
                out |= {("dma", j, "E", k_), ("dma", j, "O", k_)}
        if c == 0:
            out.add(("patched", j))
        return out

    landed = set()

    def vwait(tags):
        idx = [i for i, t in enumerate(vm) if t in tags and t not in landed]
        if not idx:
            return
        last = max(idx)
        keep = len(vm) - 1 - last
        st.ins(f"s_waitcnt vmcnt({keep})")
        for t in vm[:last + 1]:
            landed.add(t)

    def ensure(ld):
        need = src_pieces(ld)
        j = ld['x']['rd']
        if ("patched", j) in need:
            need.discard(("patched", j))
            if ("patched", j) not in landed:
                vwait({("dma", j, "E", 0)})
                patch(j)
                landed.add(("patched", j))
        for t in need:
            assert t in vm, ("DMA piece not issued before use", t, ld['x'])
        vwait(need)

    def available(ld):
        need = src_pieces(ld)
        for t in need:
            if t[0] == "patched":
                continue
            if t not in vm:
                return False
        return True

    def emit_load(ld):
        x = ld['x']
        j = x['rd']
        ensure(ld)
        if ld['kind'] == 'B':
            gamma = 8 * x['m'] - x['r']
            off = uoff0 - 64 * gamma + j * 8 * T.UP
            d = V_B + 4 * x['bslot']
            st.lds(f"ds_read_b128 v[{d}:{d + 3}], v{V_U} offset:{off}", ld['tag'])
        else:
            c = x['c']
            base = V_KB + (c >> 4) + (2 * j if T.half else 0)
            o = 16 * (c & 15)
            d = 4 * x['aslot']
            st.lds(f"ds_read2_b32 a[{d}:{d + 1}], v{base} offset0:{o} offset1:{o + 1}", (ld['tag'], 0))
            st.lds(f"ds_read2_b32 a[{d + 2}:{d + 3}], v{base} offset0:{o + 2} offset1:{o + 3}", ld['tag'])

    aux = {}

    def add_aux(i, fn):
        aux.setdefault(min(i, nM), []).append(fn)

    def acc_base(j):
        return V_ACC + 16 * (j & 1)
    last_of_tile = {}
    for i, x in enumerate(mf):
        last_of_tile[(x['rd'], x['n'])] = i
    mf_pos = {}

    def vmem(lines, tag):
        for ln in lines:
            st.ins(ln)
        vm.append(tag)

    def epi1(j, n):
        def fn():
            i = last_of_tile[(j, n)]
            st.pad_since(mf_pos[i], 8)
            ab = acc_base(j) + 4 * (n - nlo)
            st.ins(f"v_cvt_pk_bf16_f32 v{V_E + 4}, v{ab}, v{ab + 1}")
            st.ins(f"v_cvt_pk_bf16_f32 v{V_E + 5}, v{ab + 2}, v{ab + 3}")
            st.lds(f"ds_write_b64 v{V_YW}, v[{V_E + 4}:{V_E + 5}] offset:{j * 8 * T.YP + 512 * (n - nlo)}", ("Y", j, n))
        return fn

    def epi2(j, n):
        def fn():
            st.need({("Y", j, n)})
            st.ins("s_barrier")
            skip = a.newlabel("noepi")
            grp = (n - nlo) & 1
            st.ins("s_cmp_ge_u32 s3, 4")
            st.ins(f"s_cbranch_scc{0 if grp else 1} {skip}")
            o = j * 8 * T.YP + 512 * (n - nlo)
            t = V_E
            a(f"ds_read_b64_tr_b16 v[{t}:{t + 1}], v{V_TR} offset:{o}")
            a(f"ds_read_b64_tr_b16 v[{t + 2}:{t + 3}], v{V_TR} offset:{o + 4 * T.YP}")
            qi = (n - nlo) >> 1
            qb = V_QD + 4 * qi
            a(f"s_waitcnt vmcnt({QKEEP[(j, n)]})")
            a("s_waitcnt lgkmcnt(0)")
            nq = a.newlabel("noq")
            a("s_cmp_eq_u32 s4, 0")
            a(f"s_cbranch_scc1 {nq}")
            u = V_E + 4
            for i2 in range(4):
                a(f"v_lshlrev_b32 v{u}, 16, v{t + i2}")
                a(f"v_and_b32 v{u + 1}, 0xffff0000, v{t + i2}")
                a(f"v_lshlrev_b32 v{u + 2}, 16, v{qb + i2}")
                a(f"v_and_b32 v{u + 3}, 0xffff0000, v{qb + i2}")
                a(f"v_mul_f32 v{u}, v{u}, v{u + 2}")
                a(f"v_mul_f32 v{u + 1}, v{u + 1}, v{u + 3}")
                a(f"v_cvt_pk_bf16_f32 v{t + i2}, v{u}, v{u + 1}")
            a.label(nq)
            a(f"s_mov_b32 s68, {n * 256 * 2560 + j * 16}")
            a(f"buffer_store_dwordx4 v[{t}:{t + 3}], v{V_OUT}, s[60:63], s68 offen")
            a.label(skip)
        return fn

    QKEEP = {}
    return_state = None

    for k_, (kind, kk) in enumerate(order[nfirst:]):
        add_aux(1 + 3 * k_, (lambda kind, kk: (lambda: vmem(dma_one(0, kind, kk), ("dma", 0, kind, kk))))(kind, kk))
    rest0 = len(order) - nfirst
    for j in range(1, J):
        start = first_idx[j - 1] + 6
        for k_, (kind, kk) in enumerate(order):
            add_aux(start + 5 * k_, (lambda j, kind, kk: (lambda: vmem(dma_one(j, kind, kk), ("dma", j, kind, kk))))(j, kind, kk))
    a_q = []
    for j in range(J):
        for qi in range(2):
            if j == 0:
                at = first_idx[0] + 2 + 3 * rest0 + 4 * qi
            else:
                at = last_of_tile[(j - 1, nlo + 2 * qi + 1)] + 1 + 11

            def mkq(j, qi):
                def fn():
                    st.ins(f"s_lshr_b32 s14, s3, 2")
                    st.ins(f"s_mul_i32 s14, s14, {256 * 1280}")
                    st.ins(f"s_add_u32 s14, s14, {(nlo + 2 * qi) * 256 * 1280 + j * 16}")
                    vmem([f"buffer_load_dwordx4 v[{V_QD + 4 * qi}:{V_QD + 4 * qi + 3}], v{V_Q}, s[56:59], s14 offen"], ("q", j, qi))
                return fn
            add_aux(at, mkq(j, qi))

    def mk_epi2(j, n):
        def fn():
            qi = (n - nlo) >> 1
            idx = vm.index(("q", j, qi))
            younger = len(vm) - 1 - idx
            QKEEP[(j, n)] = younger
            epi2(j, n)()
        return fn

    for j in range(J):
        for n in tiles:
            i = last_of_tile[(j, n)]
            add_aux(i + 1 + 4, epi1(j, n))
            add_aux(i + 1 + 10, mk_epi2(j, n))

    stamp(a, 4, True)
    qa = [ld for ld in loads if ld['kind'] == 'A']
    qb = [ld for ld in loads if ld['kind'] == 'B']
    issued = set()

    def next_free(q, i):
        for ld in q:
            if id(ld) in issued:
                continue
            if ld['free'] < i and available(ld):
                if all((t in landed or t[0] == "patched" or ld['need'] - i < 24 or LANDED_HINT(t, i)) for t in src_pieces(ld)):
                    return ld
        return None

    def LANDED_HINT(t, i):
        return t in issue_at and i - issue_at[t] > 40

    issue_at = {}
    for j in range(1, J):
        for k_, (kind, kk) in enumerate(order):
            issue_at[("dma", j, kind, kk)] = first_idx[j - 1] + 6 + 5 * k_
    for k_, (kind, kk) in enumerate(order):
        issue_at[("dma", 0, kind, kk)] = -60 if k_ < nfirst else 1 + 3 * (k_ - nfirst) - 20

    def issue_loads(i, budget):
        cnt = 0
        while cnt < budget:
            cb_ = next_free(qb, i) if len(st.q) + 1 <= st.max_out else None
            ca_ = next_free(qa, i) if len(st.q) + 2 <= st.max_out else None
            cand = None
            if cb_ is not None and (ca_ is None or cb_['need'] <= ca_['need']):
                cand = cb_
            elif ca_ is not None:
                cand = ca_
            if cand is None:
                break
            emit_load(cand)
            issued.add(id(cand))
            cnt += 2 if cand['kind'] == 'A' else 1

    first = True
    for i, x in enumerate(mf):
        if STAMP and STEPSTAMP < 0 and i == 64:
            stamp(a, 6, True)
        if STAMP and STEPSTAMP >= 0 and x['rd'] == STEPSTAMP and x['r'] == 0 and (i == 0 or mf[i - 1]['m'] != x['m'] or mf[i - 1]['rd'] != x['rd']):
            a(f"s_memtime s[{ST0 + 2 * x['m']}:{ST0 + 2 * x['m'] + 1}]")
        for fn in aux.get(i, []):
            fn()
        for q_ in (qb, qa):
            for ld in q_:
                if ld['need'] <= i and id(ld) not in issued:
                    emit_load(ld)
                    issued.add(id(ld))
        if first:
            stamp(a, 5, True)
            first = False
        issue_loads(i, 4 if x['m'] == 0 else 2)
        st.need({x['atag'], x['btag']})
        ab = acc_base(x['rd']) + 4 * (x['n'] - nlo)
        src_c = "0" if x['first'] else f"v[{ab}:{ab + 3}]"
        bs = V_B + 4 * x['bslot']
        st.ins(f"v_mfma_f32_16x16x32_bf16 v[{ab}:{ab + 3}], a[{4 * x['aslot']}:{4 * x['aslot'] + 3}], v[{bs}:{bs + 3}], {src_c}")
        mf_pos[i] = st.n
    stamp(a, 7, True)
    for fn in aux.get(nM, []):
        fn()
    if STAMP:
        stamp_flush(a, 8, 1)
    a("s_endpgm")


def emit_conv(a):
    k = "conv_kernel"
    a.raw(f".globl {k}")
    a.raw(".p2align 8")
    a.raw(f".type {k},@function")
    a.label(k)
    a("s_cmp_ge_u32 s2, 240")
    a("s_cbranch_scc1 L_conv_exit")
    stamp(a, 0, True)
    load_kernargs(a)
    code_prefetch(a, "L_conv_exit", 94, 95)
    a("v_lshrrev_b32 v2, 6, v0")
    a("v_and_b32 v1, 63, v0")
    a("s_and_b32 s6, s2, 7")
    a("v_readfirstlane_b32 s3, v2")
    a("s_lshr_b32 s7, s2, 3")
    a("s_mul_i32 s5, s6, 10")
    a("s_cmp_ge_u32 s7, 20")
    a("s_cbranch_scc1 L_T2")
    a("s_cmp_ge_u32 s7, 10")
    a("s_cselect_b32 s4, 1, 0")
    a("s_mul_i32 s8, s4, 10")
    a("s_sub_u32 s7, s7, s8")
    a("s_add_u32 s5, s5, s7")
    emit_conv_body(a, T1)
    a.label("L_T2")
    a("s_sub_u32 s7, s7, 20")
    a("s_cmp_ge_u32 s7, 5")
    a("s_cselect_b32 s4, 1, 0")
    a("s_mul_i32 s8, s4, 5")
    a("s_sub_u32 s7, s7, s8")
    a("s_lshl_b32 s7, s7, 1")
    a("s_add_u32 s5, s5, s7")
    emit_conv_body(a, T2)
    a.label("L_conv_exit")
    a("s_endpgm")


def kd(name, vgpr, sgpr, accum):
    return f""".amdhsa_kernel {name}
  .amdhsa_next_free_vgpr {vgpr}
  .amdhsa_next_free_sgpr {sgpr}
  .amdhsa_accum_offset {accum}
  .amdhsa_group_segment_fixed_size 0
  .amdhsa_kernarg_size 128
  .amdhsa_user_sgpr_count 2
  .amdhsa_user_sgpr_kernarg_segment_ptr 1
  .amdhsa_system_sgpr_workgroup_id_x 1
.end_amdhsa_kernel
"""


HEADER = open("cdna_kernels/" + NAME + ".s.ref").read().split("; Override launch geometry")[0]


def build():
    a = Asm()
    a.raw(HEADER.rstrip("\n"))
    a.raw(f"; @launch kernel=prep_kernel grid=(256,1,1) block=(896,1,1) lds={K1_LDS}")
    a.raw(f"; @launch kernel=conv_kernel grid=(240,1,1) block=(512,1,1) lds={K2_LDS}")
    a.raw('.amdgcn_target "amdgcn-amd-amdhsa--gfx950"')
    a.raw(".text")
    emit_prep(a)
    emit_conv(a)
    a.raw('.section .rodata,"a"')
    a.raw(".p2align 6")
    a.raw(kd("prep_kernel", 128, 102 if STAMP else 80, 128))
    a.raw(".p2align 6")
    a.raw(kd("conv_kernel", 256, 102 if STAMP else 80, 96))
    return a.text()


if __name__ == "__main__":
    out = sys.argv[1] if len(sys.argv) > 1 else "cdna_kernels/" + NAME + ".s"
    open(out, "w").write(build())
    print("wrote", out)
```

```python
import sys

NAME = "concat_heads__ssm_conv_s4d__ssm_conv_h3__prompt"

L = 2048
D = 640
NM = 192
ROWB = 1280
TENS = L * ROWB

WS_UT = 0
WS_KA = 1280 * 4096
WS_QT = WS_KA + 640 * 4096
WS_END = WS_QT + 640 * 4096

P_U, P_LOGA, P_AIM, P_CR, P_CI, P_LDT, P_DSK, P_Q, P_K, P_V, P_SHK, P_SSK, P_SSD, P_OUT, P_DBG, P_WS = [16 + 2 * i for i in range(16)]


import os
STAMP = bool(int(os.environ.get("STAMP", "0")))
STEPSTAMP = int(os.environ.get("STEPSTAMP", "-1"))
OPT_PRIO = int(os.environ.get("OPT_PRIO", "0"))
OPT_YLATE = int(os.environ.get("OPT_YLATE", "1"))
EPI_T2 = int(os.environ.get("EPI_T2", "60"))
EPI_T2_STEP = int(os.environ.get("EPI_T2_STEP", "10"))
OPT_NOUT = int(os.environ.get("OPT_NOUT", "1"))
OPT_SC1 = int(os.environ.get("OPT_SC1", "0"))
OPT_SKEW = int(os.environ.get("OPT_SKEW", "1"))
OPT_CPF = int(os.environ.get("OPT_CPF", "1"))
OPT_MPF = int(os.environ.get("OPT_MPF", "1"))
OPT_XMAP = int(os.environ.get("OPT_XMAP", "0"))
OPT_SCOUT = int(os.environ.get("OPT_SCOUT", "0"))
KGREP = int(os.environ.get("KGREP", "0"))
NOKGEN = int(os.environ.get("NOKGEN", "0"))
OPT_PF = int(os.environ.get("OPT_PF", "1"))
OPT_RBM = int(os.environ.get("OPT_RBM", "0"))
OPT_LATE = int(os.environ.get("OPT_LATE", "0"))


def code_prefetch(a, endlabel, vtmp, vdst):
    if not OPT_PF:
        return
    lab = a.newlabel("pc")
    a("s_getpc_b64 s[10:11]")
    a.label(lab)
    a(f"v_lshlrev_b32 v{vtmp}, 7, v0")
    a(f"v_min_u32 v{vtmp}, {endlabel}-{lab}-4, v{vtmp}")
    a(f"global_load_dword v{vdst}, v{vtmp}, s[10:11]")


WS_STAMP = 16 << 20
ST0 = 84


def stamp(a, i, k2=False):
    if STAMP and not (k2 and STEPSTAMP >= 0):
        a(f"s_memrealtime s[{ST0 + 2 * i}:{ST0 + 2 * i + 1}]")


def stamp_flush(a, n, kern):
    if not STAMP:
        return
    a("s_waitcnt lgkmcnt(0)")
    make_srd(a, 76, P_WS, WS_STAMP + (4 << 20))
    a("s_lshl_b32 s80, s2, 4")
    a("s_add_u32 s80, s80, s3")
    a("s_lshl_b32 s80, s80, 5")
    a(f"s_add_u32 s80, s80, {WS_STAMP + kern * (1 << 20)}")
    a("s_mov_b64 exec, 1")
    a("v_mov_b32 v250, s80" if False else "v_mov_b32 v9, s80")
    for i in range(n):
        a(f"v_mov_b32 v8, s{ST0 + 2 * i}")
        a(f"buffer_store_dword v8, v9, s[76:79], 0 offen offset:{4 * i}")
    a("s_mov_b64 exec, -1")


SC1 = " sc1" if OPT_SC1 else ""


class Asm:
    def __init__(self):
        self.lines = []
        self.nlab = 0

    def __call__(self, s):
        self.lines.append("    " + s)

    def raw(self, s):
        self.lines.append(s)

    def label(self, s):
        self.lines.append(s + ":")

    def c(self, s):
        self.lines.append("    ; " + s)

    def newlabel(self, base):
        self.nlab += 1
        return f"L_{base}_{self.nlab}"

    def text(self):
        return "\n".join(self.lines) + "\n"


def vr(i, n=1):
    return f"v{i}" if n == 1 else f"v[{i}:{i + n - 1}]"


def ar(i, n=1):
    return f"a{i}" if n == 1 else f"a[{i}:{i + n - 1}]"


def sr(i, n=1):
    return f"s{i}" if n == 1 else f"s[{i}:{i + n - 1}]"


def make_srd(a, dst, ptr, nbytes):
    a(f"s_mov_b32 s{dst}, s{ptr}")
    a(f"s_and_b32 s{dst + 1}, s{ptr + 1}, 0xffff")
    a(f"s_mov_b32 s{dst + 2}, {nbytes}")
    a(f"s_mov_b32 s{dst + 3}, 0x00020000")


def load_kernargs(a):
    a("s_load_dwordx16 s[16:31], s[0:1], 0")
    a("s_load_dwordx16 s[32:47], s[0:1], 64")


TW_RAWK = 0
TW_RAWV = 12288
TW_RAWU = TW_RAWV + 10240
TW_RAWQ = TW_RAWU + 10240
TW_STG = TW_RAWQ + 10240
KG_OFF = TW_STG + 5 * 5120
KG_CNT = KG_OFF + 9 * 9216
K1_LDS = KG_CNT + 64


def lds_signal(a, addr_v, one_v):
    a("s_mov_b64 exec, 1")
    a(f"ds_add_u32 v{addr_v}, v{one_v}")
    a("s_mov_b64 exec, -1")


def lds_wait_count(a, addr_v, tmp_v, tmp_s, count, name):
    spin = a.newlabel(name)
    a.label(spin)
    a(f"ds_read_b32 v{tmp_v}, v{addr_v}")
    a("s_waitcnt lgkmcnt(0)")
    a(f"v_readfirstlane_b32 s{tmp_s}, v{tmp_v}")
    a(f"s_cmp_lt_u32 s{tmp_s}, {count}")
    a(f"s_cbranch_scc1 {spin}")


def emit_tilewave(a):
    a.c("---- tile waves: workgroup tile = 32 rows x 160 channels of u, k, v ; wave w owns 32 channels ----")
    if OPT_XMAP:
        a("s_lshr_b32 s7, s2, 5")
        a("s_lshl_b32 s7, s7, 3")
        a("s_and_b32 s8, s2, 7")
        a("s_add_u32 s8, s8, s7")
        a("s_bfe_u32 s7, s2, 0x20003")
    else:
        a("s_lshr_b32 s8, s2, 2")
        a("s_and_b32 s7, s2, 3")
    a("s_mul_i32 s9, s8, 40960")
    a("s_mul_i32 s10, s7, 320")
    a("s_add_u32 s9, s9, s10")
    a("s_lshl_b32 s11, s3, 6")
    a("s_add_u32 s10, s10, s11")
    a("s_lshl_b32 s12, s3, 6")
    a("v_add_u32 v3, s12, v2")
    a("v_mul_u32_u24 v4, 52429, v3")
    a("v_lshrrev_b32 v4, 20, v4")
    a("v_mul_u32_u24 v5, 20, v4")
    a("v_sub_u32 v5, v3, v5")
    a("v_mul_u32_u24 v6, 1280, v4")
    a("v_lshl_add_u32 v6, v5, 4, v6")
    a("v_add_u32 v5, s9, v6")
    a("v_add_u32 v6, 20480, v5")
    a("v_subrev_u32 v7, 5120, v5")
    a("s_lshl_b32 s12, s3, 10")
    a("s_waitcnt lgkmcnt(0)")
    stamp(a, 1)
    make_srd(a, 48, P_U, TENS)
    make_srd(a, 52, P_K, TENS)
    make_srd(a, 56, P_V, TENS)
    make_srd(a, 60, P_SHK, 640 * 8)
    make_srd(a, 72, P_Q, TENS)
    a("v_bfe_u32 v8, v2, 4, 1")
    a("v_and_b32 v10, 15, v2")
    a("v_lshl_add_u32 v11, v8, 4, v10")
    a("s_lshl_b32 s13, s10, 2")
    a("v_lshl_add_u32 v12, v11, 3, s13")
    a("s_barrier")
    a("buffer_load_dwordx2 v[40:41], v12, s[60:63], 0 offen")
    a(f"s_add_u32 m0, s12, {TW_RAWK + 1280}")
    a("s_nop 0")
    a("buffer_load_dwordx4 v5, s[52:55], 0 offen lds")
    a(f"s_add_u32 m0, s12, {TW_RAWK + 1280 + 5120}")
    a("s_nop 0")
    a("buffer_load_dwordx4 v6, s[52:55], 0 offen lds")
    nohalo = a.newlabel("nohalo")
    a("s_cmp_gt_u32 s3, 1")
    a(f"s_cbranch_scc1 {nohalo}")
    a("s_cmp_eq_u32 s3, 0")
    a("s_cselect_b32 exec_hi, -1, 0")
    a("s_cselect_b32 exec_lo, -1, 0xffff")
    a(f"s_add_u32 m0, s12, {TW_RAWK}")
    a("s_nop 0")
    a("buffer_load_dwordx4 v7, s[52:55], 0 offen lds")
    a("s_mov_b64 exec, -1")
    a.label(nohalo)
    for srd, base in ((56, TW_RAWV), (48, TW_RAWU), (72, TW_RAWQ)):
        a(f"s_add_u32 m0, s12, {base}")
        a("s_nop 0")
        a(f"buffer_load_dwordx4 v5, s[{srd}:{srd + 3}], 0 offen lds")
        a(f"s_add_u32 m0, s12, {base + 5120}")
        a("s_nop 0")
        a(f"buffer_load_dwordx4 v6, s[{srd}:{srd + 3}], 0 offen lds")
    stamp(a, 2)
    a("v_lshrrev_b32 v3, 2, v2")
    a("v_and_b32 v4, 3, v2")
    a("v_bfe_u32 v8, v2, 4, 1")
    a("v_lshrrev_b32 v9, 5, v2")
    a("v_and_b32 v10, 15, v2")
    a("v_lshl_add_u32 v11, v8, 4, v10")
    make_srd(a, 64, P_WS, WS_END)
    a("v_and_b32 v13, 3, v3")
    a("v_sub_u32 v13, 3, v13")
    a("v_lshl_add_u32 v13, v9, 2, v13")
    a("v_mul_u32_u24 v13, 320, v13")
    a("v_lshl_add_u32 v13, v8, 5, v13")
    a("v_lshl_add_u32 v13, v4, 3, v13")
    a("v_add_u32 v13, s11, v13")
    a("s_mul_i32 s12, s3, 5120")
    a(f"s_add_u32 s12, s12, {TW_STG}")
    a("v_mul_u32_u24 v14, 80, v11")
    a("v_lshlrev_b32 v15, 3, v9")
    a("v_sub_u32 v14, v14, v15")
    a("s_add_u32 s13, s12, 8")
    a("v_add_u32 v14, s13, v14")
    a("v_mul_u32_u24 v15, 80, v3")
    a("v_lshl_add_u32 v15, v4, 4, v15")
    a("v_add_u32 v15, s12, v15")
    a("s_lshl_b32 s13, s10, 11")
    a("s_lshl_b32 s14, s8, 6")
    a("s_sub_u32 s13, s13, s14")
    a("s_add_u32 s13, s13, 4032")
    a("v_lshlrev_b32 v16, 12, v3")
    a("v_lshl_add_u32 v16, v4, 4, v16")
    a("v_add_u32 v16, s13, v16")
    a(f"v_mov_b32 v36, {KG_CNT + 12}")
    a("v_mov_b32 v37, 1")
    if OPT_SCOUT:
        a("s_mov_b32 s70, 0")
        a("s_mov_b64 exec, 0")
        for w_, nm in enumerate(("K0", "K1", "K2", "K3", "K4")):
            a(f"s_cmp_eq_u32 s3, {w_}")
            a(f"s_cbranch_scc1 L_sc_{nm}")
        a.label("L_scout_ret")
        a("s_add_u32 s70, s70, 1")
        a("s_cmp_eq_u32 s70, 1")
        a("s_cbranch_scc0 L_scout_p2")
        a("s_cmp_eq_u32 s3, 0")
        a("s_cbranch_scc1 L_sc_F0")
        a("s_cmp_eq_u32 s3, 1")
        a("s_cbranch_scc1 L_sc_F1")
        a("s_add_u32 s70, s70, 1")
        a.label("L_scout_p2")
        a("s_cmp_eq_u32 s70, 2")
        a("s_cbranch_scc1 L_tproc")
        a("s_mov_b64 exec, -1")
    a("s_setprio 2")
    a("s_waitcnt vmcnt(2)")
    lds_signal(a, 36, 37)
    stamp(a, 3)
    if OPT_MPF:
        nopf = a.newlabel("nopf")
        a("s_cmp_ge_u32 s3, 2")
        a(f"s_cbranch_scc1 {nopf}")
        a(f"s_mov_b32 s68, s{P_SSK}")
        a(f"s_mov_b32 s69, s{P_SSK + 1}")
        a("s_and_b32 s69, s69, 0xffff")
        a(f"s_mov_b32 s70, {TENS}")
        a("s_mov_b32 s71, 0x00020000")
        a("s_mul_i32 s15, s2, 10240")
        a("s_and_b32 s14, s3, 1")
        a("s_lshl_b32 s14, s14, 13")
        a("s_add_u32 s15, s15, s14")
        a("v_lshlrev_b32 v39, 7, v2")
        a("v_add_u32 v39, s15, v39")
        a("s_and_b32 s14, s3, 1")
        a("s_cmp_eq_u32 s14, 1")
        a("s_cselect_b32 exec_lo, 0xffff, -1")
        a("s_cselect_b32 exec_hi, 0, -1")
        a("buffer_load_dword v45, v39, s[68:71], 0 offen")
        a("s_mov_b64 exec, -1")
        a.label(nopf)
        if OPT_CPF:
            nocp = a.newlabel("nocp")
            a("s_cmp_lg_u32 s3, 4")
            a(f"s_cbranch_scc1 {nocp}")
            a("s_cmp_ge_u32 s2, 8")
            a(f"s_cbranch_scc1 {nocp}")
            lab = a.newlabel("pc")
            a("s_getpc_b64 s[68:69]")
            a.label(lab)
            a("v_lshlrev_b32 v39, 7, v2")
            a(f"v_add_u32 v39, conv_kernel-{lab}, v39")
            for k_ in range(3):
                a(f"v_min_u32 v46, L_conv_exit-{lab}, v39")
                a("global_load_dword v45, v46, s[68:69]")
                a("v_add_u32 v39, 8192, v39")
            a.label(nocp)
    a("v_alignbit_b32 v42, v41, v40, 16")
    a("v_lshlrev_b32 v43, 16, v40")
    a("v_lshrrev_b32 v44, 16, v41")
    lds_wait_count(a, 36, 38, 14, 5, "tile_spin")
    a.label("L_tproc")
    for j in range(4):
        a(f"ds_read_b64_tr_b16 v[{18 + 2 * j}:{19 + 2 * j}], v13 offset:{TW_RAWK + 1280 + 2560 * j}")
        a(f"ds_read_b64_tr_b16 v[{26 + 2 * j}:{27 + 2 * j}], v13 offset:{TW_RAWK + 2560 * j}")
        a(f"ds_read_b64_tr_b16 v[{46 + 2 * j}:{47 + 2 * j}], v13 offset:{TW_RAWV + 2560 * j}")
    for j in range(3):
        a(f"ds_read_b64_tr_b16 v[{54 + 2 * j}:{55 + 2 * j}], v13 offset:{TW_RAWU + 2560 * j}")
    for j in range(4):
        kc, kp, vv = 18 + 2 * j, 26 + 2 * j, 46 + 2 * j
        t = 64 + 10 * (j & 1)
        a(f"s_waitcnt lgkmcnt({12 - 3 * j})")
        if j == 0:
            a(f"ds_read_b64_tr_b16 v[60:61], v13 offset:{TW_RAWU + 2560 * 3}")
        a(f"v_dot2_f32_bf16 v{t + 0}, v{kc}, v40, 0")
        a(f"v_dot2_f32_bf16 v{t + 1}, v{kc}, v43, 0")
        a(f"v_dot2_f32_bf16 v{t + 2}, v{kc + 1}, v40, 0")
        a(f"v_dot2_f32_bf16 v{t + 3}, v{kc + 1}, v43, 0")
        a(f"v_dot2_f32_bf16 v{t + 0}, v{kc + 1}, v41, v{t + 0}")
        a(f"v_dot2_f32_bf16 v{t + 1}, v{kc + 1}, v42, v{t + 1}")
        a(f"v_dot2_f32_bf16 v{t + 2}, v{kp}, v41, v{t + 2}")
        a(f"v_dot2_f32_bf16 v{t + 3}, v{kp}, v42, v{t + 3}")
        a(f"v_dot2_f32_bf16 v{t + 1}, v{kp}, v44, v{t + 1}")
        a(f"v_dot2_f32_bf16 v{t + 3}, v{kp + 1}, v44, v{t + 3}")
        a(f"v_lshlrev_b32 v{t + 4}, 16, v{vv}")
        a(f"v_and_b32 v{t + 5}, 0xffff0000, v{vv}")
        a(f"v_lshlrev_b32 v{t + 6}, 16, v{vv + 1}")
        a(f"v_and_b32 v{t + 7}, 0xffff0000, v{vv + 1}")
        a(f"v_mul_f32 v{t + 0}, v{t + 0}, v{t + 4}")
        a(f"v_mul_f32 v{t + 1}, v{t + 1}, v{t + 5}")
        a(f"v_mul_f32 v{t + 2}, v{t + 2}, v{t + 6}")
        a(f"v_mul_f32 v{t + 3}, v{t + 3}, v{t + 7}")
        a(f"v_cvt_pk_bf16_f32 v{t + 8}, v{t + 0}, v{t + 1}")
        a(f"v_cvt_pk_bf16_f32 v{t + 9}, v{t + 2}, v{t + 3}")
        a(f"ds_write_b64 v14, v[{t + 8}:{t + 9}] offset:{2560 + 16 * (3 - j)}")
    a("s_waitcnt lgkmcnt(4)")
    for j in range(4):
        a(f"ds_write_b64 v14, v[{54 + 2 * j}:{55 + 2 * j}] offset:{16 * (3 - j)}")
    a("s_waitcnt lgkmcnt(0)")
    for i in range(2):
        a(f"ds_read_b128 v[{18 + 4 * i}:{21 + 4 * i}], v15 offset:{2560 + 1280 * i}")
    for i in range(2):
        a(f"ds_read_b128 v[{26 + 4 * i}:{29 + 4 * i}], v15 offset:{1280 * i}")
    a(f"v_add_u32 v17, {640 * 4096}, v16")
    a("v_add_u32 v34, 65536, v17")
    a("v_add_u32 v35, 65536, v16")
    scout(a, None)
    a("s_waitcnt lgkmcnt(3)")
    a("buffer_store_dwordx4 v[18:21], v17, s[64:67], 0 offen" + SC1)
    a("s_waitcnt lgkmcnt(2)")
    a("buffer_store_dwordx4 v[22:25], v34, s[64:67], 0 offen" + SC1)
    a("s_waitcnt lgkmcnt(1)")
    a("buffer_store_dwordx4 v[26:29], v16, s[64:67], 0 offen" + SC1)
    a("s_waitcnt lgkmcnt(0)")
    a("buffer_store_dwordx4 v[30:33], v35, s[64:67], 0 offen" + SC1)
    a("s_waitcnt vmcnt(4)")
    a(f"v_mov_b32 v36, {KG_CNT + 16}")
    lds_signal(a, 36, 37)
    lds_wait_count(a, 36, 38, 14, 5, "tileq_spin")
    a("v_and_b32 v46, 3, v3")
    a("v_lshlrev_b32 v47, 1, v46")
    a("v_subrev_u32 v47, 3, v47")
    a("v_mul_i32_i24 v47, 320, v47")
    a("v_add_u32 v47, v13, v47")
    for j in range(4):
        a(f"ds_read_b64_tr_b16 v[{54 + 2 * j}:{55 + 2 * j}], v47 offset:{TW_RAWQ + 2560 * j}")
    a("v_lshlrev_b32 v48, 4, v9")
    a("v_add_u32 v48, v14, v48")
    a("v_subrev_u32 v48, 8, v48")
    a("s_lshl_b32 s14, s8, 7")
    a(f"s_add_u32 s14, s14, {WS_QT - 4032}")
    a("v_add_u32 v49, s14, v16")
    a("v_add_u32 v50, 65536, v49")
    a("s_waitcnt lgkmcnt(0)")
    for j in range(4):
        a(f"ds_write_b64 v48, v[{54 + 2 * j}:{55 + 2 * j}] offset:{16 * j}")
    a("s_waitcnt lgkmcnt(0)")
    for i in range(2):
        a(f"ds_read_b128 v[{64 + 4 * i}:{67 + 4 * i}], v15 offset:{1280 * i}")
    a("s_waitcnt lgkmcnt(1)")
    a("buffer_store_dwordx4 v[64:67], v49, s[64:67], 0 offen" + SC1)
    a("s_waitcnt lgkmcnt(0)")
    a("buffer_store_dwordx4 v[68:71], v50, s[64:67], 0 offen" + SC1)
    if STAMP:
        stamp(a, 4)
        a("s_waitcnt vmcnt(0)")
        stamp(a, 5)
        stamp_flush(a, 6, 0)
    a("s_endpgm")


LOG2E = 0x3fb8aa3b
INV2PI = 0x3e22f983


def cmul(a, d, x, y, t):
    a(f"v_pk_mul_f32 v[{t}:{t + 1}], v[{x}:{x + 1}], v[{y}:{y + 1}] op_sel:[0,0] op_sel_hi:[0,1]")
    a(f"v_pk_fma_f32 v[{d}:{d + 1}], v[{x}:{x + 1}], v[{y}:{y + 1}], v[{t}:{t + 1}] op_sel:[1,1,0] op_sel_hi:[1,0,1] neg_lo:[0,1,0]")


KG_BUF = 4608
KG_WAVE = 2 * KG_BUF


def scout(a, entry):
    if OPT_SCOUT:
        a("s_cbranch_execz L_scout_ret")
        if entry:
            a.label("L_sc_" + entry)


def scout_entry(a, entry):
    if OPT_SCOUT:
        a.label("L_sc_" + entry)


def emit_kgen_issue(a):
    a.c("---- kgen waves: issue parameter loads as early as possible ----")
    a("s_sub_u32 s6, s3, 5")
    a("s_mul_i32 s7, s6, 43")
    a("s_lshr_b32 s7, s7, 7")
    a("s_mov_b32 s67, s7")
    a("s_mul_i32 s4, s7, 3")
    a("s_sub_u32 s4, s6, s4")
    a("s_lshr_b32 s5, s2, 1")
    a("s_mul_i32 s5, s5, 5")
    a("s_and_b32 s8, s2, 1")
    a("s_mul_i32 s9, s8, 3")
    a("s_add_u32 s5, s5, s9")
    a("s_add_u32 s5, s5, s7")
    a("s_lshr_b32 s9, s7, 1")
    a("s_and_b32 s9, s9, s8")
    a("s_cmp_eq_u32 s9, 1")
    a("s_cbranch_scc1 L_prep_exit")
    a("s_mul_i32 s9, s5, 384")
    a("s_lshl_b32 s7, s4, 7")
    a("s_add_u32 s9, s9, s7")
    a("v_lshl_add_u32 v3, v2, 1, s9")
    for r in range(10, 14):
        a(f"v_mov_b32 v{r}, 0")
    a("s_lshl_b32 s7, s5, 1")
    a("s_and_b32 s7, s7, 0xfffffffc")
    a("s_mov_b32 s50, 245760")
    a("s_mov_b32 s51, 0x00020000")
    a("s_mov_b32 s54, 245760")
    a("s_mov_b32 s55, 0x00020000")
    a("s_mov_b32 s58, 245760")
    a("s_mov_b32 s59, 0x00020000")
    a("s_mov_b32 s62, 245760")
    a("s_mov_b32 s63, 0x00020000")
    a("v_lshlrev_b32 v4, 2, v2")
    a(f"v_add_u32 v4, {KG_CNT}, v4")
    a("v_mov_b32 v5, 0")
    a("s_mov_b64 exec, 31")
    a("ds_write_b32 v4, v5")
    a("s_mov_b64 exec, -1")
    a("s_waitcnt lgkmcnt(0)")
    stamp(a, 1)
    for srd, p, dst in ((48, P_LOGA, 10), (52, P_AIM, 11), (56, P_CR, 12), (60, P_CI, 13)):
        a(f"s_mov_b32 s{srd}, s{p}")
        a(f"s_and_b32 s{srd + 1}, s{p + 1}, 0xffff")
        a(f"buffer_load_short_d16_hi v{dst}, v3, s[{srd}:{srd + 3}], 0 offen")
    a("s_barrier")
    a(f"s_load_dword s64, s[{P_LDT}:{P_LDT + 1}], s7")
    a(f"s_load_dword s65, s[{P_DSK}:{P_DSK + 1}], s7")
    if KGREP:
        a(f"s_mov_b32 s68, {KGREP}")
    a("s_branch L_kgen")


def emit_kgen(a):
    a.c("---- S4D kernel generation: 64 modes per wave ----")
    a(f"s_mul_i32 s8, s6, {KG_WAVE}")
    a(f"s_add_u32 s8, s8, {KG_OFF}")
    make_srd(a, 72, P_WS, WS_END)
    a("s_mov_b32 m0, s8")
    a("v_and_b32 v5, 15, v2")
    a("v_lshrrev_b32 v6, 4, v2")
    a("v_mul_u32_u24 v7, 288, v5")
    a("v_lshl_add_u32 v7, v6, 4, v7")
    a("v_add_u32 v7, s8, v7")
    a("v_lshlrev_b32 v8, 4, v2")
    a("v_add_u32 v9, s8, v8")
    a("v_lshlrev_b32 v60, 4, v5")
    a("v_add_u32 v60, s8, v60")
    a("v_and_b32 v61, 1, v6")
    a("v_lshrrev_b32 v62, 1, v6")
    a("v_lshl_add_u32 v56, v61, 3, v60")
    a("v_lshl_add_u32 v56, v62, 8, v56")
    a("v_lshl_add_u32 v57, v6, 8, v60")
    a("v_add_u32 v57, 512, v57")
    a("v_lshl_add_u32 v58, v6, 9, v60")
    a("v_cmp_gt_u32 vcc, 2, v6")
    a("v_mov_b32 v61, 8")
    a("v_mov_b32 v62, 4")
    a("v_cndmask_b32 v57, v58, v57, vcc")
    a("v_cndmask_b32 v61, v61, v62, vcc")
    a("v_add_u32 v58, v57, v61")
    a("v_mov_b32 v61, 256")
    a("v_mov_b32 v62, 8")
    a("v_cndmask_b32 v61, v61, v62, vcc")
    a("v_add_u32 v59, v57, v61")
    a("v_mov_b32 v61, 264")
    a("v_mov_b32 v62, 12")
    a("v_cndmask_b32 v61, v61, v62, vcc")
    a("v_add_u32 v124, v57, v61")
    a("v_lshl_add_u32 v61, v6, 10, v60")
    a("v_add_u32 v61, 2048, v61")
    a("v_lshlrev_b32 v62, 1, v2")
    a("v_add_u32 v62, s8, v62")
    a("v_add_u32 v62, 5120, v62")
    a("v_cndmask_b32 v126, v62, v61, vcc")
    a("v_cmp_gt_u32 vcc, 3, v6")
    a("s_nop 1")
    a("v_cndmask_b32 v125, v62, v61, vcc")
    a("v_and_b32 v60, 1, v2")
    a("v_cmp_eq_u32 vcc, 1, v60")
    a("v_mov_b32 v61, 0x05040100")
    a("v_mov_b32 v62, 0x05040504")
    a("v_cndmask_b32 v127, v61, v62, vcc")
    a("s_mul_i32 s6, s5, 4096")
    a(f"s_add_u32 s6, s6, {WS_KA}")
    a("v_add_u32 v63, s6, v8")
    a("s_mov_b32 s12, 0x01000100")
    a("s_mov_b32 s13, 0x05040100")
    a(f"s_mov_b32 s9, {LOG2E:#x}")
    a(f"s_mov_b32 s10, {INV2PI:#x}")
    (stamp(a, 2) if not KGREP else None)
    a("s_waitcnt lgkmcnt(0)")
    a("s_and_b32 s66, s5, 1")
    a("s_lshl_b32 s66, s66, 4")
    a("s_lshr_b32 s64, s64, s66")
    a("s_lshl_b32 s64, s64, 16")
    a("s_lshr_b32 s65, s65, s66")
    a("s_lshl_b32 s65, s65, 16")
    a("v_mov_b32 v14, s64")
    a("v_mov_b32 v15, s65")
    a("v_cmp_eq_u32 vcc, 0, v2")
    a("s_nop 1")
    a("v_cndmask_b32 v15, 0, v15, vcc")
    a("v_cmp_gt_u32 vcc, 32, v2")
    a("s_waitcnt vmcnt(0)")
    if KGREP:
        a("v_mov_b32 v56, v10")
        a("v_mov_b32 v57, v11")
        a("v_mov_b32 v58, v12")
        a("v_mov_b32 v59, v13")
        a.label("L_kg_again")
        a("v_mov_b32 v10, v56")
        a("v_mov_b32 v11, v57")
        a("v_mov_b32 v12, v58")
        a("v_mov_b32 v13, v59")
        a("v_mov_b32 v14, s64")
        a("s_cmp_eq_u32 s68, %d" % KGREP)
        a("s_cbranch_scc0 L_kg_n1")
        a("s_memrealtime s[86:87]")
        a("s_memtime s[88:89]")
        a.label("L_kg_n1")
        a("s_cmp_eq_u32 s68, %d" % (KGREP - 1))
        a("s_cbranch_scc0 L_kg_n2")
        a("s_memrealtime s[90:91]")
        a("s_memtime s[92:93]")
        a.label("L_kg_n2")
        a("s_cmp_eq_u32 s68, %d" % (KGREP - 2))
        a("s_cbranch_scc0 L_kg_n3")
        a("s_memrealtime s[94:95]")
        a("s_memtime s[96:97]")
        a.label("L_kg_n3")
    (stamp(a, 3) if not KGREP else None)
    a("s_setprio 0")
    scout_entry(a, "K0")
    a("v_mul_f32 v14, s9, v14")
    a("v_mul_f32 v10, s9, v10")
    a("v_exp_f32 v14, v14")
    a("v_exp_f32 v10, v10")
    a("s_nop 0")
    a("v_cvt_pk_bf16_f32 v14, v14, v10")
    a("v_and_b32 v10, 0xffff0000, v14")
    a("v_lshlrev_b32 v14, 16, v14")
    a("v_mul_f32 v10, v10, v14")
    a("v_mul_f32 v11, v11, v14")
    a("v_add_f32 v14, v14, v14")
    a("v_mul_f32 v16, v12, v14")
    a("v_mul_f32 v17, v13, v14")
    a("v_mul_f32 v10, s9, v10")
    a("v_sub_f32 v10, 0, v10")
    a("v_mul_f32 v11, s10, v11")
    def cexp(dst, scale):
        t0, t1, t2 = 24, 25, 26
        if scale == 1:
            a(f"v_mov_b32 v{t0}, v10")
            a(f"v_mov_b32 v{t1}, v11")
        else:
            a(f"v_mul_f32 v{t0}, {f32hex(scale)}, v10")
            a(f"v_mul_f32 v{t1}, {f32hex(scale)}, v11")
        a(f"v_rndne_f32 v{t2}, v{t1}")
        a(f"v_exp_f32 v{t0}, v{t0}")
        a(f"v_sub_f32 v{t1}, v{t1}, v{t2}")
        a(f"v_cos_f32 v{t2}, v{t1}")
        a(f"v_sin_f32 v{t1}, v{t1}")
        a("s_nop 0")
        a(f"v_mul_f32 v{dst}, v{t0}, v{t2}")
        a(f"v_mul_f32 v{dst + 1}, v{t0}, v{t1}")
    cexp(18, 1)
    cexp(20, 8)
    cexp(22, 128)
    E1, E8, E128, C2 = 18, 20, 22, 16
    TMP = [24, 26, 28, 30]
    R = [32 + 2 * j for j in range(8)]
    EJ, YB = 48, 50
    CV = [52, 53, 54, 55]
    def wr_row(src, buf, row, negim, cv):
        neg = "-" if negim else ""
        a(f"v_cvt_pk_bf16_f32 v{cv}, v{src}, {neg}v{src + 1}")
        a(f"ds_write_addtid_b32 v{cv} offset:{buf * KG_BUF + row * 288}")

    a("v_mov_b32 v52, 0x3f80")
    a("ds_write_addtid_b32 v52 offset:0")
    wr_row(E8, 0, 1, True, 53)
    a(f"v_mov_b32 v{R[0]}, v{C2}")
    a(f"v_mov_b32 v{R[0] + 1}, v{C2 + 1}")
    ycur = E8
    for b in range(2, 16):
        if b == 3:
            scout(a, "K1")
        if b == 10:
            scout(a, "K2")
        src = ycur
        cmul_y = (YB, src, E8, TMP[0])
        if b - 1 <= 7:
            j = b - 1
            a(f"v_pk_mul_f32 v[{TMP[0]}:{TMP[0] + 1}], v[{src}:{src + 1}], v[{E8}:{E8 + 1}] op_sel:[0,0] op_sel_hi:[0,1]")
            a(f"v_pk_mul_f32 v[{TMP[1]}:{TMP[1] + 1}], v[{R[j - 1]}:{R[j - 1] + 1}], v[{E1}:{E1 + 1}] op_sel:[0,0] op_sel_hi:[0,1]")
            a(f"v_pk_fma_f32 v[{YB}:{YB + 1}], v[{src}:{src + 1}], v[{E8}:{E8 + 1}], v[{TMP[0]}:{TMP[0] + 1}] op_sel:[1,1,0] op_sel_hi:[1,0,1] neg_lo:[0,1,0]")
            a(f"v_pk_fma_f32 v[{R[j]}:{R[j] + 1}], v[{R[j - 1]}:{R[j - 1] + 1}], v[{E1}:{E1 + 1}], v[{TMP[1]}:{TMP[1] + 1}] op_sel:[1,1,0] op_sel_hi:[1,0,1] neg_lo:[0,1,0]")
            wr_row(R[j - 1], 1, j - 1, False, 54)
        else:
            cmul(a, YB, src, E8, TMP[0])
            j = b - 9
            if j == 0:
                wr_row(R[7], 1, 7, False, 54)
            cmul(a, R[j], R[j], E128, TMP[1])
            wr_row(R[j], 1, 8 + j, False, 54)
        wr_row(YB, 0, b, True, 53)
        ycur = YB
    cmul(a, R[7], R[7], E128, TMP[1])
    wr_row(R[7], 1, 15, False, 54)
    scout(a, "K3")
    YOP, XOP, ACC = 64, 80, 96
    a("s_waitcnt lgkmcnt(0)")
    for ks in range(4):
        a(f"ds_read_b128 v[{YOP + 4 * ks}:{YOP + 4 * ks + 3}], v7 offset:{64 * ks}")
    for ks in range(4):
        a(f"ds_read_b128 v[{XOP + 4 * ks}:{XOP + 4 * ks + 3}], v7 offset:{KG_BUF + 64 * ks}")
    for idx, j in enumerate([0, 2, 4, 6]):
        cmul(a, R[j], R[j], E128, TMP[idx % 4])
    a("s_waitcnt lgkmcnt(4)")
    for idx, j in enumerate([0, 2, 4, 6]):
        wr_row(R[j], 0, idx, False, CV[idx])
    for idx, j in enumerate([0, 2, 4, 6]):
        cmul(a, R[j], R[j], E128, TMP[idx % 4])
    a("s_waitcnt lgkmcnt(4)")
    for ks in range(4):
        c = "0" if ks == 0 else f"v[{ACC}:{ACC + 3}]"
        a(f"v_mfma_f32_16x16x32_bf16 v[{ACC}:{ACC + 3}], v[{XOP + 4 * ks}:{XOP + 4 * ks + 3}], v[{YOP + 4 * ks}:{YOP + 4 * ks + 3}], {c}")
    for idx, j in enumerate([0, 2, 4, 6]):
        wr_row(R[j], 0, 4 + idx, False, CV[idx])
    scout(a, "K4")
    for aa in range(4):
        for idx, j in enumerate([0, 4]):
            cmul(a, R[j], R[j], E128, TMP[idx])
        for idx, j in enumerate([0, 4]):
            wr_row(R[j], 0, 8 + 2 * aa + idx, False, CV[(2 * aa + idx) % 4])
    for aa in range(9):
        cmul(a, R[0], R[0], E128, TMP[aa % 2])
        wr_row(R[0], 1, aa, False, CV[aa % 4])
    a("s_waitcnt lgkmcnt(9)")
    for ks in range(4):
        a(f"ds_read_b128 v[{XOP + 4 * ks}:{XOP + 4 * ks + 3}], v7 offset:{64 * ks}")
    a("s_waitcnt lgkmcnt(0)")
    for ks in range(4):
        c = "0" if ks == 0 else f"v[{ACC + 4}:{ACC + 7}]"
        a(f"v_mfma_f32_16x16x32_bf16 v[{ACC + 4}:{ACC + 7}], v[{XOP + 4 * ks}:{XOP + 4 * ks + 3}], v[{YOP + 4 * ks}:{YOP + 4 * ks + 3}], {c}")
    XO2 = 108
    for ks in range(4):
        a(f"ds_read_b128 v[{XO2 + 4 * ks}:{XO2 + 4 * ks + 3}], v7 offset:{KG_BUF + 64 * ks}")
    a("s_waitcnt lgkmcnt(0)")
    for ks in range(4):
        c = "0" if ks == 0 else f"v[{ACC + 8}:{ACC + 11}]"
        a(f"v_mfma_f32_16x16x32_bf16 v[{ACC + 8}:{ACC + 11}], v[{XO2 + 4 * ks}:{XO2 + 4 * ks + 3}], v[{YOP + 4 * ks}:{YOP + 4 * ks + 3}], {c}")
    if KGREP:
        a("s_nop 7")
        a("s_nop 7")
        a("s_sub_u32 s68, s68, 1")
        a("s_cmp_gt_u32 s68, 0")
        a("s_cbranch_scc1 L_kg_again")
        a("s_memrealtime s[98:99]")
    scout(a, None)
    a("s_nop 7")
    a("s_nop 1")
    done = a.newlabel("kg_w0")
    a("s_cmp_eq_u32 s4, 0")
    a(f"s_cbranch_scc1 {done}")
    for t in range(3):
        a(f"ds_write_b128 v9, v[{ACC + 4 * t}:{ACC + 4 * t + 3}] offset:{1024 * t}")
    a("s_lshl_b32 s15, s67, 2")
    a(f"s_add_u32 s15, s15, {KG_CNT}")
    a("v_mov_b32 v10, s15")
    a("v_mov_b32 v11, 1")
    a("s_waitcnt lgkmcnt(0)")
    lds_signal(a, 10, 11)
    if STAMP:
        (stamp(a, 4) if not KGREP else None)
        (stamp(a, 5) if not KGREP else None)
        stamp_flush(a, 8, 0)
    a("s_endpgm")
    a.label(done)
    a("s_lshl_b32 s15, s67, 2")
    a(f"s_add_u32 s15, s15, {KG_CNT}")
    a("v_mov_b32 v10, s15")
    lds_wait_count(a, 10, 11, 14, 2, "kg_spin")
    (stamp(a, 4) if not KGREP else None)
    scout_entry(a, "F0")
    for wv in (1, 2):
        for t in range(3):
            a(f"ds_read_b128 v[{32 + 12 * (wv - 1) + 4 * t}:{35 + 12 * (wv - 1) + 4 * t}], v9 offset:{wv * KG_WAVE + 1024 * t}")
    a("s_waitcnt lgkmcnt(0)")
    for i in range(12):
        a(f"v_add_f32 v{ACC + i}, v{ACC + i}, v{32 + i}")
    for i in range(12):
        a(f"v_add_f32 v{ACC + i}, v{ACC + i}, v{44 + i}")
    a(f"v_add_f32 v{ACC}, v{ACC}, v15")
    for i in range(6):
        a(f"v_cvt_pk_bf16_f32 v{56 + i - 24}, v{ACC + 2 * i}, v{ACC + 2 * i + 1}")
    scout(a, "F1")
    a("ds_write_b16 v56, v32 offset:0")
    a("ds_write_b16_d16_hi v56, v32 offset:2")
    a("ds_write_b16 v56, v33 offset:4")
    a("ds_write_b16_d16_hi v56, v33 offset:6")
    a("ds_write_b16 v57, v34")
    a("ds_write_b16_d16_hi v58, v34")
    a("ds_write_b16 v59, v35")
    a("ds_write_b16_d16_hi v124, v35")
    a("ds_write_b16 v125, v36 offset:0")
    a("ds_write_b16_d16_hi v126, v36 offset:256")
    a("ds_write_b16 v126, v37 offset:512")
    a("ds_write_b16_d16_hi v126, v37 offset:768")
    a("s_waitcnt lgkmcnt(0)")
    SL = [40, 48, 64, 70]
    for s in range(4):
        a(f"ds_read_b128 v[{SL[s]}:{SL[s] + 3}], v9 offset:{1024 * s}")
        a(f"ds_read_b32 v{SL[s] + 4}, v9 offset:{1024 * s + 16}")
    a("s_waitcnt lgkmcnt(0)")
    def perm(d, s0, s1, sel):
        a(f"v_perm_b32 v{d}, v{s0}, v{s1}, {sel}")
    perm(76, 40, 40, "s12"); perm(77, 42, 41, "s13"); perm(78, 42, 42, "s12"); perm(79, 44, 43, "s13")
    for i in range(4):
        a(f"v_cndmask_b32 v{76 + i}, v{76 + i}, v{40 + i}, vcc")
    perm(80, 48, 48, "s12"); perm(81, 50, 48, "s13"); perm(82, 50, 50, "s12"); perm(83, 52, 52, "s12")
    for s_, o in ((2, 84), (3, 88)):
        d0, d4 = SL[s_], SL[s_] + 4
        perm(o, d0, d0, "s12"); perm(o + 1, d0, d0, "s12"); perm(o + 2, d4, d0, "v127"); perm(o + 3, d4, d4, "s12")
    scout(a, None)
    for s_, o in ((0, 76), (1, 80), (2, 84), (3, 88)):
        a(f"buffer_store_dwordx4 v[{o}:{o + 3}], v63, s[72:75], 0 offen offset:{1024 * s_}" + SC1)
    if STAMP:
        a("s_waitcnt vmcnt(0)")
        (stamp(a, 5) if not KGREP else None)
        stamp_flush(a, 8, 0)
    a("s_endpgm")


def f32hex(x):
    import struct
    return hex(struct.unpack("<I", struct.pack("<f", float(x)))[0])


def emit_prep(a):
    k = "prep_kernel"
    a.raw(f".globl {k}")
    a.raw(".p2align 8")
    a.raw(f".type {k},@function")
    a.label(k)
    a("s_cmp_ge_u32 s2, 256")
    a("s_cbranch_scc1 L_prep_exit")
    stamp(a, 0)
    load_kernargs(a)
    code_prefetch(a, "L_prep_exit", 120, 121)
    a("v_lshrrev_b32 v1, 6, v0")
    a("v_and_b32 v2, 63, v0")
    a("s_nop 0")
    a("v_readfirstlane_b32 s3, v1")
    a("s_mov_b32 s4, 0x9b436210")
    a("s_mov_b32 s5, 0xa7cd85")
    a("s_lshl_b32 s3, s3, 2")
    a("s_lshr_b64 s[4:5], s[4:5], s3")
    a("s_and_b32 s3, s4, 15")
    a("s_cmp_lt_u32 s3, 5")
    a("s_cbranch_scc1 L_tile")
    if NOKGEN:
        a("s_endpgm")
    a("s_setprio 3")
    emit_kgen_issue(a)
    a.label("L_tile")
    emit_tilewave(a)
    a.label("L_kgen")
    emit_kgen(a)
    a.label("L_prep_exit")
    a("s_endpgm")


class Lay:
    def __init__(self, name, half, tiles, jobs):
        self.name = name
        self.half = half
        self.tiles = list(tiles)
        self.jobs = jobs
        self.nslot = 8 * jobs
        self.ubytes = 2048 if half else 4096
        self.UP = self.ubytes + 512
        self.PO = self.ubytes + 64
        self.KP = 2 * self.PO
        self.YP = 2112
        self.U0 = 0
        self.K0 = self.nslot * self.UP
        self.Y0 = self.K0 + self.nslot * self.KP
        self.end = self.Y0 + self.nslot * self.YP
        self.nd = self.ubytes // 1024


T1 = Lay("T1", False, range(4, 8), 1)
T2 = Lay("T2", True, range(0, 4), 2)
K2_LDS = max(T1.end, T2.end)
assert T1.K0 % 128 == 0 and T1.KP % 128 == 0 and T1.PO % 128 == 64
assert T2.K0 % 128 == 0 and T2.KP % 128 == 0 and T2.PO % 128 == 64

V_U, V_KB, V_YW, V_TR, V_OUT, V_Q, V_L16, V_T0, V_T1 = 4, 5, 9, 10, 11, 12, 13, 14, 15
V_ACC = 16
V_B = 48
V_QD = 32
V_E = 88
V_K0 = 2


class Stream:
    def __init__(self, a, max_out=14):
        self.a = a
        self.q = []
        self.n = 0
        self.max_out = max_out
        self.done = set()

    def ins(self, txt):
        self.a(txt)
        self.n += 1

    def lds(self, txt, tag):
        if len(self.q) >= self.max_out:
            keep = self.max_out - 1
            self._wait(keep)
        self.ins(txt)
        self.q.append(tag)

    def _wait(self, keep):
        if len(self.q) > keep:
            self.ins(f"s_waitcnt lgkmcnt({keep})")
            for t in self.q[:len(self.q) - keep]:
                self.done.add(t)
            self.q = self.q[len(self.q) - keep:]

    def need(self, tags):
        last = -1
        for i, t in enumerate(self.q):
            if t in tags:
                last = i
        if last >= 0:
            self._wait(len(self.q) - 1 - last)

    def pad_since(self, n0, states):
        k = states - (self.n - n0)
        while k > 0:
            c = min(k, 16)
            self.ins(f"s_nop {c - 1}")
            self.n += c - 1
            k -= c


def emit_conv_body(a, T):
    J = T.jobs
    a("s_lshl_b32 s8, s5, 3")
    a("s_add_u32 s8, s8, s3")
    a("s_mul_i32 s9, s4, 640")
    a("s_add_u32 s9, s9, s8")
    a("s_lshl_b32 s10, s8, 12")
    a("s_lshl_b32 s13, s9, 12")
    if T.half:
        a("s_add_u32 s13, s13, 2048")
    a(f"s_mul_i32 s70, s3, {T.UP}")
    a(f"s_mul_i32 s71, s3, {T.KP}")
    a(f"s_add_u32 s71, s71, {T.K0}")
    a(f"v_lshlrev_b32 v{V_L16}, 4, v1")
    a("v_and_b32 v88, 15, v1")
    a("v_lshrrev_b32 v89, 4, v1")
    a("v_lshlrev_b32 v90, 5, v88")
    a("v_lshlrev_b32 v91, 4, v89")
    a("v_sub_u32 v90, v91, v90")
    a("s_add_u32 s14, s70, 480")
    a(f"v_add_u32 v{V_U}, s14, v90")
    a("v_add_u32 v90, 1, v88")
    a("v_and_b32 v91, 1, v90")
    a("v_lshl_add_u32 v90, v89, 3, v90")
    a("v_lshrrev_b32 v90, 1, v90")
    a("v_lshlrev_b32 v90, 2, v90")
    a(f"v_mul_u32_u24 v91, {T.PO}, v91")
    a("v_add_u32 v90, v90, v91")
    a(f"v_add_u32 v{V_KB}, s71, v90")
    nkb = 2 if T.half else 4
    for kk in range(1, nkb):
        a(f"v_add_u32 v{V_KB + kk}, {1024 * kk}, v{V_KB}")
    if T.half:
        for kk in range(2):
            a(f"v_add_u32 v{V_KB + 2 + kk}, {8 * T.KP + 1024 * kk}, v{V_KB}")
    a(f"s_add_u32 s14, s70, {T.ubytes}")
    a("v_lshl_add_u32 v90, v1, 4, s14")
    a(f"s_sub_u32 s14, s71, {30 * 16}")
    a("v_lshl_add_u32 v91, v1, 4, s14")
    a(f"s_add_u32 s14, s71, {T.PO - 32 * 16}")
    a("v_lshl_add_u32 v92, v1, 4, s14")
    a("v_cmp_gt_u32 vcc, 32, v1")
    a(f"v_mov_b32 v93, {8 * T.KP}")
    a(f"v_mov_b32 v94, {8 * T.UP}")
    a("v_cndmask_b32 v91, v92, v91, vcc")
    a("v_cmp_gt_u32 vcc, 30, v1")
    for r in range(80, 84):
        a(f"v_mov_b32 v{r}, 0")
    a("v_cndmask_b32 v90, v91, v90, vcc")
    a("v_cndmask_b32 v93, v93, v94, vcc")
    a("s_mov_b32 exec_hi, 3")
    for j in range(J):
        a("ds_write_b128 v90, v[80:83]")
        if j + 1 < J:
            a("v_add_u32 v90, v90, v93")
    a("s_mov_b64 exec, -1")
    a(f"s_mul_i32 s14, s3, {T.YP}")
    a(f"s_add_u32 s14, s14, {T.Y0}")
    a("v_lshlrev_b32 v90, 5, v88")
    a("v_lshl_add_u32 v90, v89, 3, v90")
    a(f"v_add_u32 v{V_YW}, s14, v90")
    a(f"v_add_u32 v{V_Q}, s10, v90")
    a("s_and_b32 s12, s3, 3")
    a("v_bfe_u32 v90, v1, 2, 2")
    a(f"v_mul_u32_u24 v90, {T.YP}, v90")
    a("v_and_b32 v91, 3, v1")
    a("v_lshl_add_u32 v90, v91, 3, v90")
    a("v_lshl_add_u32 v90, v89, 5, v90")
    a("s_lshl_b32 s14, s12, 7")
    a(f"s_add_u32 s14, s14, {T.Y0}")
    a(f"v_add_u32 v{V_TR}, s14, v90")
    a("s_lshl_b32 s14, s12, 6")
    a("v_add_u32 v90, s14, v1")
    a("s_lshl_b32 s11, s5, 4")
    a(f"v_mul_u32_u24 v{V_OUT}, 2560, v90")
    a("s_mul_i32 s14, s4, 1280")
    a("s_add_u32 s14, s14, s11")
    a(f"v_add_u32 v{V_OUT}, s14, v{V_OUT}")
    a(f"v_mov_b32 v{V_T0}, s71")
    a(f"s_mov_b32 s50, {WS_KA}")
    a("s_mov_b32 s51, 0x00020000")
    a(f"s_mov_b32 s54, {640 * 4096}")
    a("s_mov_b32 s55, 0x00020000")
    a("s_waitcnt lgkmcnt(0)")
    stamp(a, 1, True)
    a(f"s_mov_b32 s48, s{P_WS}")
    a(f"s_and_b32 s49, s{P_WS + 1}, 0xffff")
    a(f"s_add_u32 s6, s{P_WS}, {WS_KA}")
    a(f"s_addc_u32 s7, s{P_WS + 1}, 0")
    a("s_cmp_eq_u32 s4, 1")
    a(f"s_cselect_b32 s6, s{P_SSK}, s6")
    a(f"s_cselect_b32 s7, s{P_SSK + 1}, s7")
    a("s_mov_b32 s52, s6")
    a("s_and_b32 s53, s7, 0xffff")

    def dma_one(job, kind, kk):
        if kind == "U":
            src, srd, dst = f"s_add_u32 s15, s13, {job * 32768}", "s[48:51]", f"s_add_u32 m0, s70, {job * 8 * T.UP}"
        elif kind == "E":
            src, srd, dst = f"s_add_u32 s15, s10, {job * 32768}", "s[52:55]", f"s_add_u32 m0, s71, {job * 8 * T.KP + 32}"
        else:
            src, srd, dst = f"s_add_u32 s15, s10, {job * 32768 + 2}", "s[52:55]", f"s_add_u32 m0, s71, {job * 8 * T.KP + T.PO + 32}"
        return [src, dst, "s_nop 0", f"buffer_load_dwordx4 v{V_L16}, {srd}, s15 offen offset:{1024 * kk} lds"]

    if not T.half:
        order = [("U", 3), ("E", 3), ("O", 3), ("E", 2), ("O", 2), ("E", 1), ("O", 1), ("U", 2), ("E", 0), ("O", 0), ("U", 1), ("U", 0)]
        nfirst = 7
    else:
        order = [("U", 1), ("E", 1), ("O", 1), ("E", 0), ("O", 0), ("U", 0)]
        nfirst = 5
    xs = a.newlabel("xdma")
    a("s_cmp_ge_u32 s3, 4")
    a(f"s_cbranch_scc1 {xs}")
    for kind, kk in order[:nfirst]:
        for ln in dma_one(0, kind, kk):
            a(ln)
    a.label(xs)
    stamp(a, 2, True)
    for j in range(J):
        a(f"s_add_u32 s14, s10, {j * 32768}")
        a(f"s_load_dword s{72 + j}, s[6:7], s14")
    a("s_lshl_b32 s11, s8, 1")
    a("s_and_b32 s11, s11, 0xfffffffc")
    for j in range(J):
        a(f"s_add_u32 s14, s11, {16 * j}")
        a(f"s_load_dword s{76 + j}, s[{P_SSD}:{P_SSD + 1}], s14")
    a(f"s_add_u32 s56, s{P_WS}, {WS_QT}")
    a(f"s_addc_u32 s57, s{P_WS + 1}, 0")
    a("s_and_b32 s57, s57, 0xffff")
    a("s_mov_b32 s59, 0x00020000")
    make_srd(a, 60, P_OUT, L * 2560)
    a("s_cmp_eq_u32 s4, 1")
    a(f"s_cselect_b32 s58, {640 * 4096}, 0")
    a("s_cselect_b32 s69, 0, 0x3f803f80")
    a("s_cmp_ge_u32 s3, 4")
    a(f"s_cbranch_scc1 L_{T.name}_Y")
    emit_conv_stream(a, T, 0, order, nfirst, dma_one)
    a.label(f"L_{T.name}_Y")
    emit_conv_stream(a, T, 1, order, nfirst, dma_one)


def emit_conv_stream(a, T, G, order, nfirst, dma_one):
    J = T.jobs
    st = Stream(a)
    vm = []
    k0_ready = [False]

    def make_k0():
        st.ins("s_waitcnt lgkmcnt(0)")
        for t in st.q:
            st.done.add(t)
        st.q = []
        st.ins("s_and_b32 s14, s8, 1")
        st.ins("s_lshl_b32 s14, s14, 4")
        for j in range(J):
            st.ins(f"s_lshl_b32 s{72 + j}, s{72 + j}, 16")
            st.ins(f"s_lshr_b32 s{76 + j}, s{76 + j}, s14")
            st.ins(f"s_lshl_b32 s{76 + j}, s{76 + j}, 16")
        st.ins("s_cmp_eq_u32 s4, 1")
        for j in range(J):
            st.ins(f"s_cselect_b32 s{76 + j}, s{76 + j}, 0")
        for j in range(J):
            st.ins(f"v_mov_b32 v{V_K0 + j}, s{72 + j}")
            st.ins(f"v_add_f32 v{V_K0 + j}, s{76 + j}, v{V_K0 + j}")
            st.ins(f"v_cvt_pk_bf16_f32 v{V_K0 + j}, v{V_K0 + j}, v{V_K0 + j}")
        k0_ready[0] = True

    def patch(j):
        if not k0_ready[0]:
            make_k0()
        st.lds(f"ds_write_b16 v{V_T0}, v{V_K0 + j} offset:{j * 8 * T.KP + 32}", ("patch", j, 0))
        st.lds(f"ds_write_b16 v{V_T0}, v{V_K0 + j} offset:{j * 8 * T.KP + T.PO + 30}", ("patch", j, 1))

    tiles = T.tiles
    nlo, nhi = tiles[0], tiles[-1]

    def phys(j, cp):
        if not T.half:
            return cp % 5
        return cp if j == 0 else (cp + 1)

    mf = []
    seen = set()
    for j in range(J):
        for m in range(0, nhi + 1):
            ns = list(range(nhi, max(m, nlo) - 1, -1))
            if m == 0 and j == 0 and OPT_NOUT:
                pairs = [(r, n) for n in ns for r in range(8)]
            else:
                pairs = [(r, n) for r in range(8) for n in ns]
            for r, n in pairs:
                cp = n - m
                first = (j, n) not in seen
                seen.add((j, n))
                mf.append(dict(rd=j, m=m, r=r, n=n, cp=cp, c=8 * cp + r, aslot=8 * phys(j, cp) + r, bslot=r,
                               first=first, atag=("A", j, 8 * cp + r), btag=("B", j, m, r)))
    nM = len(mf)
    loads = []
    have = set()
    last_use_a, last_use_b = {}, {}
    prev_last_b = {}
    lastb_by_tag = {}
    for i, x in enumerate(mf):
        lastb_by_tag[x['btag']] = i
    slot_prev_tag = {}
    for i, x in enumerate(mf):
        if x['btag'] not in have:
            have.add(x['btag'])
            pt = slot_prev_tag.get(x['bslot'])
            loads.append(dict(tag=x['btag'], kind='B', need=i, free=(lastb_by_tag[pt] if pt else -1), x=x))
            slot_prev_tag[x['bslot']] = x['btag']
        if x['atag'] not in have:
            have.add(x['atag'])
            loads.append(dict(tag=x['atag'], kind='A', need=i, free=last_use_a.get(x['aslot'], -1), x=x))
        last_use_a[x['aslot']] = i
    first_idx = {}
    for i, x in enumerate(mf):
        first_idx.setdefault(x['rd'], i)

    uoff0 = 1536 if T.half else 3584

    def src_pieces(ld):
        x = ld['x']
        j = x['rd']
        if ld['kind'] == 'B':
            gamma = 8 * x['m'] - x['r']
            lo = uoff0 - 64 * gamma
            hi = lo + 528 + 16
            return {("dma", j, "U", k_) for k_ in range(T.nd) if lo < 1024 * (k_ + 1) and hi > 1024 * k_}
        c = x['c']
        lo = 64 * c - 32
        hi = 64 * c + 96
        out = set()
        for k_ in range(T.nd):
            if lo < 1024 * (k_ + 1) and hi > 1024 * k_:
                out |= {("dma", j, "E", k_), ("dma", j, "O", k_)}
        if c == 0:
            out.add(("patched", j))
        return out

    landed = set()

    def vwait(tags):
        idx = [i for i, t in enumerate(vm) if t in tags and t not in landed]
        if not idx:
            return
        last = max(idx)
        keep = len(vm) - 1 - last
        st.ins(f"s_waitcnt vmcnt({keep})")
        for t in vm[:last + 1]:
            landed.add(t)

    def ensure(ld):
        need = src_pieces(ld)
        j = ld['x']['rd']
        if ("patched", j) in need:
            need.discard(("patched", j))
            if ("patched", j) not in landed:
                vwait({("dma", j, "E", 0)})
                patch(j)
                landed.add(("patched", j))
        for t in need:
            assert t in vm, ("DMA piece not issued before use", t, ld['x'])
        vwait(need)

    def available(ld):
        for t in src_pieces(ld):
            if t[0] != "patched" and t not in vm:
                return False
        return True

    def emit_load(ld):
        x = ld['x']
        j = x['rd']
        ensure(ld)
        if ld['kind'] == 'B':
            gamma = 8 * x['m'] - x['r']
            off = uoff0 - 64 * gamma + j * 8 * T.UP
            d = V_B + 4 * x['bslot']
            st.lds(f"ds_read_b128 v[{d}:{d + 3}], v{V_U} offset:{off}", ld['tag'])
        else:
            c = x['c']
            base = V_KB + (c >> 4) + (2 * j if T.half else 0)
            o = 16 * (c & 15)
            d = 4 * x['aslot']
            st.lds(f"ds_read2_b32 a[{d}:{d + 1}], v{base} offset0:{o} offset1:{o + 1}", (ld['tag'], 0))
            st.lds(f"ds_read2_b32 a[{d + 2}:{d + 3}], v{base} offset0:{o + 2} offset1:{o + 3}", ld['tag'])

    aux = {}

    def add_aux(i, fn):
        aux.setdefault(min(i, nM), []).append(fn)

    last_of_tile = {}
    for i, x in enumerate(mf):
        last_of_tile[(x['rd'], x['n'])] = i
    mf_pos = {}

    def vmem(lines, tag):
        for ln in lines:
            st.ins(ln)
        vm.append(tag)

    fillers = []

    def epi1(j, n, urgent):
        def fn():
            i = last_of_tile[(j, n)]
            ab = V_ACC + 4 * (n - nlo)
            qb = V_QD + 2 * (4 * j + n - nlo)
            u = 84
            pre = [f"v_or_b32 v{qb}, s69, v{qb}", f"v_or_b32 v{qb + 1}, s69, v{qb + 1}",
                   f"v_lshlrev_b32 v{u}, 16, v{qb}", f"v_and_b32 v{u + 1}, 0xffff0000, v{qb}",
                   f"v_lshlrev_b32 v{u + 2}, 16, v{qb + 1}", f"v_and_b32 v{u + 3}, 0xffff0000, v{qb + 1}"]
            post = [f"v_mul_f32 v{u}, v{u}, v{ab}", f"v_mul_f32 v{u + 1}, v{u + 1}, v{ab + 1}",
                    f"v_mul_f32 v{u + 2}, v{u + 2}, v{ab + 2}", f"v_mul_f32 v{u + 3}, v{u + 3}, v{ab + 3}",
                    f"v_cvt_pk_bf16_f32 v{u}, v{u}, v{u + 1}", f"v_cvt_pk_bf16_f32 v{u + 1}, v{u + 2}, v{u + 3}"]
            vwait({("q", j, n)})
            for t_ in pre:
                st.ins(t_)
            st.pad_since(mf_pos[i], 8)
            for t_ in post:
                st.ins(t_)
            st.lds(f"ds_write_b64 v{V_YW}, v[{u}:{u + 1}] offset:{j * 8 * T.YP + 512 * (n - nlo)}", ("Y", j, n))
        return fn

    cur = [0]

    def epi2(j, n):
        def fn():
            while fillers:
                fillers.pop(0)[1]()
            st.need({("Y", j, n)})
            st.ins("s_barrier")
            if ((n - nlo) & 1) != G:
                return
            o = j * 8 * T.YP + 512 * (n - nlo)
            t = V_E
            st.lds(f"ds_read_b64_tr_b16 v[{t}:{t + 1}], v{V_TR} offset:{o}", ("T", j, n, 0))
            st.lds(f"ds_read_b64_tr_b16 v[{t + 2}:{t + 3}], v{V_TR} offset:{o + 4 * T.YP}", ("T", j, n, 1))
            rdy = cur[0] + 4

            def fin():
                st.need({("T", j, n, 0), ("T", j, n, 1)})
                vmem([f"s_mov_b32 s68, {n * 256 * 2560 + j * 16}",
                      f"buffer_store_dwordx4 v[{t}:{t + 3}], v{V_OUT}, s[60:63], s68 offen"], ("st", j, n))
            fillers.append((rdy, fin))
        return fn

    for k_, (kind, kk) in enumerate(order[nfirst:]):
        add_aux(1 + 3 * k_, (lambda kind, kk: (lambda: vmem(dma_one(0, kind, kk), ("dma", 0, kind, kk))))(kind, kk))
    rest0 = len(order) - nfirst
    for j in range(1, J):
        start = first_idx[j - 1] + 12
        for k_, (kind, kk) in enumerate(order):
            add_aux(start + 5 * k_, (lambda j, kind, kk: (lambda: vmem(dma_one(j, kind, kk), ("dma", j, kind, kk))))(j, kind, kk))
    for j in range(J):
        for n in tiles:
            at = first_idx[j] + (2 + 3 * rest0 if j == 0 else -24) + 2 * (n - nlo)

            def mkq(j, n):
                def fn():
                    r0 = V_QD + 2 * (4 * j + n - nlo)
                    vmem([f"s_mov_b32 s14, {n * 512 + j * 32768}",
                          f"buffer_load_dwordx2 v[{r0}:{r0 + 1}], v{V_Q}, s[56:59], s14 offen"], ("q", j, n))
                return fn
            add_aux(at, mkq(j, n))

    for j in range(J):
        for n in tiles:
            i = last_of_tile[(j, n)]
            last_in_job = (n == nhi and j + 1 < J)
            add_aux(i + 1 + (0 if last_in_job else 2), epi1(j, n, last_in_job))
            add_aux(i + 1 + 8, epi2(j, n))

    stamp(a, 4, True)
    qa = [ld for ld in loads if ld['kind'] == 'A']
    qb_ = [ld for ld in loads if ld['kind'] == 'B']
    issued = set()
    issue_at = {}
    for j in range(1, J):
        for k_, (kind, kk) in enumerate(order):
            issue_at[("dma", j, kind, kk)] = first_idx[j - 1] + 12 + 5 * k_
    for k_, (kind, kk) in enumerate(order):
        issue_at[("dma", 0, kind, kk)] = -60 if k_ < nfirst else 1 + 3 * (k_ - nfirst) - 20

    def hint(t, i):
        return t in issue_at and i - issue_at[t] > 40

    def next_free(q, i):
        for ld in q:
            if id(ld) in issued:
                continue
            if ld['free'] < i and available(ld):
                if all((t in landed or t[0] == "patched" or ld['need'] - i < 24 or hint(t, i)) for t in src_pieces(ld)):
                    return ld
        return None

    def issue_loads(i, budget):
        cnt = 0
        while cnt < budget:
            cb_ = next_free(qb_, i) if len(st.q) + 1 <= st.max_out else None
            ca_ = next_free(qa, i) if len(st.q) + 2 <= st.max_out else None
            cand = None
            if cb_ is not None and (ca_ is None or cb_['need'] <= ca_['need']):
                cand = cb_
            elif ca_ is not None:
                cand = ca_
            if cand is None:
                break
            emit_load(cand)
            issued.add(id(cand))
            cnt += 2 if cand['kind'] == 'A' else 1
        return cnt

    if G == 1:
        a("s_barrier")
        for kind, kk in order[:nfirst]:
            for ln in dma_one(0, kind, kk):
                a(ln)
    if G == 1 and OPT_CPF and OPT_PF:
        nocp = a.newlabel("nocp")
        a("s_cmp_lg_u32 s3, 7")
        a(f"s_cbranch_scc1 {nocp}")
        lab = a.newlabel("pc")
        a("s_getpc_b64 s[82:83]")
        a.label(lab)
        a("v_lshlrev_b32 v94, 7, v1")
        a(f"v_min_u32 v94, L_end_{T.name}-{lab}-4, v94")
        a("global_load_dword v95, v94, s[82:83]")
        a.label(nocp)
    for kind, kk in order[:nfirst]:
        vm.append(("dma", 0, kind, kk))
    first = True
    for i, x in enumerate(mf):
        cur[0] = i
        if G == 0 and i == 1:
            st.ins("s_barrier")
        if STAMP and STEPSTAMP < 0 and i == 64:
            stamp(a, 6, True)
        if STAMP and STEPSTAMP >= 0 and x['rd'] == STEPSTAMP and (i == 0 or mf[i - 1]['m'] != x['m'] or mf[i - 1]['rd'] != x['rd']):
            a(f"s_memtime s[{ST0 + 2 * x['m']}:{ST0 + 2 * x['m'] + 1}]")
        for fn in aux.get(i, []):
            fn()
        for q_ in (qb_, qa):
            for ld in q_:
                if ld['need'] <= i and id(ld) not in issued:
                    emit_load(ld)
                    issued.add(id(ld))
        if first:
            stamp(a, 5, True)
            first = False
        nl = issue_loads(i, 4 if x['m'] == 0 else 2)
        nf = 0
        while fillers and fillers[0][0] <= i and nf < (3 if nl < 2 else 2):
            fillers.pop(0)[1]()
            nf += 1
        st.need({x['atag'], x['btag']})
        ab = V_ACC + 4 * (x['n'] - nlo)
        src_c = "0" if x['first'] else f"v[{ab}:{ab + 3}]"
        bs = V_B + 4 * x['bslot']
        st.ins(f"v_mfma_f32_16x16x32_bf16 v[{ab}:{ab + 3}], a[{4 * x['aslot']}:{4 * x['aslot'] + 3}], v[{bs}:{bs + 3}], {src_c}")
        mf_pos[i] = st.n
    stamp(a, 7, True)
    cur[0] = nM
    for fn in aux.get(nM, []):
        fn()
    while fillers:
        fillers.pop(0)[1]()
    if STAMP:
        stamp_flush(a, 8, 1)
    if G == 1:
        a.label(f"L_end_{T.name}")
    a("s_endpgm")


def emit_conv(a):
    k = "conv_kernel"
    a.raw(f".globl {k}")
    a.raw(".p2align 8")
    a.raw(f".type {k},@function")
    a.label(k)
    a("s_cmp_ge_u32 s2, 240")
    a("s_cbranch_scc1 L_conv_exit")
    stamp(a, 0, True)
    load_kernargs(a)
    if not OPT_CPF:
        code_prefetch(a, "L_conv_exit", 94, 95)
    a("v_lshrrev_b32 v2, 6, v0")
    a("v_and_b32 v1, 63, v0")
    a("s_and_b32 s6, s2, 7")
    a("v_readfirstlane_b32 s3, v2")
    a("s_lshr_b32 s7, s2, 3")
    a("s_mul_i32 s5, s6, 10")
    a("s_cmp_ge_u32 s7, 20")
    a("s_cbranch_scc1 L_T2")
    a("s_cmp_ge_u32 s7, 10")
    a("s_cselect_b32 s4, 1, 0")
    a("s_mul_i32 s8, s4, 10")
    a("s_sub_u32 s7, s7, s8")
    a("s_add_u32 s5, s5, s7")
    emit_conv_body(a, T1)
    a.label("L_T2")
    a("s_sub_u32 s7, s7, 20")
    a("s_cmp_ge_u32 s7, 5")
    a("s_cselect_b32 s4, 1, 0")
    a("s_mul_i32 s8, s4, 5")
    a("s_sub_u32 s7, s7, s8")
    a("s_lshl_b32 s7, s7, 1")
    a("s_add_u32 s5, s5, s7")
    emit_conv_body(a, T2)
    a.label("L_conv_exit")
    a("s_endpgm")


def kd(name, vgpr, sgpr, accum):
    return f""".amdhsa_kernel {name}
  .amdhsa_next_free_vgpr {vgpr}
  .amdhsa_next_free_sgpr {sgpr}
  .amdhsa_accum_offset {accum}
  .amdhsa_group_segment_fixed_size 0
  .amdhsa_kernarg_size 128
  .amdhsa_user_sgpr_count 2
  .amdhsa_user_sgpr_kernarg_segment_ptr 1
  .amdhsa_system_sgpr_workgroup_id_x 1
.end_amdhsa_kernel
"""


HEADER = open("cdna_kernels/" + NAME + ".s.ref").read().split("; Override launch geometry")[0]


def build():
    a = Asm()
    a.raw(HEADER.rstrip("\n"))
    a.raw(f"; @launch kernel=prep_kernel grid=(256,1,1) block=(896,1,1) lds={K1_LDS}")
    a.raw(f"; @launch kernel=conv_kernel grid=(240,1,1) block=(512,1,1) lds={K2_LDS}")
    a.raw('.amdgcn_target "amdgcn-amd-amdhsa--gfx950"')
    a.raw(".text")
    emit_prep(a)
    emit_conv(a)
    a.raw('.section .rodata,"a"')
    a.raw(".p2align 6")
    a.raw(kd("prep_kernel", 128, 102 if STAMP else 80, 128))
    a.raw(".p2align 6")
    a.raw(kd("conv_kernel", 256, 102 if STAMP else 84, 96))
    return a.text()


if __name__ == "__main__":
    out = sys.argv[1] if len(sys.argv) > 1 else "cdna_kernels/" + NAME + ".s"
    open(out, "w").write(build())
    print("wrote", out)
```

```python
import sys

NAME = "concat_heads__ssm_conv_s4d__ssm_conv_h3__prompt"

L = 2048
D = 640
NM = 192
ROWB = 1280
TENS = L * ROWB

WS_UT = 0
WS_KA = 1280 * 4096
WS_QT = WS_KA + 640 * 4096
WS_END = WS_QT + 640 * 4096

P_U, P_LOGA, P_AIM, P_CR, P_CI, P_LDT, P_DSK, P_Q, P_K, P_V, P_SHK, P_SSK, P_SSD, P_OUT, P_DBG, P_WS = [16 + 2 * i for i in range(16)]


import os
STAMP = bool(int(os.environ.get("STAMP", "0")))
STEPSTAMP = int(os.environ.get("STEPSTAMP", "-1"))
OPT_PRIO = int(os.environ.get("OPT_PRIO", "0"))
OPT_YLATE = int(os.environ.get("OPT_YLATE", "1"))
EPI_T2 = int(os.environ.get("EPI_T2", "60"))
EPI_T2_STEP = int(os.environ.get("EPI_T2_STEP", "10"))
OPT_SC1 = int(os.environ.get("OPT_SC1", "0"))
OPT_SKEW = int(os.environ.get("OPT_SKEW", "1"))
OPT_CPF = int(os.environ.get("OPT_CPF", "1"))
OPT_MPF = int(os.environ.get("OPT_MPF", "1"))
OPT_XMAP = int(os.environ.get("OPT_XMAP", "0"))
OPT_SCOUT = int(os.environ.get("OPT_SCOUT", "0"))
KGREP = int(os.environ.get("KGREP", "0"))
NOKGEN = int(os.environ.get("NOKGEN", "0"))
OPT_PF = int(os.environ.get("OPT_PF", "1"))
OPT_RBM = int(os.environ.get("OPT_RBM", "0"))
OPT_LATE = int(os.environ.get("OPT_LATE", "0"))


def code_prefetch(a, endlabel, vtmp, vdst):
    if not OPT_PF:
        return
    lab = a.newlabel("pc")
    a("s_getpc_b64 s[10:11]")
    a.label(lab)
    a(f"v_lshlrev_b32 v{vtmp}, 7, v0")
    a(f"v_min_u32 v{vtmp}, {endlabel}-{lab}-4, v{vtmp}")
    a(f"global_load_dword v{vdst}, v{vtmp}, s[10:11]")


WS_STAMP = 16 << 20
ST0 = 84


def stamp(a, i, k2=False):
    if STAMP and not (k2 and STEPSTAMP >= 0):
        a(f"s_memrealtime s[{ST0 + 2 * i}:{ST0 + 2 * i + 1}]")


def stamp_flush(a, n, kern):
    if not STAMP:
        return
    a("s_waitcnt lgkmcnt(0)")
    make_srd(a, 76, P_WS, WS_STAMP + (4 << 20))
    a("s_lshl_b32 s80, s2, 4")
    a("s_add_u32 s80, s80, s3")
    a("s_lshl_b32 s80, s80, 5")
    a(f"s_add_u32 s80, s80, {WS_STAMP + kern * (1 << 20)}")
    a("s_mov_b64 exec, 1")
    a("v_mov_b32 v250, s80" if False else "v_mov_b32 v9, s80")
    for i in range(n):
        a(f"v_mov_b32 v8, s{ST0 + 2 * i}")
        a(f"buffer_store_dword v8, v9, s[76:79], 0 offen offset:{4 * i}")
    a("s_mov_b64 exec, -1")


SC1 = " sc1" if OPT_SC1 else ""


class Asm:
    def __init__(self):
        self.lines = []
        self.nlab = 0

    def __call__(self, s):
        self.lines.append("    " + s)

    def raw(self, s):
        self.lines.append(s)

    def label(self, s):
        self.lines.append(s + ":")

    def c(self, s):
        self.lines.append("    ; " + s)

    def newlabel(self, base):
        self.nlab += 1
        return f"L_{base}_{self.nlab}"

    def text(self):
        return "\n".join(self.lines) + "\n"


def vr(i, n=1):
    return f"v{i}" if n == 1 else f"v[{i}:{i + n - 1}]"


def ar(i, n=1):
    return f"a{i}" if n == 1 else f"a[{i}:{i + n - 1}]"


def sr(i, n=1):
    return f"s{i}" if n == 1 else f"s[{i}:{i + n - 1}]"


def make_srd(a, dst, ptr, nbytes):
    a(f"s_mov_b32 s{dst}, s{ptr}")
    a(f"s_and_b32 s{dst + 1}, s{ptr + 1}, 0xffff")
    a(f"s_mov_b32 s{dst + 2}, {nbytes}")
    a(f"s_mov_b32 s{dst + 3}, 0x00020000")


def load_kernargs(a):
    a("s_load_dwordx16 s[16:31], s[0:1], 0")
    a("s_load_dwordx16 s[32:47], s[0:1], 64")


TW_RAWK = 0
TW_RAWV = 12288
TW_RAWU = TW_RAWV + 10240
TW_RAWQ = TW_RAWU + 10240
TW_STG = TW_RAWQ + 10240
KG_OFF = TW_STG + 5 * 5120
KG_CNT = KG_OFF + 9 * 9216
K1_LDS = KG_CNT + 64


def lds_signal(a, addr_v, one_v):
    a("s_mov_b64 exec, 1")
    a(f"ds_add_u32 v{addr_v}, v{one_v}")
    a("s_mov_b64 exec, -1")


def lds_wait_count(a, addr_v, tmp_v, tmp_s, count, name):
    spin = a.newlabel(name)
    a.label(spin)
    a(f"ds_read_b32 v{tmp_v}, v{addr_v}")
    a("s_waitcnt lgkmcnt(0)")
    a(f"v_readfirstlane_b32 s{tmp_s}, v{tmp_v}")
    a(f"s_cmp_lt_u32 s{tmp_s}, {count}")
    a(f"s_cbranch_scc1 {spin}")


def emit_tilewave(a):
    a.c("---- tile waves: workgroup tile = 32 rows x 160 channels of u, k, v ; wave w owns 32 channels ----")
    if OPT_XMAP:
        a("s_lshr_b32 s7, s2, 5")
        a("s_lshl_b32 s7, s7, 3")
        a("s_and_b32 s8, s2, 7")
        a("s_add_u32 s8, s8, s7")
        a("s_bfe_u32 s7, s2, 0x20003")
    else:
        a("s_lshr_b32 s8, s2, 2")
        a("s_and_b32 s7, s2, 3")
    a("s_mul_i32 s9, s8, 40960")
    a("s_mul_i32 s10, s7, 320")
    a("s_add_u32 s9, s9, s10")
    a("s_lshl_b32 s11, s3, 6")
    a("s_add_u32 s10, s10, s11")
    a("s_lshl_b32 s12, s3, 6")
    a("v_add_u32 v3, s12, v2")
    a("v_mul_u32_u24 v4, 52429, v3")
    a("v_lshrrev_b32 v4, 20, v4")
    a("v_mul_u32_u24 v5, 20, v4")
    a("v_sub_u32 v5, v3, v5")
    a("v_mul_u32_u24 v6, 1280, v4")
    a("v_lshl_add_u32 v6, v5, 4, v6")
    a("v_add_u32 v5, s9, v6")
    a("v_add_u32 v6, 20480, v5")
    a("v_subrev_u32 v7, 5120, v5")
    a("s_lshl_b32 s12, s3, 10")
    a("s_waitcnt lgkmcnt(0)")
    stamp(a, 1)
    make_srd(a, 48, P_U, TENS)
    make_srd(a, 52, P_K, TENS)
    make_srd(a, 56, P_V, TENS)
    make_srd(a, 60, P_SHK, 640 * 8)
    make_srd(a, 72, P_Q, TENS)
    a("v_bfe_u32 v8, v2, 4, 1")
    a("v_and_b32 v10, 15, v2")
    a("v_lshl_add_u32 v11, v8, 4, v10")
    a("s_lshl_b32 s13, s10, 2")
    a("v_lshl_add_u32 v12, v11, 3, s13")
    a("s_barrier")
    a("buffer_load_dwordx2 v[40:41], v12, s[60:63], 0 offen")
    a(f"s_add_u32 m0, s12, {TW_RAWK + 1280}")
    a("s_nop 0")
    a("buffer_load_dwordx4 v5, s[52:55], 0 offen lds")
    a(f"s_add_u32 m0, s12, {TW_RAWK + 1280 + 5120}")
    a("s_nop 0")
    a("buffer_load_dwordx4 v6, s[52:55], 0 offen lds")
    nohalo = a.newlabel("nohalo")
    a("s_cmp_gt_u32 s3, 1")
    a(f"s_cbranch_scc1 {nohalo}")
    a("s_cmp_eq_u32 s3, 0")
    a("s_cselect_b32 exec_hi, -1, 0")
    a("s_cselect_b32 exec_lo, -1, 0xffff")
    a(f"s_add_u32 m0, s12, {TW_RAWK}")
    a("s_nop 0")
    a("buffer_load_dwordx4 v7, s[52:55], 0 offen lds")
    a("s_mov_b64 exec, -1")
    a.label(nohalo)
    for srd, base in ((56, TW_RAWV), (48, TW_RAWU), (72, TW_RAWQ)):
        a(f"s_add_u32 m0, s12, {base}")
        a("s_nop 0")
        a(f"buffer_load_dwordx4 v5, s[{srd}:{srd + 3}], 0 offen lds")
        a(f"s_add_u32 m0, s12, {base + 5120}")
        a("s_nop 0")
        a(f"buffer_load_dwordx4 v6, s[{srd}:{srd + 3}], 0 offen lds")
    stamp(a, 2)
    a("v_lshrrev_b32 v3, 2, v2")
    a("v_and_b32 v4, 3, v2")
    a("v_bfe_u32 v8, v2, 4, 1")
    a("v_lshrrev_b32 v9, 5, v2")
    a("v_and_b32 v10, 15, v2")
    a("v_lshl_add_u32 v11, v8, 4, v10")
    make_srd(a, 64, P_WS, WS_END)
    a("v_and_b32 v13, 3, v3")
    a("v_sub_u32 v13, 3, v13")
    a("v_lshl_add_u32 v13, v9, 2, v13")
    a("v_mul_u32_u24 v13, 320, v13")
    a("v_lshl_add_u32 v13, v8, 5, v13")
    a("v_lshl_add_u32 v13, v4, 3, v13")
    a("v_add_u32 v13, s11, v13")
    a("s_mul_i32 s12, s3, 5120")
    a(f"s_add_u32 s12, s12, {TW_STG}")
    a("v_mul_u32_u24 v14, 80, v11")
    a("v_lshlrev_b32 v15, 3, v9")
    a("v_sub_u32 v14, v14, v15")
    a("s_add_u32 s13, s12, 8")
    a("v_add_u32 v14, s13, v14")
    a("v_mul_u32_u24 v15, 80, v3")
    a("v_lshl_add_u32 v15, v4, 4, v15")
    a("v_add_u32 v15, s12, v15")
    a("s_lshl_b32 s13, s10, 11")
    a("s_lshl_b32 s14, s8, 6")
    a("s_sub_u32 s13, s13, s14")
    a("s_add_u32 s13, s13, 4032")
    a("v_lshlrev_b32 v16, 12, v3")
    a("v_lshl_add_u32 v16, v4, 4, v16")
    a("v_add_u32 v16, s13, v16")
    a(f"v_mov_b32 v36, {KG_CNT + 12}")
    a("v_mov_b32 v37, 1")
    if OPT_SCOUT:
        a("s_mov_b32 s70, 0")
        a("s_mov_b64 exec, 0")
        for w_, nm in enumerate(("K0", "K1", "K2", "K3", "K4")):
            a(f"s_cmp_eq_u32 s3, {w_}")
            a(f"s_cbranch_scc1 L_sc_{nm}")
        a.label("L_scout_ret")
        a("s_add_u32 s70, s70, 1")
        a("s_cmp_eq_u32 s70, 1")
        a("s_cbranch_scc0 L_scout_p2")
        a("s_cmp_eq_u32 s3, 0")
        a("s_cbranch_scc1 L_sc_F0")
        a("s_cmp_eq_u32 s3, 1")
        a("s_cbranch_scc1 L_sc_F1")
        a("s_add_u32 s70, s70, 1")
        a.label("L_scout_p2")
        a("s_cmp_eq_u32 s70, 2")
        a("s_cbranch_scc1 L_tproc")
        a("s_mov_b64 exec, -1")
    a("s_setprio 2")
    a("s_waitcnt vmcnt(2)")
    lds_signal(a, 36, 37)
    stamp(a, 3)
    if OPT_MPF:
        nopf = a.newlabel("nopf")
        a("s_cmp_ge_u32 s3, 2")
        a(f"s_cbranch_scc1 {nopf}")
        a(f"s_mov_b32 s68, s{P_SSK}")
        a(f"s_mov_b32 s69, s{P_SSK + 1}")
        a("s_and_b32 s69, s69, 0xffff")
        a(f"s_mov_b32 s70, {TENS}")
        a("s_mov_b32 s71, 0x00020000")
        a("s_mul_i32 s15, s2, 10240")
        a("s_and_b32 s14, s3, 1")
        a("s_lshl_b32 s14, s14, 13")
        a("s_add_u32 s15, s15, s14")
        a("v_lshlrev_b32 v39, 7, v2")
        a("v_add_u32 v39, s15, v39")
        a("s_and_b32 s14, s3, 1")
        a("s_cmp_eq_u32 s14, 1")
        a("s_cselect_b32 exec_lo, 0xffff, -1")
        a("s_cselect_b32 exec_hi, 0, -1")
        a("buffer_load_dword v45, v39, s[68:71], 0 offen")
        a("s_mov_b64 exec, -1")
        a.label(nopf)
        if OPT_CPF:
            nocp = a.newlabel("nocp")
            a("s_cmp_lg_u32 s3, 4")
            a(f"s_cbranch_scc1 {nocp}")
            a("s_cmp_ge_u32 s2, 8")
            a(f"s_cbranch_scc1 {nocp}")
            lab = a.newlabel("pc")
            a("s_getpc_b64 s[68:69]")
            a.label(lab)
            a("v_lshlrev_b32 v39, 7, v2")
            a(f"v_add_u32 v39, conv_kernel-{lab}, v39")
            for k_ in range(3):
                a(f"v_min_u32 v46, L_conv_exit-{lab}, v39")
                a("global_load_dword v45, v46, s[68:69]")
                a("v_add_u32 v39, 8192, v39")
            a.label(nocp)
    a("v_alignbit_b32 v42, v41, v40, 16")
    a("v_lshlrev_b32 v43, 16, v40")
    a("v_lshrrev_b32 v44, 16, v41")
    lds_wait_count(a, 36, 38, 14, 5, "tile_spin")
    a.label("L_tproc")
    for j in range(4):
        a(f"ds_read_b64_tr_b16 v[{18 + 2 * j}:{19 + 2 * j}], v13 offset:{TW_RAWK + 1280 + 2560 * j}")
        a(f"ds_read_b64_tr_b16 v[{26 + 2 * j}:{27 + 2 * j}], v13 offset:{TW_RAWK + 2560 * j}")
        a(f"ds_read_b64_tr_b16 v[{46 + 2 * j}:{47 + 2 * j}], v13 offset:{TW_RAWV + 2560 * j}")
    for j in range(3):
        a(f"ds_read_b64_tr_b16 v[{54 + 2 * j}:{55 + 2 * j}], v13 offset:{TW_RAWU + 2560 * j}")
    for j in range(4):
        kc, kp, vv = 18 + 2 * j, 26 + 2 * j, 46 + 2 * j
        t = 64 + 10 * (j & 1)
        a(f"s_waitcnt lgkmcnt({12 - 3 * j})")
        if j == 0:
            a(f"ds_read_b64_tr_b16 v[60:61], v13 offset:{TW_RAWU + 2560 * 3}")
        a(f"v_dot2_f32_bf16 v{t + 0}, v{kc}, v40, 0")
        a(f"v_dot2_f32_bf16 v{t + 1}, v{kc}, v43, 0")
        a(f"v_dot2_f32_bf16 v{t + 2}, v{kc + 1}, v40, 0")
        a(f"v_dot2_f32_bf16 v{t + 3}, v{kc + 1}, v43, 0")
        a(f"v_dot2_f32_bf16 v{t + 0}, v{kc + 1}, v41, v{t + 0}")
        a(f"v_dot2_f32_bf16 v{t + 1}, v{kc + 1}, v42, v{t + 1}")
        a(f"v_dot2_f32_bf16 v{t + 2}, v{kp}, v41, v{t + 2}")
        a(f"v_dot2_f32_bf16 v{t + 3}, v{kp}, v42, v{t + 3}")
        a(f"v_dot2_f32_bf16 v{t + 1}, v{kp}, v44, v{t + 1}")
        a(f"v_dot2_f32_bf16 v{t + 3}, v{kp + 1}, v44, v{t + 3}")
        a(f"v_lshlrev_b32 v{t + 4}, 16, v{vv}")
        a(f"v_and_b32 v{t + 5}, 0xffff0000, v{vv}")
        a(f"v_lshlrev_b32 v{t + 6}, 16, v{vv + 1}")
        a(f"v_and_b32 v{t + 7}, 0xffff0000, v{vv + 1}")
        a(f"v_mul_f32 v{t + 0}, v{t + 0}, v{t + 4}")
        a(f"v_mul_f32 v{t + 1}, v{t + 1}, v{t + 5}")
        a(f"v_mul_f32 v{t + 2}, v{t + 2}, v{t + 6}")
        a(f"v_mul_f32 v{t + 3}, v{t + 3}, v{t + 7}")
        a(f"v_cvt_pk_bf16_f32 v{t + 8}, v{t + 0}, v{t + 1}")
        a(f"v_cvt_pk_bf16_f32 v{t + 9}, v{t + 2}, v{t + 3}")
        a(f"ds_write_b64 v14, v[{t + 8}:{t + 9}] offset:{2560 + 16 * (3 - j)}")
    a("s_waitcnt lgkmcnt(4)")
    for j in range(4):
        a(f"ds_write_b64 v14, v[{54 + 2 * j}:{55 + 2 * j}] offset:{16 * (3 - j)}")
    a("s_waitcnt lgkmcnt(0)")
    for i in range(2):
        a(f"ds_read_b128 v[{18 + 4 * i}:{21 + 4 * i}], v15 offset:{2560 + 1280 * i}")
    for i in range(2):
        a(f"ds_read_b128 v[{26 + 4 * i}:{29 + 4 * i}], v15 offset:{1280 * i}")
    a(f"v_add_u32 v17, {640 * 4096}, v16")
    a("v_add_u32 v34, 65536, v17")
    a("v_add_u32 v35, 65536, v16")
    scout(a, None)
    a("s_waitcnt lgkmcnt(3)")
    a("buffer_store_dwordx4 v[18:21], v17, s[64:67], 0 offen" + SC1)
    a("s_waitcnt lgkmcnt(2)")
    a("buffer_store_dwordx4 v[22:25], v34, s[64:67], 0 offen" + SC1)
    a("s_waitcnt lgkmcnt(1)")
    a("buffer_store_dwordx4 v[26:29], v16, s[64:67], 0 offen" + SC1)
    a("s_waitcnt lgkmcnt(0)")
    a("buffer_store_dwordx4 v[30:33], v35, s[64:67], 0 offen" + SC1)
    a("s_waitcnt vmcnt(4)")
    a(f"v_mov_b32 v36, {KG_CNT + 16}")
    lds_signal(a, 36, 37)
    lds_wait_count(a, 36, 38, 14, 5, "tileq_spin")
    a("v_and_b32 v46, 3, v3")
    a("v_lshlrev_b32 v47, 1, v46")
    a("v_subrev_u32 v47, 3, v47")
    a("v_mul_i32_i24 v47, 320, v47")
    a("v_add_u32 v47, v13, v47")
    for j in range(4):
        a(f"ds_read_b64_tr_b16 v[{54 + 2 * j}:{55 + 2 * j}], v47 offset:{TW_RAWQ + 2560 * j}")
    a("v_lshlrev_b32 v48, 4, v9")
    a("v_add_u32 v48, v14, v48")
    a("v_subrev_u32 v48, 8, v48")
    a("s_lshl_b32 s14, s8, 7")
    a(f"s_add_u32 s14, s14, {WS_QT - 4032}")
    a("v_add_u32 v49, s14, v16")
    a("v_add_u32 v50, 65536, v49")
    a("s_waitcnt lgkmcnt(0)")
    for j in range(4):
        a(f"ds_write_b64 v48, v[{54 + 2 * j}:{55 + 2 * j}] offset:{16 * j}")
    a("s_waitcnt lgkmcnt(0)")
    for i in range(2):
        a(f"ds_read_b128 v[{64 + 4 * i}:{67 + 4 * i}], v15 offset:{1280 * i}")
    a("s_waitcnt lgkmcnt(1)")
    a("buffer_store_dwordx4 v[64:67], v49, s[64:67], 0 offen" + SC1)
    a("s_waitcnt lgkmcnt(0)")
    a("buffer_store_dwordx4 v[68:71], v50, s[64:67], 0 offen" + SC1)
    if STAMP:
        stamp(a, 4)
        a("s_waitcnt vmcnt(0)")
        stamp(a, 5)
        stamp_flush(a, 6, 0)
    a("s_endpgm")


LOG2E = 0x3fb8aa3b
INV2PI = 0x3e22f983


def cmul(a, d, x, y, t):
    a(f"v_pk_mul_f32 v[{t}:{t + 1}], v[{x}:{x + 1}], v[{y}:{y + 1}] op_sel:[0,0] op_sel_hi:[0,1]")
    a(f"v_pk_fma_f32 v[{d}:{d + 1}], v[{x}:{x + 1}], v[{y}:{y + 1}], v[{t}:{t + 1}] op_sel:[1,1,0] op_sel_hi:[1,0,1] neg_lo:[0,1,0]")


KG_BUF = 4608
KG_WAVE = 2 * KG_BUF


def scout(a, entry):
    if OPT_SCOUT:
        a("s_cbranch_execz L_scout_ret")
        if entry:
            a.label("L_sc_" + entry)


def scout_entry(a, entry):
    if OPT_SCOUT:
        a.label("L_sc_" + entry)


def emit_kgen_issue(a):
    a.c("---- kgen waves: issue parameter loads as early as possible ----")
    a("s_sub_u32 s6, s3, 5")
    a("s_mul_i32 s7, s6, 43")
    a("s_lshr_b32 s7, s7, 7")
    a("s_mov_b32 s67, s7")
    a("s_mul_i32 s4, s7, 3")
    a("s_sub_u32 s4, s6, s4")
    a("s_lshr_b32 s5, s2, 1")
    a("s_mul_i32 s5, s5, 5")
    a("s_and_b32 s8, s2, 1")
    a("s_mul_i32 s9, s8, 3")
    a("s_add_u32 s5, s5, s9")
    a("s_add_u32 s5, s5, s7")
    a("s_lshr_b32 s9, s7, 1")
    a("s_and_b32 s9, s9, s8")
    a("s_cmp_eq_u32 s9, 1")
    a("s_cbranch_scc1 L_prep_exit")
    a("s_mul_i32 s9, s5, 384")
    a("s_lshl_b32 s7, s4, 7")
    a("s_add_u32 s9, s9, s7")
    a("v_lshl_add_u32 v3, v2, 1, s9")
    for r in range(10, 14):
        a(f"v_mov_b32 v{r}, 0")
    a("s_lshl_b32 s7, s5, 1")
    a("s_and_b32 s7, s7, 0xfffffffc")
    a("s_mov_b32 s50, 245760")
    a("s_mov_b32 s51, 0x00020000")
    a("s_mov_b32 s54, 245760")
    a("s_mov_b32 s55, 0x00020000")
    a("s_mov_b32 s58, 245760")
    a("s_mov_b32 s59, 0x00020000")
    a("s_mov_b32 s62, 245760")
    a("s_mov_b32 s63, 0x00020000")
    a("v_lshlrev_b32 v4, 2, v2")
    a(f"v_add_u32 v4, {KG_CNT}, v4")
    a("v_mov_b32 v5, 0")
    a("s_mov_b64 exec, 31")
    a("ds_write_b32 v4, v5")
    a("s_mov_b64 exec, -1")
    a("s_waitcnt lgkmcnt(0)")
    stamp(a, 1)
    for srd, p, dst in ((48, P_LOGA, 10), (52, P_AIM, 11), (56, P_CR, 12), (60, P_CI, 13)):
        a(f"s_mov_b32 s{srd}, s{p}")
        a(f"s_and_b32 s{srd + 1}, s{p + 1}, 0xffff")
        a(f"buffer_load_short_d16_hi v{dst}, v3, s[{srd}:{srd + 3}], 0 offen")
    a("s_barrier")
    a(f"s_load_dword s64, s[{P_LDT}:{P_LDT + 1}], s7")
    a(f"s_load_dword s65, s[{P_DSK}:{P_DSK + 1}], s7")
    if KGREP:
        a(f"s_mov_b32 s68, {KGREP}")
    a("s_branch L_kgen")


def emit_kgen(a):
    a.c("---- S4D kernel generation: 64 modes per wave ----")
    a(f"s_mul_i32 s8, s6, {KG_WAVE}")
    a(f"s_add_u32 s8, s8, {KG_OFF}")
    make_srd(a, 72, P_WS, WS_END)
    a("s_mov_b32 m0, s8")
    a("v_and_b32 v5, 15, v2")
    a("v_lshrrev_b32 v6, 4, v2")
    a("v_mul_u32_u24 v7, 288, v5")
    a("v_lshl_add_u32 v7, v6, 4, v7")
    a("v_add_u32 v7, s8, v7")
    a("v_lshlrev_b32 v8, 4, v2")
    a("v_add_u32 v9, s8, v8")
    a("v_lshlrev_b32 v60, 4, v5")
    a("v_add_u32 v60, s8, v60")
    a("v_and_b32 v61, 1, v6")
    a("v_lshrrev_b32 v62, 1, v6")
    a("v_lshl_add_u32 v56, v61, 3, v60")
    a("v_lshl_add_u32 v56, v62, 8, v56")
    a("v_lshl_add_u32 v57, v6, 8, v60")
    a("v_add_u32 v57, 512, v57")
    a("v_lshl_add_u32 v58, v6, 9, v60")
    a("v_cmp_gt_u32 vcc, 2, v6")
    a("v_mov_b32 v61, 8")
    a("v_mov_b32 v62, 4")
    a("v_cndmask_b32 v57, v58, v57, vcc")
    a("v_cndmask_b32 v61, v61, v62, vcc")
    a("v_add_u32 v58, v57, v61")
    a("v_mov_b32 v61, 256")
    a("v_mov_b32 v62, 8")
    a("v_cndmask_b32 v61, v61, v62, vcc")
    a("v_add_u32 v59, v57, v61")
    a("v_mov_b32 v61, 264")
    a("v_mov_b32 v62, 12")
    a("v_cndmask_b32 v61, v61, v62, vcc")
    a("v_add_u32 v124, v57, v61")
    a("v_lshl_add_u32 v61, v6, 10, v60")
    a("v_add_u32 v61, 2048, v61")
    a("v_lshlrev_b32 v62, 1, v2")
    a("v_add_u32 v62, s8, v62")
    a("v_add_u32 v62, 5120, v62")
    a("v_cndmask_b32 v126, v62, v61, vcc")
    a("v_cmp_gt_u32 vcc, 3, v6")
    a("s_nop 1")
    a("v_cndmask_b32 v125, v62, v61, vcc")
    a("v_and_b32 v60, 1, v2")
    a("v_cmp_eq_u32 vcc, 1, v60")
    a("v_mov_b32 v61, 0x05040100")
    a("v_mov_b32 v62, 0x05040504")
    a("v_cndmask_b32 v127, v61, v62, vcc")
    a("s_mul_i32 s6, s5, 4096")
    a(f"s_add_u32 s6, s6, {WS_KA}")
    a("v_add_u32 v63, s6, v8")
    a("s_mov_b32 s12, 0x01000100")
    a("s_mov_b32 s13, 0x05040100")
    a(f"s_mov_b32 s9, {LOG2E:#x}")
    a(f"s_mov_b32 s10, {INV2PI:#x}")
    (stamp(a, 2) if not KGREP else None)
    a("s_waitcnt lgkmcnt(0)")
    a("s_and_b32 s66, s5, 1")
    a("s_lshl_b32 s66, s66, 4")
    a("s_lshr_b32 s64, s64, s66")
    a("s_lshl_b32 s64, s64, 16")
    a("s_lshr_b32 s65, s65, s66")
    a("s_lshl_b32 s65, s65, 16")
    a("v_mov_b32 v14, s64")
    a("v_mov_b32 v15, s65")
    a("v_cmp_eq_u32 vcc, 0, v2")
    a("s_nop 1")
    a("v_cndmask_b32 v15, 0, v15, vcc")
    a("v_cmp_gt_u32 vcc, 32, v2")
    a("s_waitcnt vmcnt(0)")
    if KGREP:
        a("v_mov_b32 v56, v10")
        a("v_mov_b32 v57, v11")
        a("v_mov_b32 v58, v12")
        a("v_mov_b32 v59, v13")
        a.label("L_kg_again")
        a("v_mov_b32 v10, v56")
        a("v_mov_b32 v11, v57")
        a("v_mov_b32 v12, v58")
        a("v_mov_b32 v13, v59")
        a("v_mov_b32 v14, s64")
        a("s_cmp_eq_u32 s68, %d" % KGREP)
        a("s_cbranch_scc0 L_kg_n1")
        a("s_memrealtime s[86:87]")
        a("s_memtime s[88:89]")
        a.label("L_kg_n1")
        a("s_cmp_eq_u32 s68, %d" % (KGREP - 1))
        a("s_cbranch_scc0 L_kg_n2")
        a("s_memrealtime s[90:91]")
        a("s_memtime s[92:93]")
        a.label("L_kg_n2")
        a("s_cmp_eq_u32 s68, %d" % (KGREP - 2))
        a("s_cbranch_scc0 L_kg_n3")
        a("s_memrealtime s[94:95]")
        a("s_memtime s[96:97]")
        a.label("L_kg_n3")
    (stamp(a, 3) if not KGREP else None)
    a("s_setprio 0")
    scout_entry(a, "K0")
    a("v_mul_f32 v14, s9, v14")
    a("v_mul_f32 v10, s9, v10")
    a("v_exp_f32 v14, v14")
    a("v_exp_f32 v10, v10")
    a("s_nop 0")
    a("v_cvt_pk_bf16_f32 v14, v14, v10")
    a("v_and_b32 v10, 0xffff0000, v14")
    a("v_lshlrev_b32 v14, 16, v14")
    a("v_mul_f32 v10, v10, v14")
    a("v_mul_f32 v11, v11, v14")
    a("v_add_f32 v14, v14, v14")
    a("v_mul_f32 v16, v12, v14")
    a("v_mul_f32 v17, v13, v14")
    a("v_mul_f32 v10, s9, v10")
    a("v_sub_f32 v10, 0, v10")
    a("v_mul_f32 v11, s10, v11")
    def cexp(dst, scale):
        t0, t1, t2 = 24, 25, 26
        if scale == 1:
            a(f"v_mov_b32 v{t0}, v10")
            a(f"v_mov_b32 v{t1}, v11")
        else:
            a(f"v_mul_f32 v{t0}, {f32hex(scale)}, v10")
            a(f"v_mul_f32 v{t1}, {f32hex(scale)}, v11")
        a(f"v_rndne_f32 v{t2}, v{t1}")
        a(f"v_exp_f32 v{t0}, v{t0}")
        a(f"v_sub_f32 v{t1}, v{t1}, v{t2}")
        a(f"v_cos_f32 v{t2}, v{t1}")
        a(f"v_sin_f32 v{t1}, v{t1}")
        a("s_nop 0")
        a(f"v_mul_f32 v{dst}, v{t0}, v{t2}")
        a(f"v_mul_f32 v{dst + 1}, v{t0}, v{t1}")
    cexp(18, 1)
    cexp(20, 8)
    cexp(22, 128)
    E1, E8, E128, C2 = 18, 20, 22, 16
    TMP = [24, 26, 28, 30]
    R = [32 + 2 * j for j in range(8)]
    EJ, YB = 48, 50
    CV = [52, 53, 54, 55]
    def wr_row(src, buf, row, negim, cv):
        neg = "-" if negim else ""
        a(f"v_cvt_pk_bf16_f32 v{cv}, v{src}, {neg}v{src + 1}")
        a(f"ds_write_addtid_b32 v{cv} offset:{buf * KG_BUF + row * 288}")

    a("v_mov_b32 v52, 0x3f80")
    a("ds_write_addtid_b32 v52 offset:0")
    wr_row(E8, 0, 1, True, 53)
    a(f"v_mov_b32 v{R[0]}, v{C2}")
    a(f"v_mov_b32 v{R[0] + 1}, v{C2 + 1}")
    ycur = E8
    for b in range(2, 16):
        if b == 3:
            scout(a, "K1")
        if b == 10:
            scout(a, "K2")
        src = ycur
        cmul_y = (YB, src, E8, TMP[0])
        if b - 1 <= 7:
            j = b - 1
            a(f"v_pk_mul_f32 v[{TMP[0]}:{TMP[0] + 1}], v[{src}:{src + 1}], v[{E8}:{E8 + 1}] op_sel:[0,0] op_sel_hi:[0,1]")
            a(f"v_pk_mul_f32 v[{TMP[1]}:{TMP[1] + 1}], v[{R[j - 1]}:{R[j - 1] + 1}], v[{E1}:{E1 + 1}] op_sel:[0,0] op_sel_hi:[0,1]")
            a(f"v_pk_fma_f32 v[{YB}:{YB + 1}], v[{src}:{src + 1}], v[{E8}:{E8 + 1}], v[{TMP[0]}:{TMP[0] + 1}] op_sel:[1,1,0] op_sel_hi:[1,0,1] neg_lo:[0,1,0]")
            a(f"v_pk_fma_f32 v[{R[j]}:{R[j] + 1}], v[{R[j - 1]}:{R[j - 1] + 1}], v[{E1}:{E1 + 1}], v[{TMP[1]}:{TMP[1] + 1}] op_sel:[1,1,0] op_sel_hi:[1,0,1] neg_lo:[0,1,0]")
            wr_row(R[j - 1], 1, j - 1, False, 54)
        else:
            cmul(a, YB, src, E8, TMP[0])
            j = b - 9
            if j == 0:
                wr_row(R[7], 1, 7, False, 54)
            cmul(a, R[j], R[j], E128, TMP[1])
            wr_row(R[j], 1, 8 + j, False, 54)
        wr_row(YB, 0, b, True, 53)
        ycur = YB
    cmul(a, R[7], R[7], E128, TMP[1])
    wr_row(R[7], 1, 15, False, 54)
    scout(a, "K3")
    YOP, XOP, ACC = 64, 80, 96
    a("s_waitcnt lgkmcnt(0)")
    for ks in range(4):
        a(f"ds_read_b128 v[{YOP + 4 * ks}:{YOP + 4 * ks + 3}], v7 offset:{64 * ks}")
    for ks in range(4):
        a(f"ds_read_b128 v[{XOP + 4 * ks}:{XOP + 4 * ks + 3}], v7 offset:{KG_BUF + 64 * ks}")
    for idx, j in enumerate([0, 2, 4, 6]):
        cmul(a, R[j], R[j], E128, TMP[idx % 4])
    a("s_waitcnt lgkmcnt(4)")
    for idx, j in enumerate([0, 2, 4, 6]):
        wr_row(R[j], 0, idx, False, CV[idx])
    for idx, j in enumerate([0, 2, 4, 6]):
        cmul(a, R[j], R[j], E128, TMP[idx % 4])
    a("s_waitcnt lgkmcnt(4)")
    for ks in range(4):
        c = "0" if ks == 0 else f"v[{ACC}:{ACC + 3}]"
        a(f"v_mfma_f32_16x16x32_bf16 v[{ACC}:{ACC + 3}], v[{XOP + 4 * ks}:{XOP + 4 * ks + 3}], v[{YOP + 4 * ks}:{YOP + 4 * ks + 3}], {c}")
    for idx, j in enumerate([0, 2, 4, 6]):
        wr_row(R[j], 0, 4 + idx, False, CV[idx])
    scout(a, "K4")
    for aa in range(4):
        for idx, j in enumerate([0, 4]):
            cmul(a, R[j], R[j], E128, TMP[idx])
        for idx, j in enumerate([0, 4]):
            wr_row(R[j], 0, 8 + 2 * aa + idx, False, CV[(2 * aa + idx) % 4])
    for aa in range(9):
        cmul(a, R[0], R[0], E128, TMP[aa % 2])
        wr_row(R[0], 1, aa, False, CV[aa % 4])
    a("s_waitcnt lgkmcnt(9)")
    for ks in range(4):
        a(f"ds_read_b128 v[{XOP + 4 * ks}:{XOP + 4 * ks + 3}], v7 offset:{64 * ks}")
    a("s_waitcnt lgkmcnt(0)")
    for ks in range(4):
        c = "0" if ks == 0 else f"v[{ACC + 4}:{ACC + 7}]"
        a(f"v_mfma_f32_16x16x32_bf16 v[{ACC + 4}:{ACC + 7}], v[{XOP + 4 * ks}:{XOP + 4 * ks + 3}], v[{YOP + 4 * ks}:{YOP + 4 * ks + 3}], {c}")
    XO2 = 108
    for ks in range(4):
        a(f"ds_read_b128 v[{XO2 + 4 * ks}:{XO2 + 4 * ks + 3}], v7 offset:{KG_BUF + 64 * ks}")
    a("s_waitcnt lgkmcnt(0)")
    for ks in range(4):
        c = "0" if ks == 0 else f"v[{ACC + 8}:{ACC + 11}]"
        a(f"v_mfma_f32_16x16x32_bf16 v[{ACC + 8}:{ACC + 11}], v[{XO2 + 4 * ks}:{XO2 + 4 * ks + 3}], v[{YOP + 4 * ks}:{YOP + 4 * ks + 3}], {c}")
    if KGREP:
        a("s_nop 7")
        a("s_nop 7")
        a("s_sub_u32 s68, s68, 1")
        a("s_cmp_gt_u32 s68, 0")
        a("s_cbranch_scc1 L_kg_again")
        a("s_memrealtime s[98:99]")
    scout(a, None)
    a("s_nop 7")
    a("s_nop 1")
    done = a.newlabel("kg_w0")
    a("s_cmp_eq_u32 s4, 0")
    a(f"s_cbranch_scc1 {done}")
    for t in range(3):
        a(f"ds_write_b128 v9, v[{ACC + 4 * t}:{ACC + 4 * t + 3}] offset:{1024 * t}")
    a("s_lshl_b32 s15, s67, 2")
    a(f"s_add_u32 s15, s15, {KG_CNT}")
    a("v_mov_b32 v10, s15")
    a("v_mov_b32 v11, 1")
    a("s_waitcnt lgkmcnt(0)")
    lds_signal(a, 10, 11)
    if STAMP:
        (stamp(a, 4) if not KGREP else None)
        (stamp(a, 5) if not KGREP else None)
        stamp_flush(a, 8, 0)
    a("s_endpgm")
    a.label(done)
    a("s_lshl_b32 s15, s67, 2")
    a(f"s_add_u32 s15, s15, {KG_CNT}")
    a("v_mov_b32 v10, s15")
    lds_wait_count(a, 10, 11, 14, 2, "kg_spin")
    (stamp(a, 4) if not KGREP else None)
    scout_entry(a, "F0")
    for wv in (1, 2):
        for t in range(3):
            a(f"ds_read_b128 v[{32 + 12 * (wv - 1) + 4 * t}:{35 + 12 * (wv - 1) + 4 * t}], v9 offset:{wv * KG_WAVE + 1024 * t}")
    a("s_waitcnt lgkmcnt(0)")
    for i in range(12):
        a(f"v_add_f32 v{ACC + i}, v{ACC + i}, v{32 + i}")
    for i in range(12):
        a(f"v_add_f32 v{ACC + i}, v{ACC + i}, v{44 + i}")
    a(f"v_add_f32 v{ACC}, v{ACC}, v15")
    for i in range(6):
        a(f"v_cvt_pk_bf16_f32 v{56 + i - 24}, v{ACC + 2 * i}, v{ACC + 2 * i + 1}")
    scout(a, "F1")
    a("ds_write_b16 v56, v32 offset:0")
    a("ds_write_b16_d16_hi v56, v32 offset:2")
    a("ds_write_b16 v56, v33 offset:4")
    a("ds_write_b16_d16_hi v56, v33 offset:6")
    a("ds_write_b16 v57, v34")
    a("ds_write_b16_d16_hi v58, v34")
    a("ds_write_b16 v59, v35")
    a("ds_write_b16_d16_hi v124, v35")
    a("ds_write_b16 v125, v36 offset:0")
    a("ds_write_b16_d16_hi v126, v36 offset:256")
    a("ds_write_b16 v126, v37 offset:512")
    a("ds_write_b16_d16_hi v126, v37 offset:768")
    a("s_waitcnt lgkmcnt(0)")
    SL = [40, 48, 64, 70]
    for s in range(4):
        a(f"ds_read_b128 v[{SL[s]}:{SL[s] + 3}], v9 offset:{1024 * s}")
        a(f"ds_read_b32 v{SL[s] + 4}, v9 offset:{1024 * s + 16}")
    a("s_waitcnt lgkmcnt(0)")
    def perm(d, s0, s1, sel):
        a(f"v_perm_b32 v{d}, v{s0}, v{s1}, {sel}")
    perm(76, 40, 40, "s12"); perm(77, 42, 41, "s13"); perm(78, 42, 42, "s12"); perm(79, 44, 43, "s13")
    for i in range(4):
        a(f"v_cndmask_b32 v{76 + i}, v{76 + i}, v{40 + i}, vcc")
    perm(80, 48, 48, "s12"); perm(81, 50, 48, "s13"); perm(82, 50, 50, "s12"); perm(83, 52, 52, "s12")
    for s_, o in ((2, 84), (3, 88)):
        d0, d4 = SL[s_], SL[s_] + 4
        perm(o, d0, d0, "s12"); perm(o + 1, d0, d0, "s12"); perm(o + 2, d4, d0, "v127"); perm(o + 3, d4, d4, "s12")
    scout(a, None)
    for s_, o in ((0, 76), (1, 80), (2, 84), (3, 88)):
        a(f"buffer_store_dwordx4 v[{o}:{o + 3}], v63, s[72:75], 0 offen offset:{1024 * s_}" + SC1)
    if STAMP:
        a("s_waitcnt vmcnt(0)")
        (stamp(a, 5) if not KGREP else None)
        stamp_flush(a, 8, 0)
    a("s_endpgm")


def f32hex(x):
    import struct
    return hex(struct.unpack("<I", struct.pack("<f", float(x)))[0])


def emit_prep(a):
    k = "prep_kernel"
    a.raw(f".globl {k}")
    a.raw(".p2align 8")
    a.raw(f".type {k},@function")
    a.label(k)
    a("s_cmp_ge_u32 s2, 256")
    a("s_cbranch_scc1 L_prep_exit")
    stamp(a, 0)
    load_kernargs(a)
    code_prefetch(a, "L_prep_exit", 120, 121)
    a("v_lshrrev_b32 v1, 6, v0")
    a("v_and_b32 v2, 63, v0")
    a("s_nop 0")
    a("v_readfirstlane_b32 s3, v1")
    a("s_mov_b32 s4, 0x9b436210")
    a("s_mov_b32 s5, 0xa7cd85")
    a("s_lshl_b32 s3, s3, 2")
    a("s_lshr_b64 s[4:5], s[4:5], s3")
    a("s_and_b32 s3, s4, 15")
    a("s_cmp_lt_u32 s3, 5")
    a("s_cbranch_scc1 L_tile")
    if NOKGEN:
        a("s_endpgm")
    a("s_setprio 3")
    emit_kgen_issue(a)
    a.label("L_tile")
    emit_tilewave(a)
    a.label("L_kgen")
    emit_kgen(a)
    a.label("L_prep_exit")
    a("s_endpgm")


class Lay:
    def __init__(self, name, half, tiles, jobs):
        self.name = name
        self.half = half
        self.tiles = list(tiles)
        self.jobs = jobs
        self.nslot = 8 * jobs
        self.ubytes = 2048 if half else 4096
        self.UP = self.ubytes + 512
        self.PO = self.ubytes + 64
        self.KP = 2 * self.PO
        self.YP = 2112
        self.U0 = 0
        self.K0 = self.nslot * self.UP
        self.Y0 = self.K0 + self.nslot * self.KP
        self.end = self.Y0 + self.nslot * self.YP
        self.nd = self.ubytes // 1024


T1 = Lay("T1", False, range(4, 8), 1)
T2 = Lay("T2", True, range(0, 4), 2)
K2_LDS = max(T1.end, T2.end)
assert T1.K0 % 128 == 0 and T1.KP % 128 == 0 and T1.PO % 128 == 64
assert T2.K0 % 128 == 0 and T2.KP % 128 == 0 and T2.PO % 128 == 64

V_U, V_KB, V_YW, V_TR, V_OUT, V_Q, V_L16, V_T0, V_T1 = 4, 5, 9, 10, 11, 12, 13, 14, 15
V_ACC = 16
V_B = 48
V_QD = 32
V_E = 88
V_K0 = 2


class Stream:
    def __init__(self, a, max_out=14):
        self.a = a
        self.q = []
        self.n = 0
        self.max_out = max_out
        self.done = set()

    def ins(self, txt):
        self.a(txt)
        self.n += 1

    def lds(self, txt, tag):
        if len(self.q) >= self.max_out:
            keep = self.max_out - 1
            self._wait(keep)
        self.ins(txt)
        self.q.append(tag)

    def _wait(self, keep):
        if len(self.q) > keep:
            self.ins(f"s_waitcnt lgkmcnt({keep})")
            for t in self.q[:len(self.q) - keep]:
                self.done.add(t)
            self.q = self.q[len(self.q) - keep:]

    def need(self, tags):
        last = -1
        for i, t in enumerate(self.q):
            if t in tags:
                last = i
        if last >= 0:
            self._wait(len(self.q) - 1 - last)

    def pad_since(self, n0, states):
        k = states - (self.n - n0)
        while k > 0:
            c = min(k, 16)
            self.ins(f"s_nop {c - 1}")
            self.n += c - 1
            k -= c


def emit_conv_body(a, T):
    J = T.jobs
    a("s_lshl_b32 s8, s5, 3")
    a("s_add_u32 s8, s8, s3")
    a("s_mul_i32 s9, s4, 640")
    a("s_add_u32 s9, s9, s8")
    a("s_lshl_b32 s10, s8, 12")
    a("s_lshl_b32 s13, s9, 12")
    if T.half:
        a("s_add_u32 s13, s13, 2048")
    a(f"s_mul_i32 s70, s3, {T.UP}")
    a(f"s_mul_i32 s71, s3, {T.KP}")
    a(f"s_add_u32 s71, s71, {T.K0}")
    a(f"v_lshlrev_b32 v{V_L16}, 4, v1")
    a("v_and_b32 v88, 15, v1")
    a("v_lshrrev_b32 v89, 4, v1")
    a("v_lshlrev_b32 v90, 5, v88")
    a("v_lshlrev_b32 v91, 4, v89")
    a("v_sub_u32 v90, v91, v90")
    a("s_add_u32 s14, s70, 480")
    a(f"v_add_u32 v{V_U}, s14, v90")
    a("v_add_u32 v90, 1, v88")
    a("v_and_b32 v91, 1, v90")
    a("v_lshl_add_u32 v90, v89, 3, v90")
    a("v_lshrrev_b32 v90, 1, v90")
    a("v_lshlrev_b32 v90, 2, v90")
    a(f"v_mul_u32_u24 v91, {T.PO}, v91")
    a("v_add_u32 v90, v90, v91")
    a(f"v_add_u32 v{V_KB}, s71, v90")
    nkb = 2 if T.half else 4
    for kk in range(1, nkb):
        a(f"v_add_u32 v{V_KB + kk}, {1024 * kk}, v{V_KB}")
    if T.half:
        for kk in range(2):
            a(f"v_add_u32 v{V_KB + 2 + kk}, {8 * T.KP + 1024 * kk}, v{V_KB}")
    a(f"s_add_u32 s14, s70, {T.ubytes}")
    a("v_lshl_add_u32 v90, v1, 4, s14")
    a(f"s_sub_u32 s14, s71, {30 * 16}")
    a("v_lshl_add_u32 v91, v1, 4, s14")
    a(f"s_add_u32 s14, s71, {T.PO - 32 * 16}")
    a("v_lshl_add_u32 v92, v1, 4, s14")
    a("v_cmp_gt_u32 vcc, 32, v1")
    a(f"v_mov_b32 v93, {8 * T.KP}")
    a(f"v_mov_b32 v94, {8 * T.UP}")
    a("v_cndmask_b32 v91, v92, v91, vcc")
    a("v_cmp_gt_u32 vcc, 30, v1")
    for r in range(80, 84):
        a(f"v_mov_b32 v{r}, 0")
    a("v_cndmask_b32 v90, v91, v90, vcc")
    a("v_cndmask_b32 v93, v93, v94, vcc")
    a("s_mov_b32 exec_hi, 3")
    for j in range(J):
        a("ds_write_b128 v90, v[80:83]")
        if j + 1 < J:
            a("v_add_u32 v90, v90, v93")
    a("s_mov_b64 exec, -1")
    a(f"s_mul_i32 s14, s3, {T.YP}")
    a(f"s_add_u32 s14, s14, {T.Y0}")
    a("v_lshlrev_b32 v90, 5, v88")
    a("v_lshl_add_u32 v90, v89, 3, v90")
    a(f"v_add_u32 v{V_YW}, s14, v90")
    a(f"v_add_u32 v{V_Q}, s10, v90")
    a("s_and_b32 s12, s3, 3")
    a("v_bfe_u32 v90, v1, 2, 2")
    a(f"v_mul_u32_u24 v90, {T.YP}, v90")
    a("v_and_b32 v91, 3, v1")
    a("v_lshl_add_u32 v90, v91, 3, v90")
    a("v_lshl_add_u32 v90, v89, 5, v90")
    a("s_lshl_b32 s14, s12, 7")
    a(f"s_add_u32 s14, s14, {T.Y0}")
    a(f"v_add_u32 v{V_TR}, s14, v90")
    a("s_lshl_b32 s14, s12, 6")
    a("v_add_u32 v90, s14, v1")
    a("s_lshl_b32 s11, s5, 4")
    a(f"v_mul_u32_u24 v{V_OUT}, 2560, v90")
    a("s_mul_i32 s14, s4, 1280")
    a("s_add_u32 s14, s14, s11")
    a(f"v_add_u32 v{V_OUT}, s14, v{V_OUT}")
    a(f"v_mov_b32 v{V_T0}, s71")
    a(f"s_mov_b32 s50, {WS_KA}")
    a("s_mov_b32 s51, 0x00020000")
    a(f"s_mov_b32 s54, {640 * 4096}")
    a("s_mov_b32 s55, 0x00020000")
    a("s_waitcnt lgkmcnt(0)")
    stamp(a, 1, True)
    a(f"s_mov_b32 s48, s{P_WS}")
    a(f"s_and_b32 s49, s{P_WS + 1}, 0xffff")
    a(f"s_add_u32 s6, s{P_WS}, {WS_KA}")
    a(f"s_addc_u32 s7, s{P_WS + 1}, 0")
    a("s_cmp_eq_u32 s4, 1")
    a(f"s_cselect_b32 s6, s{P_SSK}, s6")
    a(f"s_cselect_b32 s7, s{P_SSK + 1}, s7")
    a("s_mov_b32 s52, s6")
    a("s_and_b32 s53, s7, 0xffff")

    def dma_one(job, kind, kk):
        if kind == "U":
            src, srd, dst = f"s_add_u32 s15, s13, {job * 32768}", "s[48:51]", f"s_add_u32 m0, s70, {job * 8 * T.UP}"
        elif kind == "E":
            src, srd, dst = f"s_add_u32 s15, s10, {job * 32768}", "s[52:55]", f"s_add_u32 m0, s71, {job * 8 * T.KP + 32}"
        else:
            src, srd, dst = f"s_add_u32 s15, s10, {job * 32768 + 2}", "s[52:55]", f"s_add_u32 m0, s71, {job * 8 * T.KP + T.PO + 32}"
        return [src, dst, "s_nop 0", f"buffer_load_dwordx4 v{V_L16}, {srd}, s15 offen offset:{1024 * kk} lds"]

    if not T.half:
        order = [("U", 3), ("E", 3), ("O", 3), ("E", 2), ("O", 2), ("E", 1), ("O", 1), ("U", 2), ("E", 0), ("O", 0), ("U", 1), ("U", 0)]
        nfirst = 7
    else:
        order = [("U", 1), ("E", 1), ("O", 1), ("E", 0), ("O", 0), ("U", 0)]
        nfirst = 5
    xs = a.newlabel("xdma")
    a("s_cmp_ge_u32 s3, 4")
    a(f"s_cbranch_scc1 {xs}")
    for kind, kk in order[:nfirst]:
        for ln in dma_one(0, kind, kk):
            a(ln)
    a.label(xs)
    stamp(a, 2, True)
    for j in range(J):
        a(f"s_add_u32 s14, s10, {j * 32768}")
        a(f"s_load_dword s{72 + j}, s[6:7], s14")
    a("s_lshl_b32 s11, s8, 1")
    a("s_and_b32 s11, s11, 0xfffffffc")
    for j in range(J):
        a(f"s_add_u32 s14, s11, {16 * j}")
        a(f"s_load_dword s{76 + j}, s[{P_SSD}:{P_SSD + 1}], s14")
    a(f"s_add_u32 s56, s{P_WS}, {WS_QT}")
    a(f"s_addc_u32 s57, s{P_WS + 1}, 0")
    a("s_and_b32 s57, s57, 0xffff")
    a("s_mov_b32 s59, 0x00020000")
    make_srd(a, 60, P_OUT, L * 2560)
    a("s_cmp_eq_u32 s4, 1")
    a(f"s_cselect_b32 s58, {640 * 4096}, 0")
    a("s_cselect_b32 s69, 0, 0x3f803f80")
    a("s_cmp_ge_u32 s3, 4")
    a(f"s_cbranch_scc1 L_{T.name}_Y")
    emit_conv_stream(a, T, 0, order, nfirst, dma_one)
    a.label(f"L_{T.name}_Y")
    emit_conv_stream(a, T, 1, order, nfirst, dma_one)


def emit_conv_stream(a, T, G, order, nfirst, dma_one):
    J = T.jobs
    st = Stream(a)
    vm = []
    k0_ready = [False]

    def make_k0():
        st.ins("s_waitcnt lgkmcnt(0)")
        for t in st.q:
            st.done.add(t)
        st.q = []
        st.ins("s_and_b32 s14, s8, 1")
        st.ins("s_lshl_b32 s14, s14, 4")
        for j in range(J):
            st.ins(f"s_lshl_b32 s{72 + j}, s{72 + j}, 16")
            st.ins(f"s_lshr_b32 s{76 + j}, s{76 + j}, s14")
            st.ins(f"s_lshl_b32 s{76 + j}, s{76 + j}, 16")
        st.ins("s_cmp_eq_u32 s4, 1")
        for j in range(J):
            st.ins(f"s_cselect_b32 s{76 + j}, s{76 + j}, 0")
        for j in range(J):
            st.ins(f"v_mov_b32 v{V_K0 + j}, s{72 + j}")
            st.ins(f"v_add_f32 v{V_K0 + j}, s{76 + j}, v{V_K0 + j}")
            st.ins(f"v_cvt_pk_bf16_f32 v{V_K0 + j}, v{V_K0 + j}, v{V_K0 + j}")
        k0_ready[0] = True

    def patch(j):
        if not k0_ready[0]:
            make_k0()
        st.lds(f"ds_write_b16 v{V_T0}, v{V_K0 + j} offset:{j * 8 * T.KP + 32}", ("patch", j, 0))
        st.lds(f"ds_write_b16 v{V_T0}, v{V_K0 + j} offset:{j * 8 * T.KP + T.PO + 30}", ("patch", j, 1))

    tiles = T.tiles
    nlo, nhi = tiles[0], tiles[-1]

    def phys(j, cp):
        if not T.half:
            return cp % 5
        return cp if j == 0 else (cp + 1)

    mf = []
    seen = set()
    for j in range(J):
        for m in range(0, nhi + 1):
            for r in range(8):
                for n in range(nhi, max(m, nlo) - 1, -1):
                    cp = n - m
                    first = (j, n) not in seen
                    seen.add((j, n))
                    mf.append(dict(rd=j, m=m, r=r, n=n, cp=cp, c=8 * cp + r, aslot=8 * phys(j, cp) + r, bslot=r,
                                   first=first, atag=("A", j, 8 * cp + r), btag=("B", j, m, r)))
    nM = len(mf)
    loads = []
    have = set()
    last_use_a, last_use_b = {}, {}
    for i, x in enumerate(mf):
        if x['btag'] not in have:
            have.add(x['btag'])
            loads.append(dict(tag=x['btag'], kind='B', need=i, free=last_use_b.get(x['bslot'], -1), x=x))
        if x['atag'] not in have:
            have.add(x['atag'])
            loads.append(dict(tag=x['atag'], kind='A', need=i, free=last_use_a.get(x['aslot'], -1), x=x))
        last_use_a[x['aslot']] = i
        last_use_b[x['bslot']] = i
    first_idx = {}
    for i, x in enumerate(mf):
        first_idx.setdefault(x['rd'], i)

    uoff0 = 1536 if T.half else 3584

    def src_pieces(ld):
        x = ld['x']
        j = x['rd']
        if ld['kind'] == 'B':
            gamma = 8 * x['m'] - x['r']
            lo = uoff0 - 64 * gamma
            hi = lo + 528 + 16
            return {("dma", j, "U", k_) for k_ in range(T.nd) if lo < 1024 * (k_ + 1) and hi > 1024 * k_}
        c = x['c']
        lo = 64 * c - 32
        hi = 64 * c + 96
        out = set()
        for k_ in range(T.nd):
            if lo < 1024 * (k_ + 1) and hi > 1024 * k_:
                out |= {("dma", j, "E", k_), ("dma", j, "O", k_)}
        if c == 0:
            out.add(("patched", j))
        return out

    landed = set()

    def vwait(tags):
        idx = [i for i, t in enumerate(vm) if t in tags and t not in landed]
        if not idx:
            return
        last = max(idx)
        keep = len(vm) - 1 - last
        st.ins(f"s_waitcnt vmcnt({keep})")
        for t in vm[:last + 1]:
            landed.add(t)

    def ensure(ld):
        need = src_pieces(ld)
        j = ld['x']['rd']
        if ("patched", j) in need:
            need.discard(("patched", j))
            if ("patched", j) not in landed:
                vwait({("dma", j, "E", 0)})
                patch(j)
                landed.add(("patched", j))
        for t in need:
            assert t in vm, ("DMA piece not issued before use", t, ld['x'])
        vwait(need)

    def available(ld):
        for t in src_pieces(ld):
            if t[0] != "patched" and t not in vm:
                return False
        return True

    def emit_load(ld):
        x = ld['x']
        j = x['rd']
        ensure(ld)
        if ld['kind'] == 'B':
            gamma = 8 * x['m'] - x['r']
            off = uoff0 - 64 * gamma + j * 8 * T.UP
            d = V_B + 4 * x['bslot']
            st.lds(f"ds_read_b128 v[{d}:{d + 3}], v{V_U} offset:{off}", ld['tag'])
        else:
            c = x['c']
            base = V_KB + (c >> 4) + (2 * j if T.half else 0)
            o = 16 * (c & 15)
            d = 4 * x['aslot']
            st.lds(f"ds_read2_b32 a[{d}:{d + 1}], v{base} offset0:{o} offset1:{o + 1}", (ld['tag'], 0))
            st.lds(f"ds_read2_b32 a[{d + 2}:{d + 3}], v{base} offset0:{o + 2} offset1:{o + 3}", ld['tag'])

    aux = {}

    def add_aux(i, fn):
        aux.setdefault(min(i, nM), []).append(fn)

    last_of_tile = {}
    for i, x in enumerate(mf):
        last_of_tile[(x['rd'], x['n'])] = i
    mf_pos = {}

    def vmem(lines, tag):
        for ln in lines:
            st.ins(ln)
        vm.append(tag)

    fillers = []

    def epi1(j, n, urgent):
        def fn():
            i = last_of_tile[(j, n)]
            ab = V_ACC + 4 * (n - nlo)
            qb = V_QD + 2 * (4 * j + n - nlo)
            u = 84
            pre = [f"v_or_b32 v{qb}, s69, v{qb}", f"v_or_b32 v{qb + 1}, s69, v{qb + 1}",
                   f"v_lshlrev_b32 v{u}, 16, v{qb}", f"v_and_b32 v{u + 1}, 0xffff0000, v{qb}",
                   f"v_lshlrev_b32 v{u + 2}, 16, v{qb + 1}", f"v_and_b32 v{u + 3}, 0xffff0000, v{qb + 1}"]
            post = [f"v_mul_f32 v{u}, v{u}, v{ab}", f"v_mul_f32 v{u + 1}, v{u + 1}, v{ab + 1}",
                    f"v_mul_f32 v{u + 2}, v{u + 2}, v{ab + 2}", f"v_mul_f32 v{u + 3}, v{u + 3}, v{ab + 3}",
                    f"v_cvt_pk_bf16_f32 v{u}, v{u}, v{u + 1}", f"v_cvt_pk_bf16_f32 v{u + 1}, v{u + 2}, v{u + 3}"]
            vwait({("q", j, n)})
            for t_ in pre:
                st.ins(t_)
            st.pad_since(mf_pos[i], 8)
            for t_ in post:
                st.ins(t_)
            st.lds(f"ds_write_b64 v{V_YW}, v[{u}:{u + 1}] offset:{j * 8 * T.YP + 512 * (n - nlo)}", ("Y", j, n))
        return fn

    cur = [0]

    def epi2(j, n):
        def fn():
            while fillers:
                fillers.pop(0)[1]()
            st.need({("Y", j, n)})
            st.ins("s_barrier")
            if ((n - nlo) & 1) != G:
                return
            o = j * 8 * T.YP + 512 * (n - nlo)
            t = V_E
            st.lds(f"ds_read_b64_tr_b16 v[{t}:{t + 1}], v{V_TR} offset:{o}", ("T", j, n, 0))
            st.lds(f"ds_read_b64_tr_b16 v[{t + 2}:{t + 3}], v{V_TR} offset:{o + 4 * T.YP}", ("T", j, n, 1))
            rdy = cur[0] + 4

            def fin():
                st.need({("T", j, n, 0), ("T", j, n, 1)})
                vmem([f"s_mov_b32 s68, {n * 256 * 2560 + j * 16}",
                      f"buffer_store_dwordx4 v[{t}:{t + 3}], v{V_OUT}, s[60:63], s68 offen"], ("st", j, n))
            fillers.append((rdy, fin))
        return fn

    for k_, (kind, kk) in enumerate(order[nfirst:]):
        add_aux(1 + 3 * k_, (lambda kind, kk: (lambda: vmem(dma_one(0, kind, kk), ("dma", 0, kind, kk))))(kind, kk))
    rest0 = len(order) - nfirst
    for j in range(1, J):
        start = first_idx[j - 1] + 12
        for k_, (kind, kk) in enumerate(order):
            add_aux(start + 5 * k_, (lambda j, kind, kk: (lambda: vmem(dma_one(j, kind, kk), ("dma", j, kind, kk))))(j, kind, kk))
    for j in range(J):
        for n in tiles:
            at = first_idx[j] + (2 + 3 * rest0 if j == 0 else -24) + 2 * (n - nlo)

            def mkq(j, n):
                def fn():
                    r0 = V_QD + 2 * (4 * j + n - nlo)
                    vmem([f"s_mov_b32 s14, {n * 512 + j * 32768}",
                          f"buffer_load_dwordx2 v[{r0}:{r0 + 1}], v{V_Q}, s[56:59], s14 offen"], ("q", j, n))
                return fn
            add_aux(at, mkq(j, n))

    for j in range(J):
        for n in tiles:
            i = last_of_tile[(j, n)]
            last_in_job = (n == nhi and j + 1 < J)
            add_aux(i + 1 + (0 if last_in_job else 2), epi1(j, n, last_in_job))
            add_aux(i + 1 + 8, epi2(j, n))

    stamp(a, 4, True)
    qa = [ld for ld in loads if ld['kind'] == 'A']
    qb_ = [ld for ld in loads if ld['kind'] == 'B']
    issued = set()
    issue_at = {}
    for j in range(1, J):
        for k_, (kind, kk) in enumerate(order):
            issue_at[("dma", j, kind, kk)] = first_idx[j - 1] + 12 + 5 * k_
    for k_, (kind, kk) in enumerate(order):
        issue_at[("dma", 0, kind, kk)] = -60 if k_ < nfirst else 1 + 3 * (k_ - nfirst) - 20

    def hint(t, i):
        return t in issue_at and i - issue_at[t] > 40

    def next_free(q, i):
        for ld in q:
            if id(ld) in issued:
                continue
            if ld['free'] < i and available(ld):
                if all((t in landed or t[0] == "patched" or ld['need'] - i < 24 or hint(t, i)) for t in src_pieces(ld)):
                    return ld
        return None

    def issue_loads(i, budget):
        cnt = 0
        while cnt < budget:
            cb_ = next_free(qb_, i) if len(st.q) + 1 <= st.max_out else None
            ca_ = next_free(qa, i) if len(st.q) + 2 <= st.max_out else None
            cand = None
            if cb_ is not None and (ca_ is None or cb_['need'] <= ca_['need']):
                cand = cb_
            elif ca_ is not None:
                cand = ca_
            if cand is None:
                break
            emit_load(cand)
            issued.add(id(cand))
            cnt += 2 if cand['kind'] == 'A' else 1
        return cnt

    if G == 1:
        a("s_barrier")
        for kind, kk in order[:nfirst]:
            for ln in dma_one(0, kind, kk):
                a(ln)
    if G == 1 and OPT_CPF and OPT_PF:
        nocp = a.newlabel("nocp")
        a("s_cmp_lg_u32 s3, 7")
        a(f"s_cbranch_scc1 {nocp}")
        lab = a.newlabel("pc")
        a("s_getpc_b64 s[82:83]")
        a.label(lab)
        a("v_lshlrev_b32 v94, 7, v1")
        a(f"v_min_u32 v94, L_end_{T.name}-{lab}-4, v94")
        a("global_load_dword v95, v94, s[82:83]")
        a.label(nocp)
    for kind, kk in order[:nfirst]:
        vm.append(("dma", 0, kind, kk))
    first = True
    for i, x in enumerate(mf):
        cur[0] = i
        if G == 0 and i == 1:
            st.ins("s_barrier")
        if STAMP and STEPSTAMP < 0 and i == 64:
            stamp(a, 6, True)
        if STAMP and STEPSTAMP >= 0 and x['rd'] == STEPSTAMP and x['r'] == 0 and (i == 0 or mf[i - 1]['m'] != x['m'] or mf[i - 1]['rd'] != x['rd']):
            a(f"s_memtime s[{ST0 + 2 * x['m']}:{ST0 + 2 * x['m'] + 1}]")
        for fn in aux.get(i, []):
            fn()
        for q_ in (qb_, qa):
            for ld in q_:
                if ld['need'] <= i and id(ld) not in issued:
                    emit_load(ld)
                    issued.add(id(ld))
        if first:
            stamp(a, 5, True)
            first = False
        nl = issue_loads(i, 4 if x['m'] == 0 else 2)
        nf = 0
        while fillers and fillers[0][0] <= i and nf < (3 if nl < 2 else 2):
            fillers.pop(0)[1]()
            nf += 1
        st.need({x['atag'], x['btag']})
        ab = V_ACC + 4 * (x['n'] - nlo)
        src_c = "0" if x['first'] else f"v[{ab}:{ab + 3}]"
        bs = V_B + 4 * x['bslot']
        st.ins(f"v_mfma_f32_16x16x32_bf16 v[{ab}:{ab + 3}], a[{4 * x['aslot']}:{4 * x['aslot'] + 3}], v[{bs}:{bs + 3}], {src_c}")
        mf_pos[i] = st.n
    stamp(a, 7, True)
    cur[0] = nM
    for fn in aux.get(nM, []):
        fn()
    while fillers:
        fillers.pop(0)[1]()
    if STAMP:
        stamp_flush(a, 8, 1)
    if G == 1:
        a.label(f"L_end_{T.name}")
    a("s_endpgm")


def emit_conv(a):
    k = "conv_kernel"
    a.raw(f".globl {k}")
    a.raw(".p2align 8")
    a.raw(f".type {k},@function")
    a.label(k)
    a("s_cmp_ge_u32 s2, 240")
    a("s_cbranch_scc1 L_conv_exit")
    stamp(a, 0, True)
    load_kernargs(a)
    if not OPT_CPF:
        code_prefetch(a, "L_conv_exit", 94, 95)
    a("v_lshrrev_b32 v2, 6, v0")
    a("v_and_b32 v1, 63, v0")
    a("s_and_b32 s6, s2, 7")
    a("v_readfirstlane_b32 s3, v2")
    a("s_lshr_b32 s7, s2, 3")
    a("s_mul_i32 s5, s6, 10")
    a("s_cmp_ge_u32 s7, 20")
    a("s_cbranch_scc1 L_T2")
    a("s_cmp_ge_u32 s7, 10")
    a("s_cselect_b32 s4, 1, 0")
    a("s_mul_i32 s8, s4, 10")
    a("s_sub_u32 s7, s7, s8")
    a("s_add_u32 s5, s5, s7")
    emit_conv_body(a, T1)
    a.label("L_T2")
    a("s_sub_u32 s7, s7, 20")
    a("s_cmp_ge_u32 s7, 5")
    a("s_cselect_b32 s4, 1, 0")
    a("s_mul_i32 s8, s4, 5")
    a("s_sub_u32 s7, s7, s8")
    a("s_lshl_b32 s7, s7, 1")
    a("s_add_u32 s5, s5, s7")
    emit_conv_body(a, T2)
    a.label("L_conv_exit")
    a("s_endpgm")


def kd(name, vgpr, sgpr, accum):
    return f""".amdhsa_kernel {name}
  .amdhsa_next_free_vgpr {vgpr}
  .amdhsa_next_free_sgpr {sgpr}
  .amdhsa_accum_offset {accum}
  .amdhsa_group_segment_fixed_size 0
  .amdhsa_kernarg_size 128
  .amdhsa_user_sgpr_count 2
  .amdhsa_user_sgpr_kernarg_segment_ptr 1
  .amdhsa_system_sgpr_workgroup_id_x 1
.end_amdhsa_kernel
"""


HEADER = open("cdna_kernels/" + NAME + ".s.ref").read().split("; Override launch geometry")[0]


def build():
    a = Asm()
    a.raw(HEADER.rstrip("\n"))
    a.raw(f"; @launch kernel=prep_kernel grid=(256,1,1) block=(896,1,1) lds={K1_LDS}")
    a.raw(f"; @launch kernel=conv_kernel grid=(240,1,1) block=(512,1,1) lds={K2_LDS}")
    a.raw('.amdgcn_target "amdgcn-amd-amdhsa--gfx950"')
    a.raw(".text")
    emit_prep(a)
    emit_conv(a)
    a.raw('.section .rodata,"a"')
    a.raw(".p2align 6")
    a.raw(kd("prep_kernel", 128, 102 if STAMP else 80, 128))
    a.raw(".p2align 6")
    a.raw(kd("conv_kernel", 256, 102 if STAMP else 84, 96))
    return a.text()


if __name__ == "__main__":
    out = sys.argv[1] if len(sys.argv) > 1 else "cdna_kernels/" + NAME + ".s"
    open(out, "w").write(build())
    print("wrote", out)
```

```python
import sys

NAME = "concat_heads__ssm_conv_s4d__ssm_conv_h3__prompt"

L = 2048
D = 640
NM = 192
ROWB = 1280
TENS = L * ROWB

WS_UT = 0
WS_KA = 1280 * 4096
WS_QT = WS_KA + 640 * 4096
WS_END = WS_QT + 640 * 4096

P_U, P_LOGA, P_AIM, P_CR, P_CI, P_LDT, P_DSK, P_Q, P_K, P_V, P_SHK, P_SSK, P_SSD, P_OUT, P_DBG, P_WS = [16 + 2 * i for i in range(16)]


import os
STAMP = bool(int(os.environ.get("STAMP", "0")))
STEPSTAMP = int(os.environ.get("STEPSTAMP", "-1"))
OPT_PRIO = int(os.environ.get("OPT_PRIO", "0"))
OPT_YLATE = int(os.environ.get("OPT_YLATE", "1"))
EPI_T2 = int(os.environ.get("EPI_T2", "60"))
EPI_T2_STEP = int(os.environ.get("EPI_T2_STEP", "10"))
OPT_NOUT = int(os.environ.get("OPT_NOUT", "1"))
DBGT = int(os.environ.get("DBGT", "0"))
OPT_SC1 = int(os.environ.get("OPT_SC1", "0"))
OPT_SKEW = int(os.environ.get("OPT_SKEW", "1"))
OPT_CPF = int(os.environ.get("OPT_CPF", "1"))
OPT_MPF = int(os.environ.get("OPT_MPF", "1"))
OPT_XMAP = int(os.environ.get("OPT_XMAP", "0"))
OPT_SCOUT = int(os.environ.get("OPT_SCOUT", "0"))
KGREP = int(os.environ.get("KGREP", "0"))
NOKGEN = int(os.environ.get("NOKGEN", "0"))
OPT_PF = int(os.environ.get("OPT_PF", "1"))
OPT_RBM = int(os.environ.get("OPT_RBM", "0"))
OPT_LATE = int(os.environ.get("OPT_LATE", "0"))


def code_prefetch(a, endlabel, vtmp, vdst):
    if not OPT_PF:
        return
    lab = a.newlabel("pc")
    a("s_getpc_b64 s[10:11]")
    a.label(lab)
    a(f"v_lshlrev_b32 v{vtmp}, 7, v0")
    a(f"v_min_u32 v{vtmp}, {endlabel}-{lab}-4, v{vtmp}")
    a(f"global_load_dword v{vdst}, v{vtmp}, s[10:11]")


WS_STAMP = 16 << 20
ST0 = 84


def stamp(a, i, k2=False):
    if STAMP and not (k2 and STEPSTAMP >= 0):
        a(f"s_memrealtime s[{ST0 + 2 * i}:{ST0 + 2 * i + 1}]")


def stamp_flush(a, n, kern):
    if not STAMP:
        return
    a("s_waitcnt lgkmcnt(0)")
    make_srd(a, 76, P_WS, WS_STAMP + (4 << 20))
    a("s_lshl_b32 s80, s2, 4")
    a("s_add_u32 s80, s80, s3")
    a("s_lshl_b32 s80, s80, 5")
    a(f"s_add_u32 s80, s80, {WS_STAMP + kern * (1 << 20)}")
    a("s_mov_b64 exec, 1")
    a("v_mov_b32 v250, s80" if False else "v_mov_b32 v9, s80")
    for i in range(n):
        a(f"v_mov_b32 v8, s{ST0 + 2 * i}")
        a(f"buffer_store_dword v8, v9, s[76:79], 0 offen offset:{4 * i}")
    a("s_mov_b64 exec, -1")


SC1 = " sc1" if OPT_SC1 else ""


def dbg_stamp(a, slot, back, vA=60, vB=61):
    if not DBGT:
        return
    a("s_memrealtime s[90:91]")
    a("s_waitcnt lgkmcnt(0)")
    a(f"s_sub_u32 s92, s{P_DBG}, {back}")
    a(f"s_subb_u32 s93, s{P_DBG + 1}, 0")
    a(f"v_mov_b32 v{vA}, {4 * slot}")
    a(f"v_mov_b32 v{vB}, s90")
    a("s_mov_b64 s[94:95], exec")
    a("s_mov_b64 exec, 1")
    a(f"global_atomic_umax v{vA}, v{vB}, s[92:93]")
    a("s_mov_b64 exec, s[94:95]")


class Asm:
    def __init__(self):
        self.lines = []
        self.nlab = 0

    def __call__(self, s):
        self.lines.append("    " + s)

    def raw(self, s):
        self.lines.append(s)

    def label(self, s):
        self.lines.append(s + ":")

    def c(self, s):
        self.lines.append("    ; " + s)

    def newlabel(self, base):
        self.nlab += 1
        return f"L_{base}_{self.nlab}"

    def text(self):
        return "\n".join(self.lines) + "\n"


def vr(i, n=1):
    return f"v{i}" if n == 1 else f"v[{i}:{i + n - 1}]"


def ar(i, n=1):
    return f"a{i}" if n == 1 else f"a[{i}:{i + n - 1}]"


def sr(i, n=1):
    return f"s{i}" if n == 1 else f"s[{i}:{i + n - 1}]"


def make_srd(a, dst, ptr, nbytes):
    a(f"s_mov_b32 s{dst}, s{ptr}")
    a(f"s_and_b32 s{dst + 1}, s{ptr + 1}, 0xffff")
    a(f"s_mov_b32 s{dst + 2}, {nbytes}")
    a(f"s_mov_b32 s{dst + 3}, 0x00020000")


def load_kernargs(a):
    a("s_load_dwordx16 s[16:31], s[0:1], 0")
    a("s_load_dwordx16 s[32:47], s[0:1], 64")


TW_RAWK = 0
TW_RAWV = 12288
TW_RAWU = TW_RAWV + 10240
TW_RAWQ = TW_RAWU + 10240
TW_STG = TW_RAWQ + 10240
KG_OFF = TW_STG + 5 * 5120
KG_CNT = KG_OFF + 9 * 9216
K1_LDS = KG_CNT + 64


def lds_signal(a, addr_v, one_v):
    a("s_mov_b64 exec, 1")
    a(f"ds_add_u32 v{addr_v}, v{one_v}")
    a("s_mov_b64 exec, -1")


def lds_wait_count(a, addr_v, tmp_v, tmp_s, count, name):
    spin = a.newlabel(name)
    a.label(spin)
    a(f"ds_read_b32 v{tmp_v}, v{addr_v}")
    a("s_waitcnt lgkmcnt(0)")
    a(f"v_readfirstlane_b32 s{tmp_s}, v{tmp_v}")
    a(f"s_cmp_lt_u32 s{tmp_s}, {count}")
    a(f"s_cbranch_scc1 {spin}")


def emit_tilewave(a):
    a.c("---- tile waves: workgroup tile = 32 rows x 160 channels of u, k, v ; wave w owns 32 channels ----")
    if OPT_XMAP:
        a("s_lshr_b32 s7, s2, 5")
        a("s_lshl_b32 s7, s7, 3")
        a("s_and_b32 s8, s2, 7")
        a("s_add_u32 s8, s8, s7")
        a("s_bfe_u32 s7, s2, 0x20003")
    else:
        a("s_lshr_b32 s8, s2, 2")
        a("s_and_b32 s7, s2, 3")
    a("s_mul_i32 s9, s8, 40960")
    a("s_mul_i32 s10, s7, 320")
    a("s_add_u32 s9, s9, s10")
    a("s_lshl_b32 s11, s3, 6")
    a("s_add_u32 s10, s10, s11")
    a("s_lshl_b32 s12, s3, 6")
    a("v_add_u32 v3, s12, v2")
    a("v_mul_u32_u24 v4, 52429, v3")
    a("v_lshrrev_b32 v4, 20, v4")
    a("v_mul_u32_u24 v5, 20, v4")
    a("v_sub_u32 v5, v3, v5")
    a("v_mul_u32_u24 v6, 1280, v4")
    a("v_lshl_add_u32 v6, v5, 4, v6")
    a("v_add_u32 v5, s9, v6")
    a("v_add_u32 v6, 20480, v5")
    a("v_subrev_u32 v7, 5120, v5")
    a("s_lshl_b32 s12, s3, 10")
    a("s_waitcnt lgkmcnt(0)")
    stamp(a, 1)
    if DBGT:
        nd = a.newlabel("nd")
        a("s_cmp_lg_u32 s2, 0")
        a(f"s_cbranch_scc1 {nd}")
        dbg_stamp(a, 0, 0, 60, 61)
        a.label(nd)
    make_srd(a, 48, P_U, TENS)
    make_srd(a, 52, P_K, TENS)
    make_srd(a, 56, P_V, TENS)
    make_srd(a, 60, P_SHK, 640 * 8)
    make_srd(a, 72, P_Q, TENS)
    a("v_bfe_u32 v8, v2, 4, 1")
    a("v_and_b32 v10, 15, v2")
    a("v_lshl_add_u32 v11, v8, 4, v10")
    a("s_lshl_b32 s13, s10, 2")
    a("v_lshl_add_u32 v12, v11, 3, s13")
    a("s_barrier")
    a("buffer_load_dwordx2 v[40:41], v12, s[60:63], 0 offen")
    a(f"s_add_u32 m0, s12, {TW_RAWK + 1280}")
    a("s_nop 0")
    a("buffer_load_dwordx4 v5, s[52:55], 0 offen lds")
    a(f"s_add_u32 m0, s12, {TW_RAWK + 1280 + 5120}")
    a("s_nop 0")
    a("buffer_load_dwordx4 v6, s[52:55], 0 offen lds")
    nohalo = a.newlabel("nohalo")
    a("s_cmp_gt_u32 s3, 1")
    a(f"s_cbranch_scc1 {nohalo}")
    a("s_cmp_eq_u32 s3, 0")
    a("s_cselect_b32 exec_hi, -1, 0")
    a("s_cselect_b32 exec_lo, -1, 0xffff")
    a(f"s_add_u32 m0, s12, {TW_RAWK}")
    a("s_nop 0")
    a("buffer_load_dwordx4 v7, s[52:55], 0 offen lds")
    a("s_mov_b64 exec, -1")
    a.label(nohalo)
    for srd, base in ((56, TW_RAWV), (48, TW_RAWU), (72, TW_RAWQ)):
        a(f"s_add_u32 m0, s12, {base}")
        a("s_nop 0")
        a(f"buffer_load_dwordx4 v5, s[{srd}:{srd + 3}], 0 offen lds")
        a(f"s_add_u32 m0, s12, {base + 5120}")
        a("s_nop 0")
        a(f"buffer_load_dwordx4 v6, s[{srd}:{srd + 3}], 0 offen lds")
    stamp(a, 2)
    a("v_lshrrev_b32 v3, 2, v2")
    a("v_and_b32 v4, 3, v2")
    a("v_bfe_u32 v8, v2, 4, 1")
    a("v_lshrrev_b32 v9, 5, v2")
    a("v_and_b32 v10, 15, v2")
    a("v_lshl_add_u32 v11, v8, 4, v10")
    make_srd(a, 64, P_WS, WS_END)
    a("v_and_b32 v13, 3, v3")
    a("v_sub_u32 v13, 3, v13")
    a("v_lshl_add_u32 v13, v9, 2, v13")
    a("v_mul_u32_u24 v13, 320, v13")
    a("v_lshl_add_u32 v13, v8, 5, v13")
    a("v_lshl_add_u32 v13, v4, 3, v13")
    a("v_add_u32 v13, s11, v13")
    a("s_mul_i32 s12, s3, 5120")
    a(f"s_add_u32 s12, s12, {TW_STG}")
    a("v_mul_u32_u24 v14, 80, v11")
    a("v_lshlrev_b32 v15, 3, v9")
    a("v_sub_u32 v14, v14, v15")
    a("s_add_u32 s13, s12, 8")
    a("v_add_u32 v14, s13, v14")
    a("v_mul_u32_u24 v15, 80, v3")
    a("v_lshl_add_u32 v15, v4, 4, v15")
    a("v_add_u32 v15, s12, v15")
    a("s_lshl_b32 s13, s10, 11")
    a("s_lshl_b32 s14, s8, 6")
    a("s_sub_u32 s13, s13, s14")
    a("s_add_u32 s13, s13, 4032")
    a("v_lshlrev_b32 v16, 12, v3")
    a("v_lshl_add_u32 v16, v4, 4, v16")
    a("v_add_u32 v16, s13, v16")
    a(f"v_mov_b32 v36, {KG_CNT + 12}")
    a("v_mov_b32 v37, 1")
    if OPT_SCOUT:
        a("s_mov_b32 s70, 0")
        a("s_mov_b64 exec, 0")
        for w_, nm in enumerate(("K0", "K1", "K2", "K3", "K4")):
            a(f"s_cmp_eq_u32 s3, {w_}")
            a(f"s_cbranch_scc1 L_sc_{nm}")
        a.label("L_scout_ret")
        a("s_add_u32 s70, s70, 1")
        a("s_cmp_eq_u32 s70, 1")
        a("s_cbranch_scc0 L_scout_p2")
        a("s_cmp_eq_u32 s3, 0")
        a("s_cbranch_scc1 L_sc_F0")
        a("s_cmp_eq_u32 s3, 1")
        a("s_cbranch_scc1 L_sc_F1")
        a("s_add_u32 s70, s70, 1")
        a.label("L_scout_p2")
        a("s_cmp_eq_u32 s70, 2")
        a("s_cbranch_scc1 L_tproc")
        a("s_mov_b64 exec, -1")
    a("s_setprio 2")
    a("s_waitcnt vmcnt(2)")
    lds_signal(a, 36, 37)
    stamp(a, 3)
    if OPT_MPF:
        nopf = a.newlabel("nopf")
        a("s_cmp_ge_u32 s3, 2")
        a(f"s_cbranch_scc1 {nopf}")
        a(f"s_mov_b32 s68, s{P_SSK}")
        a(f"s_mov_b32 s69, s{P_SSK + 1}")
        a("s_and_b32 s69, s69, 0xffff")
        a(f"s_mov_b32 s70, {TENS}")
        a("s_mov_b32 s71, 0x00020000")
        a("s_mul_i32 s15, s2, 10240")
        a("s_and_b32 s14, s3, 1")
        a("s_lshl_b32 s14, s14, 13")
        a("s_add_u32 s15, s15, s14")
        a("v_lshlrev_b32 v39, 7, v2")
        a("v_add_u32 v39, s15, v39")
        a("s_and_b32 s14, s3, 1")
        a("s_cmp_eq_u32 s14, 1")
        a("s_cselect_b32 exec_lo, 0xffff, -1")
        a("s_cselect_b32 exec_hi, 0, -1")
        a("buffer_load_dword v45, v39, s[68:71], 0 offen")
        a("s_mov_b64 exec, -1")
        a.label(nopf)
        if OPT_CPF:
            nocp = a.newlabel("nocp")
            a("s_cmp_lg_u32 s3, 4")
            a(f"s_cbranch_scc1 {nocp}")
            a("s_cmp_ge_u32 s2, 8")
            a(f"s_cbranch_scc1 {nocp}")
            lab = a.newlabel("pc")
            a("s_getpc_b64 s[68:69]")
            a.label(lab)
            a("v_lshlrev_b32 v39, 7, v2")
            a(f"v_add_u32 v39, conv_kernel-{lab}, v39")
            for k_ in range(3):
                a(f"v_min_u32 v46, L_conv_exit-{lab}, v39")
                a("global_load_dword v45, v46, s[68:69]")
                a("v_add_u32 v39, 8192, v39")
            a.label(nocp)
    a("v_alignbit_b32 v42, v41, v40, 16")
    a("v_lshlrev_b32 v43, 16, v40")
    a("v_lshrrev_b32 v44, 16, v41")
    lds_wait_count(a, 36, 38, 14, 5, "tile_spin")
    a.label("L_tproc")
    for j in range(4):
        a(f"ds_read_b64_tr_b16 v[{18 + 2 * j}:{19 + 2 * j}], v13 offset:{TW_RAWK + 1280 + 2560 * j}")
        a(f"ds_read_b64_tr_b16 v[{26 + 2 * j}:{27 + 2 * j}], v13 offset:{TW_RAWK + 2560 * j}")
        a(f"ds_read_b64_tr_b16 v[{46 + 2 * j}:{47 + 2 * j}], v13 offset:{TW_RAWV + 2560 * j}")
    for j in range(3):
        a(f"ds_read_b64_tr_b16 v[{54 + 2 * j}:{55 + 2 * j}], v13 offset:{TW_RAWU + 2560 * j}")
    for j in range(4):
        kc, kp, vv = 18 + 2 * j, 26 + 2 * j, 46 + 2 * j
        t = 64 + 10 * (j & 1)
        a(f"s_waitcnt lgkmcnt({12 - 3 * j})")
        if j == 0:
            a(f"ds_read_b64_tr_b16 v[60:61], v13 offset:{TW_RAWU + 2560 * 3}")
        a(f"v_dot2_f32_bf16 v{t + 0}, v{kc}, v40, 0")
        a(f"v_dot2_f32_bf16 v{t + 1}, v{kc}, v43, 0")
        a(f"v_dot2_f32_bf16 v{t + 2}, v{kc + 1}, v40, 0")
        a(f"v_dot2_f32_bf16 v{t + 3}, v{kc + 1}, v43, 0")
        a(f"v_dot2_f32_bf16 v{t + 0}, v{kc + 1}, v41, v{t + 0}")
        a(f"v_dot2_f32_bf16 v{t + 1}, v{kc + 1}, v42, v{t + 1}")
        a(f"v_dot2_f32_bf16 v{t + 2}, v{kp}, v41, v{t + 2}")
        a(f"v_dot2_f32_bf16 v{t + 3}, v{kp}, v42, v{t + 3}")
        a(f"v_dot2_f32_bf16 v{t + 1}, v{kp}, v44, v{t + 1}")
        a(f"v_dot2_f32_bf16 v{t + 3}, v{kp + 1}, v44, v{t + 3}")
        a(f"v_lshlrev_b32 v{t + 4}, 16, v{vv}")
        a(f"v_and_b32 v{t + 5}, 0xffff0000, v{vv}")
        a(f"v_lshlrev_b32 v{t + 6}, 16, v{vv + 1}")
        a(f"v_and_b32 v{t + 7}, 0xffff0000, v{vv + 1}")
        a(f"v_mul_f32 v{t + 0}, v{t + 0}, v{t + 4}")
        a(f"v_mul_f32 v{t + 1}, v{t + 1}, v{t + 5}")
        a(f"v_mul_f32 v{t + 2}, v{t + 2}, v{t + 6}")
        a(f"v_mul_f32 v{t + 3}, v{t + 3}, v{t + 7}")
        a(f"v_cvt_pk_bf16_f32 v{t + 8}, v{t + 0}, v{t + 1}")
        a(f"v_cvt_pk_bf16_f32 v{t + 9}, v{t + 2}, v{t + 3}")
        a(f"ds_write_b64 v14, v[{t + 8}:{t + 9}] offset:{2560 + 16 * (3 - j)}")
    a("s_waitcnt lgkmcnt(4)")
    for j in range(4):
        a(f"ds_write_b64 v14, v[{54 + 2 * j}:{55 + 2 * j}] offset:{16 * (3 - j)}")
    a("s_waitcnt lgkmcnt(0)")
    for i in range(2):
        a(f"ds_read_b128 v[{18 + 4 * i}:{21 + 4 * i}], v15 offset:{2560 + 1280 * i}")
    for i in range(2):
        a(f"ds_read_b128 v[{26 + 4 * i}:{29 + 4 * i}], v15 offset:{1280 * i}")
    a(f"v_add_u32 v17, {640 * 4096}, v16")
    a("v_add_u32 v34, 65536, v17")
    a("v_add_u32 v35, 65536, v16")
    scout(a, None)
    a("s_waitcnt lgkmcnt(3)")
    a("buffer_store_dwordx4 v[18:21], v17, s[64:67], 0 offen" + SC1)
    a("s_waitcnt lgkmcnt(2)")
    a("buffer_store_dwordx4 v[22:25], v34, s[64:67], 0 offen" + SC1)
    a("s_waitcnt lgkmcnt(1)")
    a("buffer_store_dwordx4 v[26:29], v16, s[64:67], 0 offen" + SC1)
    a("s_waitcnt lgkmcnt(0)")
    a("buffer_store_dwordx4 v[30:33], v35, s[64:67], 0 offen" + SC1)
    a("s_waitcnt vmcnt(4)")
    a(f"v_mov_b32 v36, {KG_CNT + 16}")
    lds_signal(a, 36, 37)
    lds_wait_count(a, 36, 38, 14, 5, "tileq_spin")
    a("v_and_b32 v46, 3, v3")
    a("v_lshlrev_b32 v47, 1, v46")
    a("v_subrev_u32 v47, 3, v47")
    a("v_mul_i32_i24 v47, 320, v47")
    a("v_add_u32 v47, v13, v47")
    for j in range(4):
        a(f"ds_read_b64_tr_b16 v[{54 + 2 * j}:{55 + 2 * j}], v47 offset:{TW_RAWQ + 2560 * j}")
    a("v_lshlrev_b32 v48, 4, v9")
    a("v_add_u32 v48, v14, v48")
    a("v_subrev_u32 v48, 8, v48")
    a("s_lshl_b32 s14, s8, 7")
    a(f"s_add_u32 s14, s14, {WS_QT - 4032}")
    a("v_add_u32 v49, s14, v16")
    a("v_add_u32 v50, 65536, v49")
    a("s_waitcnt lgkmcnt(0)")
    for j in range(4):
        a(f"ds_write_b64 v48, v[{54 + 2 * j}:{55 + 2 * j}] offset:{16 * j}")
    a("s_waitcnt lgkmcnt(0)")
    for i in range(2):
        a(f"ds_read_b128 v[{64 + 4 * i}:{67 + 4 * i}], v15 offset:{1280 * i}")
    a("s_waitcnt lgkmcnt(1)")
    a("buffer_store_dwordx4 v[64:67], v49, s[64:67], 0 offen" + SC1)
    a("s_waitcnt lgkmcnt(0)")
    a("buffer_store_dwordx4 v[68:71], v50, s[64:67], 0 offen" + SC1)
    if STAMP:
        stamp(a, 4)
        a("s_waitcnt vmcnt(0)")
        stamp(a, 5)
        stamp_flush(a, 6, 0)
    a("s_endpgm")


LOG2E = 0x3fb8aa3b
INV2PI = 0x3e22f983


def cmul(a, d, x, y, t):
    a(f"v_pk_mul_f32 v[{t}:{t + 1}], v[{x}:{x + 1}], v[{y}:{y + 1}] op_sel:[0,0] op_sel_hi:[0,1]")
    a(f"v_pk_fma_f32 v[{d}:{d + 1}], v[{x}:{x + 1}], v[{y}:{y + 1}], v[{t}:{t + 1}] op_sel:[1,1,0] op_sel_hi:[1,0,1] neg_lo:[0,1,0]")


KG_BUF = 4608
KG_WAVE = 2 * KG_BUF


def scout(a, entry):
    if OPT_SCOUT:
        a("s_cbranch_execz L_scout_ret")
        if entry:
            a.label("L_sc_" + entry)


def scout_entry(a, entry):
    if OPT_SCOUT:
        a.label("L_sc_" + entry)


def emit_kgen_issue(a):
    a.c("---- kgen waves: issue parameter loads as early as possible ----")
    a("s_sub_u32 s6, s3, 5")
    a("s_mul_i32 s7, s6, 43")
    a("s_lshr_b32 s7, s7, 7")
    a("s_mov_b32 s67, s7")
    a("s_mul_i32 s4, s7, 3")
    a("s_sub_u32 s4, s6, s4")
    a("s_lshr_b32 s5, s2, 1")
    a("s_mul_i32 s5, s5, 5")
    a("s_and_b32 s8, s2, 1")
    a("s_mul_i32 s9, s8, 3")
    a("s_add_u32 s5, s5, s9")
    a("s_add_u32 s5, s5, s7")
    a("s_lshr_b32 s9, s7, 1")
    a("s_and_b32 s9, s9, s8")
    a("s_cmp_eq_u32 s9, 1")
    a("s_cbranch_scc1 L_prep_exit")
    a("s_mul_i32 s9, s5, 384")
    a("s_lshl_b32 s7, s4, 7")
    a("s_add_u32 s9, s9, s7")
    a("v_lshl_add_u32 v3, v2, 1, s9")
    for r in range(10, 14):
        a(f"v_mov_b32 v{r}, 0")
    a("s_lshl_b32 s7, s5, 1")
    a("s_and_b32 s7, s7, 0xfffffffc")
    a("s_mov_b32 s50, 245760")
    a("s_mov_b32 s51, 0x00020000")
    a("s_mov_b32 s54, 245760")
    a("s_mov_b32 s55, 0x00020000")
    a("s_mov_b32 s58, 245760")
    a("s_mov_b32 s59, 0x00020000")
    a("s_mov_b32 s62, 245760")
    a("s_mov_b32 s63, 0x00020000")
    a("v_lshlrev_b32 v4, 2, v2")
    a(f"v_add_u32 v4, {KG_CNT}, v4")
    a("v_mov_b32 v5, 0")
    a("s_mov_b64 exec, 31")
    a("ds_write_b32 v4, v5")
    a("s_mov_b64 exec, -1")
    a("s_waitcnt lgkmcnt(0)")
    stamp(a, 1)
    for srd, p, dst in ((48, P_LOGA, 10), (52, P_AIM, 11), (56, P_CR, 12), (60, P_CI, 13)):
        a(f"s_mov_b32 s{srd}, s{p}")
        a(f"s_and_b32 s{srd + 1}, s{p + 1}, 0xffff")
        a(f"buffer_load_short_d16_hi v{dst}, v3, s[{srd}:{srd + 3}], 0 offen")
    a("s_barrier")
    a(f"s_load_dword s64, s[{P_LDT}:{P_LDT + 1}], s7")
    a(f"s_load_dword s65, s[{P_DSK}:{P_DSK + 1}], s7")
    if KGREP:
        a(f"s_mov_b32 s68, {KGREP}")
    a("s_branch L_kgen")


def emit_kgen(a):
    a.c("---- S4D kernel generation: 64 modes per wave ----")
    a(f"s_mul_i32 s8, s6, {KG_WAVE}")
    a(f"s_add_u32 s8, s8, {KG_OFF}")
    make_srd(a, 72, P_WS, WS_END)
    a("s_mov_b32 m0, s8")
    a("v_and_b32 v5, 15, v2")
    a("v_lshrrev_b32 v6, 4, v2")
    a("v_mul_u32_u24 v7, 288, v5")
    a("v_lshl_add_u32 v7, v6, 4, v7")
    a("v_add_u32 v7, s8, v7")
    a("v_lshlrev_b32 v8, 4, v2")
    a("v_add_u32 v9, s8, v8")
    a("v_lshlrev_b32 v60, 4, v5")
    a("v_add_u32 v60, s8, v60")
    a("v_and_b32 v61, 1, v6")
    a("v_lshrrev_b32 v62, 1, v6")
    a("v_lshl_add_u32 v56, v61, 3, v60")
    a("v_lshl_add_u32 v56, v62, 8, v56")
    a("v_lshl_add_u32 v57, v6, 8, v60")
    a("v_add_u32 v57, 512, v57")
    a("v_lshl_add_u32 v58, v6, 9, v60")
    a("v_cmp_gt_u32 vcc, 2, v6")
    a("v_mov_b32 v61, 8")
    a("v_mov_b32 v62, 4")
    a("v_cndmask_b32 v57, v58, v57, vcc")
    a("v_cndmask_b32 v61, v61, v62, vcc")
    a("v_add_u32 v58, v57, v61")
    a("v_mov_b32 v61, 256")
    a("v_mov_b32 v62, 8")
    a("v_cndmask_b32 v61, v61, v62, vcc")
    a("v_add_u32 v59, v57, v61")
    a("v_mov_b32 v61, 264")
    a("v_mov_b32 v62, 12")
    a("v_cndmask_b32 v61, v61, v62, vcc")
    a("v_add_u32 v124, v57, v61")
    a("v_lshl_add_u32 v61, v6, 10, v60")
    a("v_add_u32 v61, 2048, v61")
    a("v_lshlrev_b32 v62, 1, v2")
    a("v_add_u32 v62, s8, v62")
    a("v_add_u32 v62, 5120, v62")
    a("v_cndmask_b32 v126, v62, v61, vcc")
    a("v_cmp_gt_u32 vcc, 3, v6")
    a("s_nop 1")
    a("v_cndmask_b32 v125, v62, v61, vcc")
    a("v_and_b32 v60, 1, v2")
    a("v_cmp_eq_u32 vcc, 1, v60")
    a("v_mov_b32 v61, 0x05040100")
    a("v_mov_b32 v62, 0x05040504")
    a("v_cndmask_b32 v127, v61, v62, vcc")
    a("s_mul_i32 s6, s5, 4096")
    a(f"s_add_u32 s6, s6, {WS_KA}")
    a("v_add_u32 v63, s6, v8")
    a("s_mov_b32 s12, 0x01000100")
    a("s_mov_b32 s13, 0x05040100")
    a(f"s_mov_b32 s9, {LOG2E:#x}")
    a(f"s_mov_b32 s10, {INV2PI:#x}")
    (stamp(a, 2) if not KGREP else None)
    a("s_waitcnt lgkmcnt(0)")
    a("s_and_b32 s66, s5, 1")
    a("s_lshl_b32 s66, s66, 4")
    a("s_lshr_b32 s64, s64, s66")
    a("s_lshl_b32 s64, s64, 16")
    a("s_lshr_b32 s65, s65, s66")
    a("s_lshl_b32 s65, s65, 16")
    a("v_mov_b32 v14, s64")
    a("v_mov_b32 v15, s65")
    a("v_cmp_eq_u32 vcc, 0, v2")
    a("s_nop 1")
    a("v_cndmask_b32 v15, 0, v15, vcc")
    a("v_cmp_gt_u32 vcc, 32, v2")
    a("s_waitcnt vmcnt(0)")
    if KGREP:
        a("v_mov_b32 v56, v10")
        a("v_mov_b32 v57, v11")
        a("v_mov_b32 v58, v12")
        a("v_mov_b32 v59, v13")
        a.label("L_kg_again")
        a("v_mov_b32 v10, v56")
        a("v_mov_b32 v11, v57")
        a("v_mov_b32 v12, v58")
        a("v_mov_b32 v13, v59")
        a("v_mov_b32 v14, s64")
        a("s_cmp_eq_u32 s68, %d" % KGREP)
        a("s_cbranch_scc0 L_kg_n1")
        a("s_memrealtime s[86:87]")
        a("s_memtime s[88:89]")
        a.label("L_kg_n1")
        a("s_cmp_eq_u32 s68, %d" % (KGREP - 1))
        a("s_cbranch_scc0 L_kg_n2")
        a("s_memrealtime s[90:91]")
        a("s_memtime s[92:93]")
        a.label("L_kg_n2")
        a("s_cmp_eq_u32 s68, %d" % (KGREP - 2))
        a("s_cbranch_scc0 L_kg_n3")
        a("s_memrealtime s[94:95]")
        a("s_memtime s[96:97]")
        a.label("L_kg_n3")
    (stamp(a, 3) if not KGREP else None)
    a("s_setprio 0")
    scout_entry(a, "K0")
    a("v_mul_f32 v14, s9, v14")
    a("v_mul_f32 v10, s9, v10")
    a("v_exp_f32 v14, v14")
    a("v_exp_f32 v10, v10")
    a("s_nop 0")
    a("v_cvt_pk_bf16_f32 v14, v14, v10")
    a("v_and_b32 v10, 0xffff0000, v14")
    a("v_lshlrev_b32 v14, 16, v14")
    a("v_mul_f32 v10, v10, v14")
    a("v_mul_f32 v11, v11, v14")
    a("v_add_f32 v14, v14, v14")
    a("v_mul_f32 v16, v12, v14")
    a("v_mul_f32 v17, v13, v14")
    a("v_mul_f32 v10, s9, v10")
    a("v_sub_f32 v10, 0, v10")
    a("v_mul_f32 v11, s10, v11")
    def cexp(dst, scale):
        t0, t1, t2 = 24, 25, 26
        if scale == 1:
            a(f"v_mov_b32 v{t0}, v10")
            a(f"v_mov_b32 v{t1}, v11")
        else:
            a(f"v_mul_f32 v{t0}, {f32hex(scale)}, v10")
            a(f"v_mul_f32 v{t1}, {f32hex(scale)}, v11")
        a(f"v_rndne_f32 v{t2}, v{t1}")
        a(f"v_exp_f32 v{t0}, v{t0}")
        a(f"v_sub_f32 v{t1}, v{t1}, v{t2}")
        a(f"v_cos_f32 v{t2}, v{t1}")
        a(f"v_sin_f32 v{t1}, v{t1}")
        a("s_nop 0")
        a(f"v_mul_f32 v{dst}, v{t0}, v{t2}")
        a(f"v_mul_f32 v{dst + 1}, v{t0}, v{t1}")
    cexp(18, 1)
    cexp(20, 8)
    cexp(22, 128)
    E1, E8, E128, C2 = 18, 20, 22, 16
    TMP = [24, 26, 28, 30]
    R = [32 + 2 * j for j in range(8)]
    EJ, YB = 48, 50
    CV = [52, 53, 54, 55]
    def wr_row(src, buf, row, negim, cv):
        neg = "-" if negim else ""
        a(f"v_cvt_pk_bf16_f32 v{cv}, v{src}, {neg}v{src + 1}")
        a(f"ds_write_addtid_b32 v{cv} offset:{buf * KG_BUF + row * 288}")

    a("v_mov_b32 v52, 0x3f80")
    a("ds_write_addtid_b32 v52 offset:0")
    wr_row(E8, 0, 1, True, 53)
    a(f"v_mov_b32 v{R[0]}, v{C2}")
    a(f"v_mov_b32 v{R[0] + 1}, v{C2 + 1}")
    ycur = E8
    for b in range(2, 16):
        if b == 3:
            scout(a, "K1")
        if b == 10:
            scout(a, "K2")
        src = ycur
        cmul_y = (YB, src, E8, TMP[0])
        if b - 1 <= 7:
            j = b - 1
            a(f"v_pk_mul_f32 v[{TMP[0]}:{TMP[0] + 1}], v[{src}:{src + 1}], v[{E8}:{E8 + 1}] op_sel:[0,0] op_sel_hi:[0,1]")
            a(f"v_pk_mul_f32 v[{TMP[1]}:{TMP[1] + 1}], v[{R[j - 1]}:{R[j - 1] + 1}], v[{E1}:{E1 + 1}] op_sel:[0,0] op_sel_hi:[0,1]")
            a(f"v_pk_fma_f32 v[{YB}:{YB + 1}], v[{src}:{src + 1}], v[{E8}:{E8 + 1}], v[{TMP[0]}:{TMP[0] + 1}] op_sel:[1,1,0] op_sel_hi:[1,0,1] neg_lo:[0,1,0]")
            a(f"v_pk_fma_f32 v[{R[j]}:{R[j] + 1}], v[{R[j - 1]}:{R[j - 1] + 1}], v[{E1}:{E1 + 1}], v[{TMP[1]}:{TMP[1] + 1}] op_sel:[1,1,0] op_sel_hi:[1,0,1] neg_lo:[0,1,0]")
            wr_row(R[j - 1], 1, j - 1, False, 54)
        else:
            cmul(a, YB, src, E8, TMP[0])
            j = b - 9
            if j == 0:
                wr_row(R[7], 1, 7, False, 54)
            cmul(a, R[j], R[j], E128, TMP[1])
            wr_row(R[j], 1, 8 + j, False, 54)
        wr_row(YB, 0, b, True, 53)
        ycur = YB
    cmul(a, R[7], R[7], E128, TMP[1])
    wr_row(R[7], 1, 15, False, 54)
    scout(a, "K3")
    YOP, XOP, ACC = 64, 80, 96
    a("s_waitcnt lgkmcnt(0)")
    for ks in range(4):
        a(f"ds_read_b128 v[{YOP + 4 * ks}:{YOP + 4 * ks + 3}], v7 offset:{64 * ks}")
    for ks in range(4):
        a(f"ds_read_b128 v[{XOP + 4 * ks}:{XOP + 4 * ks + 3}], v7 offset:{KG_BUF + 64 * ks}")
    for idx, j in enumerate([0, 2, 4, 6]):
        cmul(a, R[j], R[j], E128, TMP[idx % 4])
    a("s_waitcnt lgkmcnt(4)")
    for idx, j in enumerate([0, 2, 4, 6]):
        wr_row(R[j], 0, idx, False, CV[idx])
    for idx, j in enumerate([0, 2, 4, 6]):
        cmul(a, R[j], R[j], E128, TMP[idx % 4])
    a("s_waitcnt lgkmcnt(4)")
    for ks in range(4):
        c = "0" if ks == 0 else f"v[{ACC}:{ACC + 3}]"
        a(f"v_mfma_f32_16x16x32_bf16 v[{ACC}:{ACC + 3}], v[{XOP + 4 * ks}:{XOP + 4 * ks + 3}], v[{YOP + 4 * ks}:{YOP + 4 * ks + 3}], {c}")
    for idx, j in enumerate([0, 2, 4, 6]):
        wr_row(R[j], 0, 4 + idx, False, CV[idx])
    scout(a, "K4")
    for aa in range(4):
        for idx, j in enumerate([0, 4]):
            cmul(a, R[j], R[j], E128, TMP[idx])
        for idx, j in enumerate([0, 4]):
            wr_row(R[j], 0, 8 + 2 * aa + idx, False, CV[(2 * aa + idx) % 4])
    for aa in range(9):
        cmul(a, R[0], R[0], E128, TMP[aa % 2])
        wr_row(R[0], 1, aa, False, CV[aa % 4])
    a("s_waitcnt lgkmcnt(9)")
    for ks in range(4):
        a(f"ds_read_b128 v[{XOP + 4 * ks}:{XOP + 4 * ks + 3}], v7 offset:{64 * ks}")
    a("s_waitcnt lgkmcnt(0)")
    for ks in range(4):
        c = "0" if ks == 0 else f"v[{ACC + 4}:{ACC + 7}]"
        a(f"v_mfma_f32_16x16x32_bf16 v[{ACC + 4}:{ACC + 7}], v[{XOP + 4 * ks}:{XOP + 4 * ks + 3}], v[{YOP + 4 * ks}:{YOP + 4 * ks + 3}], {c}")
    XO2 = 108
    for ks in range(4):
        a(f"ds_read_b128 v[{XO2 + 4 * ks}:{XO2 + 4 * ks + 3}], v7 offset:{KG_BUF + 64 * ks}")
    a("s_waitcnt lgkmcnt(0)")
    for ks in range(4):
        c = "0" if ks == 0 else f"v[{ACC + 8}:{ACC + 11}]"
        a(f"v_mfma_f32_16x16x32_bf16 v[{ACC + 8}:{ACC + 11}], v[{XO2 + 4 * ks}:{XO2 + 4 * ks + 3}], v[{YOP + 4 * ks}:{YOP + 4 * ks + 3}], {c}")
    if KGREP:
        a("s_nop 7")
        a("s_nop 7")
        a("s_sub_u32 s68, s68, 1")
        a("s_cmp_gt_u32 s68, 0")
        a("s_cbranch_scc1 L_kg_again")
        a("s_memrealtime s[98:99]")
    scout(a, None)
    a("s_nop 7")
    a("s_nop 1")
    done = a.newlabel("kg_w0")
    a("s_cmp_eq_u32 s4, 0")
    a(f"s_cbranch_scc1 {done}")
    for t in range(3):
        a(f"ds_write_b128 v9, v[{ACC + 4 * t}:{ACC + 4 * t + 3}] offset:{1024 * t}")
    a("s_lshl_b32 s15, s67, 2")
    a(f"s_add_u32 s15, s15, {KG_CNT}")
    a("v_mov_b32 v10, s15")
    a("v_mov_b32 v11, 1")
    a("s_waitcnt lgkmcnt(0)")
    lds_signal(a, 10, 11)
    if STAMP:
        (stamp(a, 4) if not KGREP else None)
        (stamp(a, 5) if not KGREP else None)
        stamp_flush(a, 8, 0)
    a("s_endpgm")
    a.label(done)
    a("s_lshl_b32 s15, s67, 2")
    a(f"s_add_u32 s15, s15, {KG_CNT}")
    a("v_mov_b32 v10, s15")
    lds_wait_count(a, 10, 11, 14, 2, "kg_spin")
    (stamp(a, 4) if not KGREP else None)
    scout_entry(a, "F0")
    for wv in (1, 2):
        for t in range(3):
            a(f"ds_read_b128 v[{32 + 12 * (wv - 1) + 4 * t}:{35 + 12 * (wv - 1) + 4 * t}], v9 offset:{wv * KG_WAVE + 1024 * t}")
    a("s_waitcnt lgkmcnt(0)")
    for i in range(12):
        a(f"v_add_f32 v{ACC + i}, v{ACC + i}, v{32 + i}")
    for i in range(12):
        a(f"v_add_f32 v{ACC + i}, v{ACC + i}, v{44 + i}")
    a(f"v_add_f32 v{ACC}, v{ACC}, v15")
    for i in range(6):
        a(f"v_cvt_pk_bf16_f32 v{56 + i - 24}, v{ACC + 2 * i}, v{ACC + 2 * i + 1}")
    scout(a, "F1")
    a("ds_write_b16 v56, v32 offset:0")
    a("ds_write_b16_d16_hi v56, v32 offset:2")
    a("ds_write_b16 v56, v33 offset:4")
    a("ds_write_b16_d16_hi v56, v33 offset:6")
    a("ds_write_b16 v57, v34")
    a("ds_write_b16_d16_hi v58, v34")
    a("ds_write_b16 v59, v35")
    a("ds_write_b16_d16_hi v124, v35")
    a("ds_write_b16 v125, v36 offset:0")
    a("ds_write_b16_d16_hi v126, v36 offset:256")
    a("ds_write_b16 v126, v37 offset:512")
    a("ds_write_b16_d16_hi v126, v37 offset:768")
    a("s_waitcnt lgkmcnt(0)")
    SL = [40, 48, 64, 70]
    for s in range(4):
        a(f"ds_read_b128 v[{SL[s]}:{SL[s] + 3}], v9 offset:{1024 * s}")
        a(f"ds_read_b32 v{SL[s] + 4}, v9 offset:{1024 * s + 16}")
    a("s_waitcnt lgkmcnt(0)")
    def perm(d, s0, s1, sel):
        a(f"v_perm_b32 v{d}, v{s0}, v{s1}, {sel}")
    perm(76, 40, 40, "s12"); perm(77, 42, 41, "s13"); perm(78, 42, 42, "s12"); perm(79, 44, 43, "s13")
    for i in range(4):
        a(f"v_cndmask_b32 v{76 + i}, v{76 + i}, v{40 + i}, vcc")
    perm(80, 48, 48, "s12"); perm(81, 50, 48, "s13"); perm(82, 50, 50, "s12"); perm(83, 52, 52, "s12")
    for s_, o in ((2, 84), (3, 88)):
        d0, d4 = SL[s_], SL[s_] + 4
        perm(o, d0, d0, "s12"); perm(o + 1, d0, d0, "s12"); perm(o + 2, d4, d0, "v127"); perm(o + 3, d4, d4, "s12")
    scout(a, None)
    for s_, o in ((0, 76), (1, 80), (2, 84), (3, 88)):
        a(f"buffer_store_dwordx4 v[{o}:{o + 3}], v63, s[72:75], 0 offen offset:{1024 * s_}" + SC1)
    dbg_stamp(a, 1, 0, 60, 61)
    if STAMP:
        a("s_waitcnt vmcnt(0)")
        (stamp(a, 5) if not KGREP else None)
        stamp_flush(a, 8, 0)
    a("s_endpgm")


def f32hex(x):
    import struct
    return hex(struct.unpack("<I", struct.pack("<f", float(x)))[0])


def emit_prep(a):
    k = "prep_kernel"
    a.raw(f".globl {k}")
    a.raw(".p2align 8")
    a.raw(f".type {k},@function")
    a.label(k)
    a("s_cmp_ge_u32 s2, 256")
    a("s_cbranch_scc1 L_prep_exit")
    stamp(a, 0)
    load_kernargs(a)
    code_prefetch(a, "L_prep_exit", 120, 121)
    a("v_lshrrev_b32 v1, 6, v0")
    a("v_and_b32 v2, 63, v0")
    a("s_nop 0")
    a("v_readfirstlane_b32 s3, v1")
    a("s_mov_b32 s4, 0x9b436210")
    a("s_mov_b32 s5, 0xa7cd85")
    a("s_lshl_b32 s3, s3, 2")
    a("s_lshr_b64 s[4:5], s[4:5], s3")
    a("s_and_b32 s3, s4, 15")
    a("s_cmp_lt_u32 s3, 5")
    a("s_cbranch_scc1 L_tile")
    if NOKGEN:
        a("s_endpgm")
    a("s_setprio 3")
    emit_kgen_issue(a)
    a.label("L_tile")
    emit_tilewave(a)
    a.label("L_kgen")
    emit_kgen(a)
    a.label("L_prep_exit")
    a("s_endpgm")


class Lay:
    def __init__(self, name, half, tiles, jobs):
        self.name = name
        self.half = half
        self.tiles = list(tiles)
        self.jobs = jobs
        self.nslot = 8 * jobs
        self.ubytes = 2048 if half else 4096
        self.UP = self.ubytes + 512
        self.PO = self.ubytes + 64
        self.KP = 2 * self.PO
        self.YP = 2112
        self.U0 = 0
        self.K0 = self.nslot * self.UP
        self.Y0 = self.K0 + self.nslot * self.KP
        self.end = self.Y0 + self.nslot * self.YP
        self.nd = self.ubytes // 1024


T1 = Lay("T1", False, range(4, 8), 1)
T2 = Lay("T2", True, range(0, 4), 2)
K2_LDS = max(T1.end, T2.end)
assert T1.K0 % 128 == 0 and T1.KP % 128 == 0 and T1.PO % 128 == 64
assert T2.K0 % 128 == 0 and T2.KP % 128 == 0 and T2.PO % 128 == 64

V_U, V_KB, V_YW, V_TR, V_OUT, V_Q, V_L16, V_T0, V_T1 = 4, 5, 9, 10, 11, 12, 13, 14, 15
V_ACC = 16
V_B = 48
V_QD = 32
V_E = 88
V_K0 = 2


class Stream:
    def __init__(self, a, max_out=14):
        self.a = a
        self.q = []
        self.n = 0
        self.max_out = max_out
        self.done = set()

    def ins(self, txt):
        self.a(txt)
        self.n += 1

    def lds(self, txt, tag):
        if len(self.q) >= self.max_out:
            keep = self.max_out - 1
            self._wait(keep)
        self.ins(txt)
        self.q.append(tag)

    def _wait(self, keep):
        if len(self.q) > keep:
            self.ins(f"s_waitcnt lgkmcnt({keep})")
            for t in self.q[:len(self.q) - keep]:
                self.done.add(t)
            self.q = self.q[len(self.q) - keep:]

    def need(self, tags):
        last = -1
        for i, t in enumerate(self.q):
            if t in tags:
                last = i
        if last >= 0:
            self._wait(len(self.q) - 1 - last)

    def pad_since(self, n0, states):
        k = states - (self.n - n0)
        while k > 0:
            c = min(k, 16)
            self.ins(f"s_nop {c - 1}")
            self.n += c - 1
            k -= c


def emit_conv_body(a, T):
    J = T.jobs
    a("s_lshl_b32 s8, s5, 3")
    a("s_add_u32 s8, s8, s3")
    a("s_mul_i32 s9, s4, 640")
    a("s_add_u32 s9, s9, s8")
    a("s_lshl_b32 s10, s8, 12")
    a("s_lshl_b32 s13, s9, 12")
    if T.half:
        a("s_add_u32 s13, s13, 2048")
    a(f"s_mul_i32 s70, s3, {T.UP}")
    a(f"s_mul_i32 s71, s3, {T.KP}")
    a(f"s_add_u32 s71, s71, {T.K0}")
    a(f"v_lshlrev_b32 v{V_L16}, 4, v1")
    a("v_and_b32 v88, 15, v1")
    a("v_lshrrev_b32 v89, 4, v1")
    a("v_lshlrev_b32 v90, 5, v88")
    a("v_lshlrev_b32 v91, 4, v89")
    a("v_sub_u32 v90, v91, v90")
    a("s_add_u32 s14, s70, 480")
    a(f"v_add_u32 v{V_U}, s14, v90")
    a("v_add_u32 v90, 1, v88")
    a("v_and_b32 v91, 1, v90")
    a("v_lshl_add_u32 v90, v89, 3, v90")
    a("v_lshrrev_b32 v90, 1, v90")
    a("v_lshlrev_b32 v90, 2, v90")
    a(f"v_mul_u32_u24 v91, {T.PO}, v91")
    a("v_add_u32 v90, v90, v91")
    a(f"v_add_u32 v{V_KB}, s71, v90")
    nkb = 2 if T.half else 4
    for kk in range(1, nkb):
        a(f"v_add_u32 v{V_KB + kk}, {1024 * kk}, v{V_KB}")
    if T.half:
        for kk in range(2):
            a(f"v_add_u32 v{V_KB + 2 + kk}, {8 * T.KP + 1024 * kk}, v{V_KB}")
    a(f"s_add_u32 s14, s70, {T.ubytes}")
    a("v_lshl_add_u32 v90, v1, 4, s14")
    a(f"s_sub_u32 s14, s71, {30 * 16}")
    a("v_lshl_add_u32 v91, v1, 4, s14")
    a(f"s_add_u32 s14, s71, {T.PO - 32 * 16}")
    a("v_lshl_add_u32 v92, v1, 4, s14")
    a("v_cmp_gt_u32 vcc, 32, v1")
    a(f"v_mov_b32 v93, {8 * T.KP}")
    a(f"v_mov_b32 v94, {8 * T.UP}")
    a("v_cndmask_b32 v91, v92, v91, vcc")
    a("v_cmp_gt_u32 vcc, 30, v1")
    for r in range(80, 84):
        a(f"v_mov_b32 v{r}, 0")
    a("v_cndmask_b32 v90, v91, v90, vcc")
    a("v_cndmask_b32 v93, v93, v94, vcc")
    a("s_mov_b32 exec_hi, 3")
    for j in range(J):
        a("ds_write_b128 v90, v[80:83]")
        if j + 1 < J:
            a("v_add_u32 v90, v90, v93")
    a("s_mov_b64 exec, -1")
    a(f"s_mul_i32 s14, s3, {T.YP}")
    a(f"s_add_u32 s14, s14, {T.Y0}")
    a("v_lshlrev_b32 v90, 5, v88")
    a("v_lshl_add_u32 v90, v89, 3, v90")
    a(f"v_add_u32 v{V_YW}, s14, v90")
    a(f"v_add_u32 v{V_Q}, s10, v90")
    a("s_and_b32 s12, s3, 3")
    a("v_bfe_u32 v90, v1, 2, 2")
    a(f"v_mul_u32_u24 v90, {T.YP}, v90")
    a("v_and_b32 v91, 3, v1")
    a("v_lshl_add_u32 v90, v91, 3, v90")
    a("v_lshl_add_u32 v90, v89, 5, v90")
    a("s_lshl_b32 s14, s12, 7")
    a(f"s_add_u32 s14, s14, {T.Y0}")
    a(f"v_add_u32 v{V_TR}, s14, v90")
    a("s_lshl_b32 s14, s12, 6")
    a("v_add_u32 v90, s14, v1")
    a("s_lshl_b32 s11, s5, 4")
    a(f"v_mul_u32_u24 v{V_OUT}, 2560, v90")
    a("s_mul_i32 s14, s4, 1280")
    a("s_add_u32 s14, s14, s11")
    a(f"v_add_u32 v{V_OUT}, s14, v{V_OUT}")
    a(f"v_mov_b32 v{V_T0}, s71")
    a(f"s_mov_b32 s50, {WS_KA}")
    a("s_mov_b32 s51, 0x00020000")
    a(f"s_mov_b32 s54, {640 * 4096}")
    a("s_mov_b32 s55, 0x00020000")
    a("s_waitcnt lgkmcnt(0)")
    stamp(a, 1, True)
    if DBGT:
        nd = a.newlabel("nd")
        a("s_cmp_lg_u32 s2, 0")
        a(f"s_cbranch_scc1 {nd}")
        dbg_stamp(a, 2, 512, 86, 87)
        a.label(nd)
    a(f"s_mov_b32 s48, s{P_WS}")
    a(f"s_and_b32 s49, s{P_WS + 1}, 0xffff")
    a(f"s_add_u32 s6, s{P_WS}, {WS_KA}")
    a(f"s_addc_u32 s7, s{P_WS + 1}, 0")
    a("s_cmp_eq_u32 s4, 1")
    a(f"s_cselect_b32 s6, s{P_SSK}, s6")
    a(f"s_cselect_b32 s7, s{P_SSK + 1}, s7")
    a("s_mov_b32 s52, s6")
    a("s_and_b32 s53, s7, 0xffff")

    def dma_one(job, kind, kk):
        if kind == "U":
            src, srd, dst = f"s_add_u32 s15, s13, {job * 32768}", "s[48:51]", f"s_add_u32 m0, s70, {job * 8 * T.UP}"
        elif kind == "E":
            src, srd, dst = f"s_add_u32 s15, s10, {job * 32768}", "s[52:55]", f"s_add_u32 m0, s71, {job * 8 * T.KP + 32}"
        else:
            src, srd, dst = f"s_add_u32 s15, s10, {job * 32768 + 2}", "s[52:55]", f"s_add_u32 m0, s71, {job * 8 * T.KP + T.PO + 32}"
        return [src, dst, "s_nop 0", f"buffer_load_dwordx4 v{V_L16}, {srd}, s15 offen offset:{1024 * kk} lds"]

    if not T.half:
        order = [("U", 3), ("E", 3), ("O", 3), ("E", 2), ("O", 2), ("E", 1), ("O", 1), ("U", 2), ("E", 0), ("O", 0), ("U", 1), ("U", 0)]
        nfirst = 7
    else:
        order = [("U", 1), ("E", 1), ("O", 1), ("E", 0), ("O", 0), ("U", 0)]
        nfirst = 5
    xs = a.newlabel("xdma")
    a("s_cmp_ge_u32 s3, 4")
    a(f"s_cbranch_scc1 {xs}")
    for kind, kk in order[:nfirst]:
        for ln in dma_one(0, kind, kk):
            a(ln)
    a.label(xs)
    stamp(a, 2, True)
    for j in range(J):
        a(f"s_add_u32 s14, s10, {j * 32768}")
        a(f"s_load_dword s{72 + j}, s[6:7], s14")
    a("s_lshl_b32 s11, s8, 1")
    a("s_and_b32 s11, s11, 0xfffffffc")
    for j in range(J):
        a(f"s_add_u32 s14, s11, {16 * j}")
        a(f"s_load_dword s{76 + j}, s[{P_SSD}:{P_SSD + 1}], s14")
    a(f"s_add_u32 s56, s{P_WS}, {WS_QT}")
    a(f"s_addc_u32 s57, s{P_WS + 1}, 0")
    a("s_and_b32 s57, s57, 0xffff")
    a("s_mov_b32 s59, 0x00020000")
    make_srd(a, 60, P_OUT, L * 2560)
    a("s_cmp_eq_u32 s4, 1")
    a(f"s_cselect_b32 s58, {640 * 4096}, 0")
    a("s_cselect_b32 s69, 0, 0x3f803f80")
    a("s_cmp_ge_u32 s3, 4")
    a(f"s_cbranch_scc1 L_{T.name}_Y")
    emit_conv_stream(a, T, 0, order, nfirst, dma_one)
    a.label(f"L_{T.name}_Y")
    emit_conv_stream(a, T, 1, order, nfirst, dma_one)


def emit_conv_stream(a, T, G, order, nfirst, dma_one):
    J = T.jobs
    st = Stream(a)
    vm = []
    k0_ready = [False]

    def make_k0():
        st.ins("s_waitcnt lgkmcnt(0)")
        for t in st.q:
            st.done.add(t)
        st.q = []
        st.ins("s_and_b32 s14, s8, 1")
        st.ins("s_lshl_b32 s14, s14, 4")
        for j in range(J):
            st.ins(f"s_lshl_b32 s{72 + j}, s{72 + j}, 16")
            st.ins(f"s_lshr_b32 s{76 + j}, s{76 + j}, s14")
            st.ins(f"s_lshl_b32 s{76 + j}, s{76 + j}, 16")
        st.ins("s_cmp_eq_u32 s4, 1")
        for j in range(J):
            st.ins(f"s_cselect_b32 s{76 + j}, s{76 + j}, 0")
        for j in range(J):
            st.ins(f"v_mov_b32 v{V_K0 + j}, s{72 + j}")
            st.ins(f"v_add_f32 v{V_K0 + j}, s{76 + j}, v{V_K0 + j}")
            st.ins(f"v_cvt_pk_bf16_f32 v{V_K0 + j}, v{V_K0 + j}, v{V_K0 + j}")
        k0_ready[0] = True

    def patch(j):
        if not k0_ready[0]:
            make_k0()
        st.lds(f"ds_write_b16 v{V_T0}, v{V_K0 + j} offset:{j * 8 * T.KP + 32}", ("patch", j, 0))
        st.lds(f"ds_write_b16 v{V_T0}, v{V_K0 + j} offset:{j * 8 * T.KP + T.PO + 30}", ("patch", j, 1))

    tiles = T.tiles
    nlo, nhi = tiles[0], tiles[-1]

    def phys(j, cp):
        if not T.half:
            return cp % 5
        return cp if j == 0 else (cp + 1)

    mf = []
    seen = set()
    for j in range(J):
        for m in range(0, nhi + 1):
            ns = list(range(nhi, max(m, nlo) - 1, -1))
            if m == 0 and j == 0 and OPT_NOUT:
                pairs = [(r, n) for n in ns for r in range(8)]
            else:
                pairs = [(r, n) for r in range(8) for n in ns]
            for r, n in pairs:
                cp = n - m
                first = (j, n) not in seen
                seen.add((j, n))
                mf.append(dict(rd=j, m=m, r=r, n=n, cp=cp, c=8 * cp + r, aslot=8 * phys(j, cp) + r, bslot=r,
                               first=first, atag=("A", j, 8 * cp + r), btag=("B", j, m, r)))
    nM = len(mf)
    loads = []
    have = set()
    last_use_a, last_use_b = {}, {}
    prev_last_b = {}
    lastb_by_tag = {}
    for i, x in enumerate(mf):
        lastb_by_tag[x['btag']] = i
    slot_prev_tag = {}
    for i, x in enumerate(mf):
        if x['btag'] not in have:
            have.add(x['btag'])
            pt = slot_prev_tag.get(x['bslot'])
            loads.append(dict(tag=x['btag'], kind='B', need=i, free=(lastb_by_tag[pt] if pt else -1), x=x))
            slot_prev_tag[x['bslot']] = x['btag']
        if x['atag'] not in have:
            have.add(x['atag'])
            loads.append(dict(tag=x['atag'], kind='A', need=i, free=last_use_a.get(x['aslot'], -1), x=x))
        last_use_a[x['aslot']] = i
    first_idx = {}
    for i, x in enumerate(mf):
        first_idx.setdefault(x['rd'], i)

    uoff0 = 1536 if T.half else 3584

    def src_pieces(ld):
        x = ld['x']
        j = x['rd']
        if ld['kind'] == 'B':
            gamma = 8 * x['m'] - x['r']
            lo = uoff0 - 64 * gamma
            hi = lo + 528 + 16
            return {("dma", j, "U", k_) for k_ in range(T.nd) if lo < 1024 * (k_ + 1) and hi > 1024 * k_}
        c = x['c']
        lo = 64 * c - 32
        hi = 64 * c + 96
        out = set()
        for k_ in range(T.nd):
            if lo < 1024 * (k_ + 1) and hi > 1024 * k_:
                out |= {("dma", j, "E", k_), ("dma", j, "O", k_)}
        if c == 0:
            out.add(("patched", j))
        return out

    landed = set()

    def vwait(tags):
        idx = [i for i, t in enumerate(vm) if t in tags and t not in landed]
        if not idx:
            return
        last = max(idx)
        keep = len(vm) - 1 - last
        st.ins(f"s_waitcnt vmcnt({keep})")
        for t in vm[:last + 1]:
            landed.add(t)

    def ensure(ld):
        need = src_pieces(ld)
        j = ld['x']['rd']
        if ("patched", j) in need:
            need.discard(("patched", j))
            if ("patched", j) not in landed:
                vwait({("dma", j, "E", 0)})
                patch(j)
                landed.add(("patched", j))
        for t in need:
            assert t in vm, ("DMA piece not issued before use", t, ld['x'])
        vwait(need)

    def available(ld):
        for t in src_pieces(ld):
            if t[0] != "patched" and t not in vm:
                return False
        return True

    def emit_load(ld):
        x = ld['x']
        j = x['rd']
        ensure(ld)
        if ld['kind'] == 'B':
            gamma = 8 * x['m'] - x['r']
            off = uoff0 - 64 * gamma + j * 8 * T.UP
            d = V_B + 4 * x['bslot']
            st.lds(f"ds_read_b128 v[{d}:{d + 3}], v{V_U} offset:{off}", ld['tag'])
        else:
            c = x['c']
            base = V_KB + (c >> 4) + (2 * j if T.half else 0)
            o = 16 * (c & 15)
            d = 4 * x['aslot']
            st.lds(f"ds_read2_b32 a[{d}:{d + 1}], v{base} offset0:{o} offset1:{o + 1}", (ld['tag'], 0))
            st.lds(f"ds_read2_b32 a[{d + 2}:{d + 3}], v{base} offset0:{o + 2} offset1:{o + 3}", ld['tag'])

    aux = {}

    def add_aux(i, fn):
        aux.setdefault(min(i, nM), []).append(fn)

    last_of_tile = {}
    for i, x in enumerate(mf):
        last_of_tile[(x['rd'], x['n'])] = i
    mf_pos = {}

    def vmem(lines, tag):
        for ln in lines:
            st.ins(ln)
        vm.append(tag)

    fillers = []

    def epi1(j, n, urgent):
        def fn():
            i = last_of_tile[(j, n)]
            ab = V_ACC + 4 * (n - nlo)
            qb = V_QD + 2 * (4 * j + n - nlo)
            u = 84
            pre = [f"v_or_b32 v{qb}, s69, v{qb}", f"v_or_b32 v{qb + 1}, s69, v{qb + 1}",
                   f"v_lshlrev_b32 v{u}, 16, v{qb}", f"v_and_b32 v{u + 1}, 0xffff0000, v{qb}",
                   f"v_lshlrev_b32 v{u + 2}, 16, v{qb + 1}", f"v_and_b32 v{u + 3}, 0xffff0000, v{qb + 1}"]
            post = [f"v_mul_f32 v{u}, v{u}, v{ab}", f"v_mul_f32 v{u + 1}, v{u + 1}, v{ab + 1}",
                    f"v_mul_f32 v{u + 2}, v{u + 2}, v{ab + 2}", f"v_mul_f32 v{u + 3}, v{u + 3}, v{ab + 3}",
                    f"v_cvt_pk_bf16_f32 v{u}, v{u}, v{u + 1}", f"v_cvt_pk_bf16_f32 v{u + 1}, v{u + 2}, v{u + 3}"]
            vwait({("q", j, n)})
            for t_ in pre:
                st.ins(t_)
            st.pad_since(mf_pos[i], 8)
            for t_ in post:
                st.ins(t_)
            st.lds(f"ds_write_b64 v{V_YW}, v[{u}:{u + 1}] offset:{j * 8 * T.YP + 512 * (n - nlo)}", ("Y", j, n))
        return fn

    cur = [0]

    def epi2(j, n):
        def fn():
            while fillers:
                fillers.pop(0)[1]()
            st.need({("Y", j, n)})
            st.ins("s_barrier")
            if ((n - nlo) & 1) != G:
                return
            o = j * 8 * T.YP + 512 * (n - nlo)
            t = V_E
            st.lds(f"ds_read_b64_tr_b16 v[{t}:{t + 1}], v{V_TR} offset:{o}", ("T", j, n, 0))
            st.lds(f"ds_read_b64_tr_b16 v[{t + 2}:{t + 3}], v{V_TR} offset:{o + 4 * T.YP}", ("T", j, n, 1))
            rdy = cur[0] + 4

            def fin():
                st.need({("T", j, n, 0), ("T", j, n, 1)})
                vmem([f"s_mov_b32 s68, {n * 256 * 2560 + j * 16}",
                      f"buffer_store_dwordx4 v[{t}:{t + 3}], v{V_OUT}, s[60:63], s68 offen"], ("st", j, n))
            fillers.append((rdy, fin))
        return fn

    for k_, (kind, kk) in enumerate(order[nfirst:]):
        add_aux(1 + 3 * k_, (lambda kind, kk: (lambda: vmem(dma_one(0, kind, kk), ("dma", 0, kind, kk))))(kind, kk))
    rest0 = len(order) - nfirst
    for j in range(1, J):
        start = first_idx[j - 1] + 12
        for k_, (kind, kk) in enumerate(order):
            add_aux(start + 5 * k_, (lambda j, kind, kk: (lambda: vmem(dma_one(j, kind, kk), ("dma", j, kind, kk))))(j, kind, kk))
    for j in range(J):
        for n in tiles:
            at = first_idx[j] + (2 + 3 * rest0 if j == 0 else -24) + 2 * (n - nlo)

            def mkq(j, n):
                def fn():
                    r0 = V_QD + 2 * (4 * j + n - nlo)
                    vmem([f"s_mov_b32 s14, {n * 512 + j * 32768}",
                          f"buffer_load_dwordx2 v[{r0}:{r0 + 1}], v{V_Q}, s[56:59], s14 offen"], ("q", j, n))
                return fn
            add_aux(at, mkq(j, n))

    for j in range(J):
        for n in tiles:
            i = last_of_tile[(j, n)]
            last_in_job = (n == nhi and j + 1 < J)
            add_aux(i + 1 + (0 if last_in_job else 2), epi1(j, n, last_in_job))
            add_aux(i + 1 + 8, epi2(j, n))

    stamp(a, 4, True)
    qa = [ld for ld in loads if ld['kind'] == 'A']
    qb_ = [ld for ld in loads if ld['kind'] == 'B']
    issued = set()
    issue_at = {}
    for j in range(1, J):
        for k_, (kind, kk) in enumerate(order):
            issue_at[("dma", j, kind, kk)] = first_idx[j - 1] + 12 + 5 * k_
    for k_, (kind, kk) in enumerate(order):
        issue_at[("dma", 0, kind, kk)] = -60 if k_ < nfirst else 1 + 3 * (k_ - nfirst) - 20

    def hint(t, i):
        return t in issue_at and i - issue_at[t] > 40

    def next_free(q, i):
        for ld in q:
            if id(ld) in issued:
                continue
            if ld['free'] < i and available(ld):
                if all((t in landed or t[0] == "patched" or ld['need'] - i < 24 or hint(t, i)) for t in src_pieces(ld)):
                    return ld
        return None

    def issue_loads(i, budget):
        cnt = 0
        while cnt < budget:
            cb_ = next_free(qb_, i) if len(st.q) + 1 <= st.max_out else None
            ca_ = next_free(qa, i) if len(st.q) + 2 <= st.max_out else None
            cand = None
            if cb_ is not None and (ca_ is None or cb_['need'] <= ca_['need']):
                cand = cb_
            elif ca_ is not None:
                cand = ca_
            if cand is None:
                break
            emit_load(cand)
            issued.add(id(cand))
            cnt += 2 if cand['kind'] == 'A' else 1
        return cnt

    if G == 1:
        a("s_barrier")
        for kind, kk in order[:nfirst]:
            for ln in dma_one(0, kind, kk):
                a(ln)
    if G == 1 and OPT_CPF and OPT_PF:
        nocp = a.newlabel("nocp")
        a("s_cmp_lg_u32 s3, 7")
        a(f"s_cbranch_scc1 {nocp}")
        lab = a.newlabel("pc")
        a("s_getpc_b64 s[82:83]")
        a.label(lab)
        a("v_lshlrev_b32 v94, 7, v1")
        a(f"v_min_u32 v94, L_end_{T.name}-{lab}-4, v94")
        a("global_load_dword v95, v94, s[82:83]")
        a.label(nocp)
    for kind, kk in order[:nfirst]:
        vm.append(("dma", 0, kind, kk))
    first = True
    for i, x in enumerate(mf):
        cur[0] = i
        if G == 0 and i == 1:
            st.ins("s_barrier")
        if STAMP and STEPSTAMP < 0 and i == 64:
            stamp(a, 6, True)
        if STAMP and STEPSTAMP >= 0 and x['rd'] == STEPSTAMP and (i == 0 or mf[i - 1]['m'] != x['m'] or mf[i - 1]['rd'] != x['rd']):
            a(f"s_memtime s[{ST0 + 2 * x['m']}:{ST0 + 2 * x['m'] + 1}]")
        for fn in aux.get(i, []):
            fn()
        for q_ in (qb_, qa):
            for ld in q_:
                if ld['need'] <= i and id(ld) not in issued:
                    emit_load(ld)
                    issued.add(id(ld))
        if first:
            stamp(a, 5, True)
            first = False
        nl = issue_loads(i, 4 if x['m'] == 0 else 2)
        nf = 0
        while fillers and fillers[0][0] <= i and nf < (3 if nl < 2 else 2):
            fillers.pop(0)[1]()
            nf += 1
        st.need({x['atag'], x['btag']})
        ab = V_ACC + 4 * (x['n'] - nlo)
        src_c = "0" if x['first'] else f"v[{ab}:{ab + 3}]"
        bs = V_B + 4 * x['bslot']
        st.ins(f"v_mfma_f32_16x16x32_bf16 v[{ab}:{ab + 3}], a[{4 * x['aslot']}:{4 * x['aslot'] + 3}], v[{bs}:{bs + 3}], {src_c}")
        mf_pos[i] = st.n
    stamp(a, 7, True)
    cur[0] = nM
    for fn in aux.get(nM, []):
        fn()
    while fillers:
        fillers.pop(0)[1]()
    dbg_stamp(a, 3, 512, 86, 87)
    if STAMP:
        stamp_flush(a, 8, 1)
    if G == 1:
        a.label(f"L_end_{T.name}")
    a("s_endpgm")


def emit_conv(a):
    k = "conv_kernel"
    a.raw(f".globl {k}")
    a.raw(".p2align 8")
    a.raw(f".type {k},@function")
    a.label(k)
    a("s_cmp_ge_u32 s2, 240")
    a("s_cbranch_scc1 L_conv_exit")
    stamp(a, 0, True)
    load_kernargs(a)
    if not OPT_CPF:
        code_prefetch(a, "L_conv_exit", 94, 95)
    a("v_lshrrev_b32 v2, 6, v0")
    a("v_and_b32 v1, 63, v0")
    a("s_and_b32 s6, s2, 7")
    a("v_readfirstlane_b32 s3, v2")
    a("s_lshr_b32 s7, s2, 3")
    a("s_mul_i32 s5, s6, 10")
    a("s_cmp_ge_u32 s7, 20")
    a("s_cbranch_scc1 L_T2")
    a("s_cmp_ge_u32 s7, 10")
    a("s_cselect_b32 s4, 1, 0")
    a("s_mul_i32 s8, s4, 10")
    a("s_sub_u32 s7, s7, s8")
    a("s_add_u32 s5, s5, s7")
    emit_conv_body(a, T1)
    a.label("L_T2")
    a("s_sub_u32 s7, s7, 20")
    a("s_cmp_ge_u32 s7, 5")
    a("s_cselect_b32 s4, 1, 0")
    a("s_mul_i32 s8, s4, 5")
    a("s_sub_u32 s7, s7, s8")
    a("s_lshl_b32 s7, s7, 1")
    a("s_add_u32 s5, s5, s7")
    emit_conv_body(a, T2)
    a.label("L_conv_exit")
    a("s_endpgm")


def kd(name, vgpr, sgpr, accum):
    return f""".amdhsa_kernel {name}
  .amdhsa_next_free_vgpr {vgpr}
  .amdhsa_next_free_sgpr {sgpr}
  .amdhsa_accum_offset {accum}
  .amdhsa_group_segment_fixed_size 0
  .amdhsa_kernarg_size 128
  .amdhsa_user_sgpr_count 2
  .amdhsa_user_sgpr_kernarg_segment_ptr 1
  .amdhsa_system_sgpr_workgroup_id_x 1
.end_amdhsa_kernel
"""


HEADER = open("cdna_kernels/" + NAME + ".s.ref").read().split("; Override launch geometry")[0]


def build():
    a = Asm()
    a.raw(HEADER.rstrip("\n"))
    a.raw(f"; @launch kernel=prep_kernel grid=(256,1,1) block=(896,1,1) lds={K1_LDS}")
    a.raw(f"; @launch kernel=conv_kernel grid=(240,1,1) block=(512,1,1) lds={K2_LDS}")
    a.raw('.amdgcn_target "amdgcn-amd-amdhsa--gfx950"')
    a.raw(".text")
    emit_prep(a)
    emit_conv(a)
    a.raw('.section .rodata,"a"')
    a.raw(".p2align 6")
    a.raw(kd("prep_kernel", 128, 102 if (STAMP or DBGT) else 80, 128))
    a.raw(".p2align 6")
    a.raw(kd("conv_kernel", 256, 102 if (STAMP or DBGT) else 84, 96))
    return a.text()


if __name__ == "__main__":
    out = sys.argv[1] if len(sys.argv) > 1 else "cdna_kernels/" + NAME + ".s"
    open(out, "w").write(build())
    print("wrote", out)
```

```python
import sys

NAME = "concat_heads__ssm_conv_s4d__ssm_conv_h3__prompt"

L = 2048
D = 640
NM = 192
ROWB = 1280
TENS = L * ROWB

WS_UT = 0
WS_KA = 1280 * 4096
WS_QT = WS_KA + 640 * 4096
WS_END = WS_QT + 640 * 4096

P_U, P_LOGA, P_AIM, P_CR, P_CI, P_LDT, P_DSK, P_Q, P_K, P_V, P_SHK, P_SSK, P_SSD, P_OUT, P_DBG, P_WS = [16 + 2 * i for i in range(16)]


import os
STAMP = bool(int(os.environ.get("STAMP", "0")))
STEPSTAMP = int(os.environ.get("STEPSTAMP", "-1"))
OPT_PRIO = int(os.environ.get("OPT_PRIO", "0"))
OPT_YLATE = int(os.environ.get("OPT_YLATE", "1"))
EPI_T2 = int(os.environ.get("EPI_T2", "60"))
EPI_T2_STEP = int(os.environ.get("EPI_T2_STEP", "10"))
OPT_NOUT = int(os.environ.get("OPT_NOUT", "1"))
DBGT = int(os.environ.get("DBGT", "0"))
OPT_QT = int(os.environ.get("OPT_QT", "0"))
QSTART = int(os.environ.get("QSTART", "4"))
QSTEP = int(os.environ.get("QSTEP", "6"))
QSTART_M = int(os.environ.get("QSTART_M", "44"))
QSTEP_M = int(os.environ.get("QSTEP_M", "8"))
OPT_WB = int(os.environ.get("OPT_WB", "1"))
OPT_KFIRST = int(os.environ.get("OPT_KFIRST", "0"))
OPT_WB2 = int(os.environ.get("OPT_WB2", "0"))
OPT_SC1 = int(os.environ.get("OPT_SC1", "0"))
OPT_SKEW = int(os.environ.get("OPT_SKEW", "1"))
OPT_CPF = int(os.environ.get("OPT_CPF", "1"))
OPT_MPF = int(os.environ.get("OPT_MPF", "1"))
OPT_XMAP = int(os.environ.get("OPT_XMAP", "0"))
OPT_SCOUT = int(os.environ.get("OPT_SCOUT", "0"))
KGREP = int(os.environ.get("KGREP", "0"))
NOKGEN = int(os.environ.get("NOKGEN", "0"))
OPT_PF = int(os.environ.get("OPT_PF", "1"))
OPT_RBM = int(os.environ.get("OPT_RBM", "0"))
OPT_LATE = int(os.environ.get("OPT_LATE", "0"))


def code_prefetch(a, endlabel, vtmp, vdst):
    if not OPT_PF:
        return
    lab = a.newlabel("pc")
    a("s_getpc_b64 s[10:11]")
    a.label(lab)
    a(f"v_lshlrev_b32 v{vtmp}, 7, v0")
    a(f"v_min_u32 v{vtmp}, {endlabel}-{lab}-4, v{vtmp}")
    a(f"global_load_dword v{vdst}, v{vtmp}, s[10:11]")


WS_STAMP = 16 << 20
ST0 = 84


def stamp(a, i, k2=False):
    if STAMP and not (k2 and STEPSTAMP >= 0):
        a(f"s_memrealtime s[{ST0 + 2 * i}:{ST0 + 2 * i + 1}]")


def stamp_flush(a, n, kern):
    if not STAMP:
        return
    a("s_waitcnt lgkmcnt(0)")
    make_srd(a, 76, P_WS, WS_STAMP + (4 << 20))
    a("s_lshl_b32 s80, s2, 4")
    a("s_add_u32 s80, s80, s3")
    a("s_lshl_b32 s80, s80, 5")
    a(f"s_add_u32 s80, s80, {WS_STAMP + kern * (1 << 20)}")
    a("s_mov_b64 exec, 1")
    a("v_mov_b32 v250, s80" if False else "v_mov_b32 v9, s80")
    for i in range(n):
        a(f"v_mov_b32 v8, s{ST0 + 2 * i}")
        a(f"buffer_store_dword v8, v9, s[76:79], 0 offen offset:{4 * i}")
    a("s_mov_b64 exec, -1")


SC1 = {0: "", 1: " sc1", 2: " nt", 3: " sc0", 4: " sc0 nt"}[OPT_SC1]


def dbg_stamp(a, slot, back, vA=60, vB=61):
    if not DBGT:
        return
    a("s_memrealtime s[90:91]")
    a("s_waitcnt lgkmcnt(0)")
    a(f"s_sub_u32 s92, s{P_DBG}, {back}")
    a(f"s_subb_u32 s93, s{P_DBG + 1}, 0")
    a(f"v_mov_b32 v{vA}, {4 * slot}")
    a(f"v_mov_b32 v{vB}, s90")
    a("s_mov_b64 s[94:95], exec")
    a("s_mov_b64 exec, 1")
    a(f"global_atomic_umax v{vA}, v{vB}, s[92:93]")
    a("s_mov_b64 exec, s[94:95]")


class Asm:
    def __init__(self):
        self.lines = []
        self.nlab = 0

    def __call__(self, s):
        self.lines.append("    " + s)

    def raw(self, s):
        self.lines.append(s)

    def label(self, s):
        self.lines.append(s + ":")

    def c(self, s):
        self.lines.append("    ; " + s)

    def newlabel(self, base):
        self.nlab += 1
        return f"L_{base}_{self.nlab}"

    def text(self):
        return "\n".join(self.lines) + "\n"


def vr(i, n=1):
    return f"v{i}" if n == 1 else f"v[{i}:{i + n - 1}]"


def ar(i, n=1):
    return f"a{i}" if n == 1 else f"a[{i}:{i + n - 1}]"


def sr(i, n=1):
    return f"s{i}" if n == 1 else f"s[{i}:{i + n - 1}]"


def make_srd(a, dst, ptr, nbytes):
    a(f"s_mov_b32 s{dst}, s{ptr}")
    a(f"s_and_b32 s{dst + 1}, s{ptr + 1}, 0xffff")
    a(f"s_mov_b32 s{dst + 2}, {nbytes}")
    a(f"s_mov_b32 s{dst + 3}, 0x00020000")


def load_kernargs(a):
    a("s_load_dwordx16 s[16:31], s[0:1], 0")
    a("s_load_dwordx16 s[32:47], s[0:1], 64")


TW_RAWK = 0
TW_RAWV = 12288
TW_RAWU = TW_RAWV + 10240
TW_RAWQ = TW_RAWU + 10240
TW_STG = TW_RAWQ + (10240 if OPT_QT else 0)
KG_OFF = TW_STG + 5 * 5120
KG_CNT = KG_OFF + 9 * 9216
K1_LDS = KG_CNT + 64


def lds_signal(a, addr_v, one_v):
    a("s_mov_b64 exec, 1")
    a(f"ds_add_u32 v{addr_v}, v{one_v}")
    a("s_mov_b64 exec, -1")


def lds_wait_count(a, addr_v, tmp_v, tmp_s, count, name):
    spin = a.newlabel(name)
    a.label(spin)
    a(f"ds_read_b32 v{tmp_v}, v{addr_v}")
    a("s_waitcnt lgkmcnt(0)")
    a(f"v_readfirstlane_b32 s{tmp_s}, v{tmp_v}")
    a(f"s_cmp_lt_u32 s{tmp_s}, {count}")
    a(f"s_cbranch_scc1 {spin}")


def emit_tilewave(a):
    a.c("---- tile waves: workgroup tile = 32 rows x 160 channels of u, k, v ; wave w owns 32 channels ----")
    if OPT_XMAP:
        a("s_lshr_b32 s7, s2, 5")
        a("s_lshl_b32 s7, s7, 3")
        a("s_and_b32 s8, s2, 7")
        a("s_add_u32 s8, s8, s7")
        a("s_bfe_u32 s7, s2, 0x20003")
    else:
        a("s_lshr_b32 s8, s2, 2")
        a("s_and_b32 s7, s2, 3")
    a("s_mul_i32 s9, s8, 40960")
    a("s_mul_i32 s10, s7, 320")
    a("s_add_u32 s9, s9, s10")
    a("s_lshl_b32 s11, s3, 6")
    a("s_add_u32 s10, s10, s11")
    a("s_lshl_b32 s12, s3, 6")
    a("v_add_u32 v3, s12, v2")
    a("v_mul_u32_u24 v4, 52429, v3")
    a("v_lshrrev_b32 v4, 20, v4")
    a("v_mul_u32_u24 v5, 20, v4")
    a("v_sub_u32 v5, v3, v5")
    a("v_mul_u32_u24 v6, 1280, v4")
    a("v_lshl_add_u32 v6, v5, 4, v6")
    a("v_add_u32 v5, s9, v6")
    a("v_add_u32 v6, 20480, v5")
    a("v_subrev_u32 v7, 5120, v5")
    a("s_lshl_b32 s12, s3, 10")
    a("s_waitcnt lgkmcnt(0)")
    stamp(a, 1)
    if DBGT:
        nd = a.newlabel("nd")
        a("s_cmp_lg_u32 s2, 0")
        a(f"s_cbranch_scc1 {nd}")
        dbg_stamp(a, 0, 0, 60, 61)
        a.label(nd)
    make_srd(a, 48, P_U, TENS)
    make_srd(a, 52, P_K, TENS)
    make_srd(a, 56, P_V, TENS)
    make_srd(a, 60, P_SHK, 640 * 8)
    if OPT_QT:
        make_srd(a, 72, P_Q, TENS)
    a("v_bfe_u32 v8, v2, 4, 1")
    a("v_and_b32 v10, 15, v2")
    a("v_lshl_add_u32 v11, v8, 4, v10")
    a("s_lshl_b32 s13, s10, 2")
    a("v_lshl_add_u32 v12, v11, 3, s13")
    a("s_barrier")
    a("buffer_load_dwordx2 v[40:41], v12, s[60:63], 0 offen")
    a(f"s_add_u32 m0, s12, {TW_RAWK + 1280}")
    a("s_nop 0")
    a("buffer_load_dwordx4 v5, s[52:55], 0 offen lds")
    a(f"s_add_u32 m0, s12, {TW_RAWK + 1280 + 5120}")
    a("s_nop 0")
    a("buffer_load_dwordx4 v6, s[52:55], 0 offen lds")
    nohalo = a.newlabel("nohalo")
    a("s_cmp_gt_u32 s3, 1")
    a(f"s_cbranch_scc1 {nohalo}")
    a("s_cmp_eq_u32 s3, 0")
    a("s_cselect_b32 exec_hi, -1, 0")
    a("s_cselect_b32 exec_lo, -1, 0xffff")
    a(f"s_add_u32 m0, s12, {TW_RAWK}")
    a("s_nop 0")
    a("buffer_load_dwordx4 v7, s[52:55], 0 offen lds")
    a("s_mov_b64 exec, -1")
    a.label(nohalo)
    for srd, base in (((56, TW_RAWV), (48, TW_RAWU), (72, TW_RAWQ)) if OPT_QT else ((56, TW_RAWV), (48, TW_RAWU))):
        a(f"s_add_u32 m0, s12, {base}")
        a("s_nop 0")
        a(f"buffer_load_dwordx4 v5, s[{srd}:{srd + 3}], 0 offen lds")
        a(f"s_add_u32 m0, s12, {base + 5120}")
        a("s_nop 0")
        a(f"buffer_load_dwordx4 v6, s[{srd}:{srd + 3}], 0 offen lds")
    stamp(a, 2)
    a("v_lshrrev_b32 v3, 2, v2")
    a("v_and_b32 v4, 3, v2")
    a("v_bfe_u32 v8, v2, 4, 1")
    a("v_lshrrev_b32 v9, 5, v2")
    a("v_and_b32 v10, 15, v2")
    a("v_lshl_add_u32 v11, v8, 4, v10")
    make_srd(a, 64, P_WS, WS_END)
    a("v_and_b32 v13, 3, v3")
    a("v_sub_u32 v13, 3, v13")
    a("v_lshl_add_u32 v13, v9, 2, v13")
    a("v_mul_u32_u24 v13, 320, v13")
    a("v_lshl_add_u32 v13, v8, 5, v13")
    a("v_lshl_add_u32 v13, v4, 3, v13")
    a("v_add_u32 v13, s11, v13")
    a("s_mul_i32 s12, s3, 5120")
    a(f"s_add_u32 s12, s12, {TW_STG}")
    a("v_mul_u32_u24 v14, 80, v11")
    a("v_lshlrev_b32 v15, 3, v9")
    a("v_sub_u32 v14, v14, v15")
    a("s_add_u32 s13, s12, 8")
    a("v_add_u32 v14, s13, v14")
    a("v_mul_u32_u24 v15, 80, v3")
    a("v_lshl_add_u32 v15, v4, 4, v15")
    a("v_add_u32 v15, s12, v15")
    a("s_lshl_b32 s13, s10, 11")
    a("s_lshl_b32 s14, s8, 6")
    a("s_sub_u32 s13, s13, s14")
    a("s_add_u32 s13, s13, 4032")
    a("v_lshlrev_b32 v16, 12, v3")
    a("v_lshl_add_u32 v16, v4, 4, v16")
    a("v_add_u32 v16, s13, v16")
    a(f"v_mov_b32 v36, {KG_CNT + 12}")
    a("v_mov_b32 v37, 1")
    if OPT_SCOUT:
        a("s_mov_b32 s70, 0")
        a("s_mov_b64 exec, 0")
        for w_, nm in enumerate(("K0", "K1", "K2", "K3", "K4")):
            a(f"s_cmp_eq_u32 s3, {w_}")
            a(f"s_cbranch_scc1 L_sc_{nm}")
        a.label("L_scout_ret")
        a("s_add_u32 s70, s70, 1")
        a("s_cmp_eq_u32 s70, 1")
        a("s_cbranch_scc0 L_scout_p2")
        a("s_cmp_eq_u32 s3, 0")
        a("s_cbranch_scc1 L_sc_F0")
        a("s_cmp_eq_u32 s3, 1")
        a("s_cbranch_scc1 L_sc_F1")
        a("s_add_u32 s70, s70, 1")
        a.label("L_scout_p2")
        a("s_cmp_eq_u32 s70, 2")
        a("s_cbranch_scc1 L_tproc")
        a("s_mov_b64 exec, -1")
    a("s_setprio 2")
    a("s_waitcnt vmcnt(2)" if OPT_QT else "s_waitcnt vmcnt(0)")
    lds_signal(a, 36, 37)
    stamp(a, 3)
    if OPT_MPF:
        nopf = a.newlabel("nopf")
        if OPT_QT:
            a("s_cmp_ge_u32 s3, 2")
            a(f"s_cbranch_scc1 {nopf}")
            a(f"s_mov_b32 s68, s{P_SSK}")
            a(f"s_mov_b32 s69, s{P_SSK + 1}")
        else:
            a("s_cmp_ge_u32 s3, 4")
            a(f"s_cbranch_scc1 {nopf}")
            a("s_cmp_ge_u32 s3, 2")
            a(f"s_cselect_b32 s68, s{P_Q}, s{P_SSK}")
            a(f"s_cselect_b32 s69, s{P_Q + 1}, s{P_SSK + 1}")
        a("s_and_b32 s69, s69, 0xffff")
        a(f"s_mov_b32 s70, {TENS}")
        a("s_mov_b32 s71, 0x00020000")
        a("s_mul_i32 s15, s2, 10240")
        a("s_and_b32 s14, s3, 1")
        a("s_lshl_b32 s14, s14, 13")
        a("s_add_u32 s15, s15, s14")
        a("v_lshlrev_b32 v39, 7, v2")
        a("v_add_u32 v39, s15, v39")
        a("s_and_b32 s14, s3, 1")
        a("s_cmp_eq_u32 s14, 1")
        a("s_cselect_b32 exec_lo, 0xffff, -1")
        a("s_cselect_b32 exec_hi, 0, -1")
        a("buffer_load_dword v45, v39, s[68:71], 0 offen")
        a("s_mov_b64 exec, -1")
        a.label(nopf)
        if OPT_CPF:
            nocp = a.newlabel("nocp")
            a("s_cmp_lg_u32 s3, 4")
            a(f"s_cbranch_scc1 {nocp}")
            a("s_cmp_ge_u32 s2, 8")
            a(f"s_cbranch_scc1 {nocp}")
            lab = a.newlabel("pc")
            a("s_getpc_b64 s[68:69]")
            a.label(lab)
            a("v_lshlrev_b32 v39, 7, v2")
            a(f"v_add_u32 v39, conv_kernel-{lab}, v39")
            for k_ in range(3):
                a(f"v_min_u32 v46, L_conv_exit-{lab}, v39")
                a("global_load_dword v45, v46, s[68:69]")
                a("v_add_u32 v39, 8192, v39")
            a.label(nocp)
    a("v_alignbit_b32 v42, v41, v40, 16")
    a("v_lshlrev_b32 v43, 16, v40")
    a("v_lshrrev_b32 v44, 16, v41")
    lds_wait_count(a, 36, 38, 14, 5, "tile_spin")
    a.label("L_tproc")
    for j in range(4):
        a(f"ds_read_b64_tr_b16 v[{18 + 2 * j}:{19 + 2 * j}], v13 offset:{TW_RAWK + 1280 + 2560 * j}")
        a(f"ds_read_b64_tr_b16 v[{26 + 2 * j}:{27 + 2 * j}], v13 offset:{TW_RAWK + 2560 * j}")
        a(f"ds_read_b64_tr_b16 v[{46 + 2 * j}:{47 + 2 * j}], v13 offset:{TW_RAWV + 2560 * j}")
    for j in range(3):
        a(f"ds_read_b64_tr_b16 v[{54 + 2 * j}:{55 + 2 * j}], v13 offset:{TW_RAWU + 2560 * j}")
    for j in range(4):
        kc, kp, vv = 18 + 2 * j, 26 + 2 * j, 46 + 2 * j
        t = 64 + 10 * (j & 1)
        a(f"s_waitcnt lgkmcnt({12 - 3 * j})")
        if j == 0:
            a(f"ds_read_b64_tr_b16 v[60:61], v13 offset:{TW_RAWU + 2560 * 3}")
        a(f"v_dot2_f32_bf16 v{t + 0}, v{kc}, v40, 0")
        a(f"v_dot2_f32_bf16 v{t + 1}, v{kc}, v43, 0")
        a(f"v_dot2_f32_bf16 v{t + 2}, v{kc + 1}, v40, 0")
        a(f"v_dot2_f32_bf16 v{t + 3}, v{kc + 1}, v43, 0")
        a(f"v_dot2_f32_bf16 v{t + 0}, v{kc + 1}, v41, v{t + 0}")
        a(f"v_dot2_f32_bf16 v{t + 1}, v{kc + 1}, v42, v{t + 1}")
        a(f"v_dot2_f32_bf16 v{t + 2}, v{kp}, v41, v{t + 2}")
        a(f"v_dot2_f32_bf16 v{t + 3}, v{kp}, v42, v{t + 3}")
        a(f"v_dot2_f32_bf16 v{t + 1}, v{kp}, v44, v{t + 1}")
        a(f"v_dot2_f32_bf16 v{t + 3}, v{kp + 1}, v44, v{t + 3}")
        a(f"v_lshlrev_b32 v{t + 4}, 16, v{vv}")
        a(f"v_and_b32 v{t + 5}, 0xffff0000, v{vv}")
        a(f"v_lshlrev_b32 v{t + 6}, 16, v{vv + 1}")
        a(f"v_and_b32 v{t + 7}, 0xffff0000, v{vv + 1}")
        a(f"v_mul_f32 v{t + 0}, v{t + 0}, v{t + 4}")
        a(f"v_mul_f32 v{t + 1}, v{t + 1}, v{t + 5}")
        a(f"v_mul_f32 v{t + 2}, v{t + 2}, v{t + 6}")
        a(f"v_mul_f32 v{t + 3}, v{t + 3}, v{t + 7}")
        a(f"v_cvt_pk_bf16_f32 v{t + 8}, v{t + 0}, v{t + 1}")
        a(f"v_cvt_pk_bf16_f32 v{t + 9}, v{t + 2}, v{t + 3}")
        a(f"ds_write_b64 v14, v[{t + 8}:{t + 9}] offset:{2560 + 16 * (3 - j)}")
    a("s_waitcnt lgkmcnt(4)")
    for j in range(4):
        a(f"ds_write_b64 v14, v[{54 + 2 * j}:{55 + 2 * j}] offset:{16 * (3 - j)}")
    a("s_waitcnt lgkmcnt(0)")
    for i in range(2):
        a(f"ds_read_b128 v[{18 + 4 * i}:{21 + 4 * i}], v15 offset:{2560 + 1280 * i}")
    for i in range(2):
        a(f"ds_read_b128 v[{26 + 4 * i}:{29 + 4 * i}], v15 offset:{1280 * i}")
    a(f"v_add_u32 v17, {640 * 4096}, v16")
    a("v_add_u32 v34, 65536, v17")
    a("v_add_u32 v35, 65536, v16")
    scout(a, None)
    a("s_waitcnt lgkmcnt(3)")
    a("buffer_store_dwordx4 v[18:21], v17, s[64:67], 0 offen" + SC1)
    a("s_waitcnt lgkmcnt(2)")
    a("buffer_store_dwordx4 v[22:25], v34, s[64:67], 0 offen" + SC1)
    a("s_waitcnt lgkmcnt(1)")
    a("buffer_store_dwordx4 v[26:29], v16, s[64:67], 0 offen" + SC1)
    a("s_waitcnt lgkmcnt(0)")
    a("buffer_store_dwordx4 v[30:33], v35, s[64:67], 0 offen" + SC1)
    if OPT_QT:
        a("s_waitcnt vmcnt(4)")
        a(f"v_mov_b32 v36, {KG_CNT + 16}")
        lds_signal(a, 36, 37)
        lds_wait_count(a, 36, 38, 14, 5, "tileq_spin")
        a("v_and_b32 v46, 3, v3")
        a("v_lshlrev_b32 v47, 1, v46")
        a("v_subrev_u32 v47, 3, v47")
        a("v_mul_i32_i24 v47, 320, v47")
        a("v_add_u32 v47, v13, v47")
        for j in range(4):
            a(f"ds_read_b64_tr_b16 v[{54 + 2 * j}:{55 + 2 * j}], v47 offset:{TW_RAWQ + 2560 * j}")
        a("v_lshlrev_b32 v48, 4, v9")
        a("v_add_u32 v48, v14, v48")
        a("v_subrev_u32 v48, 8, v48")
        a("s_lshl_b32 s14, s8, 7")
        a(f"s_add_u32 s14, s14, {WS_QT - 4032}")
        a("v_add_u32 v49, s14, v16")
        a("v_add_u32 v50, 65536, v49")
        a("s_waitcnt lgkmcnt(0)")
        for j in range(4):
            a(f"ds_write_b64 v48, v[{54 + 2 * j}:{55 + 2 * j}] offset:{16 * j}")
        a("s_waitcnt lgkmcnt(0)")
        for i in range(2):
            a(f"ds_read_b128 v[{64 + 4 * i}:{67 + 4 * i}], v15 offset:{1280 * i}")
        a("s_waitcnt lgkmcnt(1)")
        a("buffer_store_dwordx4 v[64:67], v49, s[64:67], 0 offen" + SC1)
        a("s_waitcnt lgkmcnt(0)")
        a("buffer_store_dwordx4 v[68:71], v50, s[64:67], 0 offen" + SC1)
    if OPT_WB:
        nw = a.newlabel("nowb")
        a("s_cmp_lg_u32 s3, 0")
        a(f"s_cbranch_scc1 {nw}")
        a("s_lshr_b32 s14, s2, 3")
        a(f"s_cmp_lg_u32 s14, {OPT_WB - 1}")
        a(f"s_cbranch_scc1 {nw}")
        a("s_waitcnt vmcnt(0)")
        a("buffer_wbl2 sc1")
        a.label(nw)
    if STAMP:
        stamp(a, 4)
        a("s_waitcnt vmcnt(0)")
        stamp(a, 5)
        stamp_flush(a, 6, 0)
    a("s_endpgm")


LOG2E = 0x3fb8aa3b
INV2PI = 0x3e22f983


def cmul(a, d, x, y, t):
    a(f"v_pk_mul_f32 v[{t}:{t + 1}], v[{x}:{x + 1}], v[{y}:{y + 1}] op_sel:[0,0] op_sel_hi:[0,1]")
    a(f"v_pk_fma_f32 v[{d}:{d + 1}], v[{x}:{x + 1}], v[{y}:{y + 1}], v[{t}:{t + 1}] op_sel:[1,1,0] op_sel_hi:[1,0,1] neg_lo:[0,1,0]")


KG_BUF = 4608
KG_WAVE = 2 * KG_BUF


def scout(a, entry):
    if OPT_SCOUT:
        a("s_cbranch_execz L_scout_ret")
        if entry:
            a.label("L_sc_" + entry)


def scout_entry(a, entry):
    if OPT_SCOUT:
        a.label("L_sc_" + entry)


def emit_kgen_issue(a):
    a.c("---- kgen waves: issue parameter loads as early as possible ----")
    a("s_sub_u32 s6, s3, 5")
    a("s_mul_i32 s7, s6, 43")
    a("s_lshr_b32 s7, s7, 7")
    a("s_mov_b32 s67, s7")
    a("s_mul_i32 s4, s7, 3")
    a("s_sub_u32 s4, s6, s4")
    a("s_lshr_b32 s5, s2, 1")
    a("s_mul_i32 s5, s5, 5")
    a("s_and_b32 s8, s2, 1")
    a("s_mul_i32 s9, s8, 3")
    a("s_add_u32 s5, s5, s9")
    a("s_add_u32 s5, s5, s7")
    a("s_lshr_b32 s9, s7, 1")
    a("s_and_b32 s9, s9, s8")
    a("s_cmp_eq_u32 s9, 1")
    a("s_cbranch_scc1 L_prep_exit")
    a("s_mul_i32 s9, s5, 384")
    a("s_lshl_b32 s7, s4, 7")
    a("s_add_u32 s9, s9, s7")
    a("v_lshl_add_u32 v3, v2, 1, s9")
    for r in range(10, 14):
        a(f"v_mov_b32 v{r}, 0")
    a("s_lshl_b32 s7, s5, 1")
    a("s_and_b32 s7, s7, 0xfffffffc")
    a("s_mov_b32 s50, 245760")
    a("s_mov_b32 s51, 0x00020000")
    a("s_mov_b32 s54, 245760")
    a("s_mov_b32 s55, 0x00020000")
    a("s_mov_b32 s58, 245760")
    a("s_mov_b32 s59, 0x00020000")
    a("s_mov_b32 s62, 245760")
    a("s_mov_b32 s63, 0x00020000")
    a("v_lshlrev_b32 v4, 2, v2")
    a(f"v_add_u32 v4, {KG_CNT}, v4")
    a("v_mov_b32 v5, 0")
    a("s_mov_b64 exec, 31")
    a("ds_write_b32 v4, v5")
    a("s_mov_b64 exec, -1")
    a("s_waitcnt lgkmcnt(0)")
    stamp(a, 1)
    for srd, p, dst in ((48, P_LOGA, 10), (52, P_AIM, 11), (56, P_CR, 12), (60, P_CI, 13)):
        a(f"s_mov_b32 s{srd}, s{p}")
        a(f"s_and_b32 s{srd + 1}, s{p + 1}, 0xffff")
        a(f"buffer_load_short_d16_hi v{dst}, v3, s[{srd}:{srd + 3}], 0 offen")
    a("s_barrier")
    a(f"s_load_dword s64, s[{P_LDT}:{P_LDT + 1}], s7")
    a(f"s_load_dword s65, s[{P_DSK}:{P_DSK + 1}], s7")
    if KGREP:
        a(f"s_mov_b32 s68, {KGREP}")
    a("s_branch L_kgen")


def emit_kgen(a):
    a.c("---- S4D kernel generation: 64 modes per wave ----")
    a(f"s_mul_i32 s8, s6, {KG_WAVE}")
    a(f"s_add_u32 s8, s8, {KG_OFF}")
    make_srd(a, 72, P_WS, WS_END)
    a("s_mov_b32 m0, s8")
    a("v_and_b32 v5, 15, v2")
    a("v_lshrrev_b32 v6, 4, v2")
    a("v_mul_u32_u24 v7, 288, v5")
    a("v_lshl_add_u32 v7, v6, 4, v7")
    a("v_add_u32 v7, s8, v7")
    a("v_lshlrev_b32 v8, 4, v2")
    a("v_add_u32 v9, s8, v8")
    a("v_lshlrev_b32 v60, 4, v5")
    a("v_add_u32 v60, s8, v60")
    a("v_and_b32 v61, 1, v6")
    a("v_lshrrev_b32 v62, 1, v6")
    a("v_lshl_add_u32 v56, v61, 3, v60")
    a("v_lshl_add_u32 v56, v62, 8, v56")
    a("v_lshl_add_u32 v57, v6, 8, v60")
    a("v_add_u32 v57, 512, v57")
    a("v_lshl_add_u32 v58, v6, 9, v60")
    a("v_cmp_gt_u32 vcc, 2, v6")
    a("v_mov_b32 v61, 8")
    a("v_mov_b32 v62, 4")
    a("v_cndmask_b32 v57, v58, v57, vcc")
    a("v_cndmask_b32 v61, v61, v62, vcc")
    a("v_add_u32 v58, v57, v61")
    a("v_mov_b32 v61, 256")
    a("v_mov_b32 v62, 8")
    a("v_cndmask_b32 v61, v61, v62, vcc")
    a("v_add_u32 v59, v57, v61")
    a("v_mov_b32 v61, 264")
    a("v_mov_b32 v62, 12")
    a("v_cndmask_b32 v61, v61, v62, vcc")
    a("v_add_u32 v124, v57, v61")
    a("v_lshl_add_u32 v61, v6, 10, v60")
    a("v_add_u32 v61, 2048, v61")
    a("v_lshlrev_b32 v62, 1, v2")
    a("v_add_u32 v62, s8, v62")
    a("v_add_u32 v62, 5120, v62")
    a("v_cndmask_b32 v126, v62, v61, vcc")
    a("v_cmp_gt_u32 vcc, 3, v6")
    a("s_nop 1")
    a("v_cndmask_b32 v125, v62, v61, vcc")
    a("v_and_b32 v60, 1, v2")
    a("v_cmp_eq_u32 vcc, 1, v60")
    a("v_mov_b32 v61, 0x05040100")
    a("v_mov_b32 v62, 0x05040504")
    a("v_cndmask_b32 v127, v61, v62, vcc")
    a("s_mul_i32 s6, s5, 4096")
    a(f"s_add_u32 s6, s6, {WS_KA}")
    a("v_add_u32 v63, s6, v8")
    a("s_mov_b32 s12, 0x01000100")
    a("s_mov_b32 s13, 0x05040100")
    a(f"s_mov_b32 s9, {LOG2E:#x}")
    a(f"s_mov_b32 s10, {INV2PI:#x}")
    (stamp(a, 2) if not KGREP else None)
    a("s_waitcnt lgkmcnt(0)")
    a("s_and_b32 s66, s5, 1")
    a("s_lshl_b32 s66, s66, 4")
    a("s_lshr_b32 s64, s64, s66")
    a("s_lshl_b32 s64, s64, 16")
    a("s_lshr_b32 s65, s65, s66")
    a("s_lshl_b32 s65, s65, 16")
    a("v_mov_b32 v14, s64")
    a("v_mov_b32 v15, s65")
    a("v_cmp_eq_u32 vcc, 0, v2")
    a("s_nop 1")
    a("v_cndmask_b32 v15, 0, v15, vcc")
    a("v_cmp_gt_u32 vcc, 32, v2")
    a("s_waitcnt vmcnt(0)")
    if KGREP:
        a("v_mov_b32 v56, v10")
        a("v_mov_b32 v57, v11")
        a("v_mov_b32 v58, v12")
        a("v_mov_b32 v59, v13")
        a.label("L_kg_again")
        a("v_mov_b32 v10, v56")
        a("v_mov_b32 v11, v57")
        a("v_mov_b32 v12, v58")
        a("v_mov_b32 v13, v59")
        a("v_mov_b32 v14, s64")
        a("s_cmp_eq_u32 s68, %d" % KGREP)
        a("s_cbranch_scc0 L_kg_n1")
        a("s_memrealtime s[86:87]")
        a("s_memtime s[88:89]")
        a.label("L_kg_n1")
        a("s_cmp_eq_u32 s68, %d" % (KGREP - 1))
        a("s_cbranch_scc0 L_kg_n2")
        a("s_memrealtime s[90:91]")
        a("s_memtime s[92:93]")
        a.label("L_kg_n2")
        a("s_cmp_eq_u32 s68, %d" % (KGREP - 2))
        a("s_cbranch_scc0 L_kg_n3")
        a("s_memrealtime s[94:95]")
        a("s_memtime s[96:97]")
        a.label("L_kg_n3")
    (stamp(a, 3) if not KGREP else None)
    a("s_setprio 0")
    scout_entry(a, "K0")
    a("v_mul_f32 v14, s9, v14")
    a("v_mul_f32 v10, s9, v10")
    a("v_exp_f32 v14, v14")
    a("v_exp_f32 v10, v10")
    a("s_nop 0")
    a("v_cvt_pk_bf16_f32 v14, v14, v10")
    a("v_and_b32 v10, 0xffff0000, v14")
    a("v_lshlrev_b32 v14, 16, v14")
    a("v_mul_f32 v10, v10, v14")
    a("v_mul_f32 v11, v11, v14")
    a("v_add_f32 v14, v14, v14")
    a("v_mul_f32 v16, v12, v14")
    a("v_mul_f32 v17, v13, v14")
    a("v_mul_f32 v10, s9, v10")
    a("v_sub_f32 v10, 0, v10")
    a("v_mul_f32 v11, s10, v11")
    def cexp(dst, scale):
        t0, t1, t2 = 24, 25, 26
        if scale == 1:
            a(f"v_mov_b32 v{t0}, v10")
            a(f"v_mov_b32 v{t1}, v11")
        else:
            a(f"v_mul_f32 v{t0}, {f32hex(scale)}, v10")
            a(f"v_mul_f32 v{t1}, {f32hex(scale)}, v11")
        a(f"v_rndne_f32 v{t2}, v{t1}")
        a(f"v_exp_f32 v{t0}, v{t0}")
        a(f"v_sub_f32 v{t1}, v{t1}, v{t2}")
        a(f"v_cos_f32 v{t2}, v{t1}")
        a(f"v_sin_f32 v{t1}, v{t1}")
        a("s_nop 0")
        a(f"v_mul_f32 v{dst}, v{t0}, v{t2}")
        a(f"v_mul_f32 v{dst + 1}, v{t0}, v{t1}")
    cexp(18, 1)
    cexp(20, 8)
    cexp(22, 128)
    E1, E8, E128, C2 = 18, 20, 22, 16
    TMP = [24, 26, 28, 30]
    R = [32 + 2 * j for j in range(8)]
    EJ, YB = 48, 50
    CV = [52, 53, 54, 55]
    def wr_row(src, buf, row, negim, cv):
        neg = "-" if negim else ""
        a(f"v_cvt_pk_bf16_f32 v{cv}, v{src}, {neg}v{src + 1}")
        a(f"ds_write_addtid_b32 v{cv} offset:{buf * KG_BUF + row * 288}")

    a("v_mov_b32 v52, 0x3f80")
    a("ds_write_addtid_b32 v52 offset:0")
    wr_row(E8, 0, 1, True, 53)
    a(f"v_mov_b32 v{R[0]}, v{C2}")
    a(f"v_mov_b32 v{R[0] + 1}, v{C2 + 1}")
    ycur = E8
    for b in range(2, 16):
        if b == 3:
            scout(a, "K1")
        if b == 10:
            scout(a, "K2")
        src = ycur
        cmul_y = (YB, src, E8, TMP[0])
        if b - 1 <= 7:
            j = b - 1
            a(f"v_pk_mul_f32 v[{TMP[0]}:{TMP[0] + 1}], v[{src}:{src + 1}], v[{E8}:{E8 + 1}] op_sel:[0,0] op_sel_hi:[0,1]")
            a(f"v_pk_mul_f32 v[{TMP[1]}:{TMP[1] + 1}], v[{R[j - 1]}:{R[j - 1] + 1}], v[{E1}:{E1 + 1}] op_sel:[0,0] op_sel_hi:[0,1]")
            a(f"v_pk_fma_f32 v[{YB}:{YB + 1}], v[{src}:{src + 1}], v[{E8}:{E8 + 1}], v[{TMP[0]}:{TMP[0] + 1}] op_sel:[1,1,0] op_sel_hi:[1,0,1] neg_lo:[0,1,0]")
            a(f"v_pk_fma_f32 v[{R[j]}:{R[j] + 1}], v[{R[j - 1]}:{R[j - 1] + 1}], v[{E1}:{E1 + 1}], v[{TMP[1]}:{TMP[1] + 1}] op_sel:[1,1,0] op_sel_hi:[1,0,1] neg_lo:[0,1,0]")
            wr_row(R[j - 1], 1, j - 1, False, 54)
        else:
            cmul(a, YB, src, E8, TMP[0])
            j = b - 9
            if j == 0:
                wr_row(R[7], 1, 7, False, 54)
            cmul(a, R[j], R[j], E128, TMP[1])
            wr_row(R[j], 1, 8 + j, False, 54)
        wr_row(YB, 0, b, True, 53)
        ycur = YB
    cmul(a, R[7], R[7], E128, TMP[1])
    wr_row(R[7], 1, 15, False, 54)
    scout(a, "K3")
    YOP, XOP, ACC = 64, 80, 96
    a("s_waitcnt lgkmcnt(0)")
    for ks in range(4):
        a(f"ds_read_b128 v[{YOP + 4 * ks}:{YOP + 4 * ks + 3}], v7 offset:{64 * ks}")
    for ks in range(4):
        a(f"ds_read_b128 v[{XOP + 4 * ks}:{XOP + 4 * ks + 3}], v7 offset:{KG_BUF + 64 * ks}")
    for idx, j in enumerate([0, 2, 4, 6]):
        cmul(a, R[j], R[j], E128, TMP[idx % 4])
    a("s_waitcnt lgkmcnt(4)")
    for idx, j in enumerate([0, 2, 4, 6]):
        wr_row(R[j], 0, idx, False, CV[idx])
    for idx, j in enumerate([0, 2, 4, 6]):
        cmul(a, R[j], R[j], E128, TMP[idx % 4])
    a("s_waitcnt lgkmcnt(4)")
    for ks in range(4):
        c = "0" if ks == 0 else f"v[{ACC}:{ACC + 3}]"
        a(f"v_mfma_f32_16x16x32_bf16 v[{ACC}:{ACC + 3}], v[{XOP + 4 * ks}:{XOP + 4 * ks + 3}], v[{YOP + 4 * ks}:{YOP + 4 * ks + 3}], {c}")
    for idx, j in enumerate([0, 2, 4, 6]):
        wr_row(R[j], 0, 4 + idx, False, CV[idx])
    scout(a, "K4")
    for aa in range(4):
        for idx, j in enumerate([0, 4]):
            cmul(a, R[j], R[j], E128, TMP[idx])
        for idx, j in enumerate([0, 4]):
            wr_row(R[j], 0, 8 + 2 * aa + idx, False, CV[(2 * aa + idx) % 4])
    for aa in range(9):
        cmul(a, R[0], R[0], E128, TMP[aa % 2])
        wr_row(R[0], 1, aa, False, CV[aa % 4])
    a("s_waitcnt lgkmcnt(9)")
    for ks in range(4):
        a(f"ds_read_b128 v[{XOP + 4 * ks}:{XOP + 4 * ks + 3}], v7 offset:{64 * ks}")
    a("s_waitcnt lgkmcnt(0)")
    for ks in range(4):
        c = "0" if ks == 0 else f"v[{ACC + 4}:{ACC + 7}]"
        a(f"v_mfma_f32_16x16x32_bf16 v[{ACC + 4}:{ACC + 7}], v[{XOP + 4 * ks}:{XOP + 4 * ks + 3}], v[{YOP + 4 * ks}:{YOP + 4 * ks + 3}], {c}")
    XO2 = 108
    for ks in range(4):
        a(f"ds_read_b128 v[{XO2 + 4 * ks}:{XO2 + 4 * ks + 3}], v7 offset:{KG_BUF + 64 * ks}")
    a("s_waitcnt lgkmcnt(0)")
    for ks in range(4):
        c = "0" if ks == 0 else f"v[{ACC + 8}:{ACC + 11}]"
        a(f"v_mfma_f32_16x16x32_bf16 v[{ACC + 8}:{ACC + 11}], v[{XO2 + 4 * ks}:{XO2 + 4 * ks + 3}], v[{YOP + 4 * ks}:{YOP + 4 * ks + 3}], {c}")
    if KGREP:
        a("s_nop 7")
        a("s_nop 7")
        a("s_sub_u32 s68, s68, 1")
        a("s_cmp_gt_u32 s68, 0")
        a("s_cbranch_scc1 L_kg_again")
        a("s_memrealtime s[98:99]")
    scout(a, None)
    a("s_nop 7")
    a("s_nop 1")
    done = a.newlabel("kg_w0")
    a("s_cmp_eq_u32 s4, 0")
    a(f"s_cbranch_scc1 {done}")
    for t in range(3):
        a(f"ds_write_b128 v9, v[{ACC + 4 * t}:{ACC + 4 * t + 3}] offset:{1024 * t}")
    a("s_lshl_b32 s15, s67, 2")
    a(f"s_add_u32 s15, s15, {KG_CNT}")
    a("v_mov_b32 v10, s15")
    a("v_mov_b32 v11, 1")
    a("s_waitcnt lgkmcnt(0)")
    lds_signal(a, 10, 11)
    if STAMP:
        (stamp(a, 4) if not KGREP else None)
        (stamp(a, 5) if not KGREP else None)
        stamp_flush(a, 8, 0)
    a("s_endpgm")
    a.label(done)
    a("s_lshl_b32 s15, s67, 2")
    a(f"s_add_u32 s15, s15, {KG_CNT}")
    a("v_mov_b32 v10, s15")
    lds_wait_count(a, 10, 11, 14, 2, "kg_spin")
    (stamp(a, 4) if not KGREP else None)
    scout_entry(a, "F0")
    for wv in (1, 2):
        for t in range(3):
            a(f"ds_read_b128 v[{32 + 12 * (wv - 1) + 4 * t}:{35 + 12 * (wv - 1) + 4 * t}], v9 offset:{wv * KG_WAVE + 1024 * t}")
    a("s_waitcnt lgkmcnt(0)")
    for i in range(12):
        a(f"v_add_f32 v{ACC + i}, v{ACC + i}, v{32 + i}")
    for i in range(12):
        a(f"v_add_f32 v{ACC + i}, v{ACC + i}, v{44 + i}")
    a(f"v_add_f32 v{ACC}, v{ACC}, v15")
    for i in range(6):
        a(f"v_cvt_pk_bf16_f32 v{56 + i - 24}, v{ACC + 2 * i}, v{ACC + 2 * i + 1}")
    scout(a, "F1")
    a("ds_write_b16 v56, v32 offset:0")
    a("ds_write_b16_d16_hi v56, v32 offset:2")
    a("ds_write_b16 v56, v33 offset:4")
    a("ds_write_b16_d16_hi v56, v33 offset:6")
    a("ds_write_b16 v57, v34")
    a("ds_write_b16_d16_hi v58, v34")
    a("ds_write_b16 v59, v35")
    a("ds_write_b16_d16_hi v124, v35")
    a("ds_write_b16 v125, v36 offset:0")
    a("ds_write_b16_d16_hi v126, v36 offset:256")
    a("ds_write_b16 v126, v37 offset:512")
    a("ds_write_b16_d16_hi v126, v37 offset:768")
    a("s_waitcnt lgkmcnt(0)")
    SL = [40, 48, 64, 70]
    for s in range(4):
        a(f"ds_read_b128 v[{SL[s]}:{SL[s] + 3}], v9 offset:{1024 * s}")
        a(f"ds_read_b32 v{SL[s] + 4}, v9 offset:{1024 * s + 16}")
    a("s_waitcnt lgkmcnt(0)")
    def perm(d, s0, s1, sel):
        a(f"v_perm_b32 v{d}, v{s0}, v{s1}, {sel}")
    perm(76, 40, 40, "s12"); perm(77, 42, 41, "s13"); perm(78, 42, 42, "s12"); perm(79, 44, 43, "s13")
    for i in range(4):
        a(f"v_cndmask_b32 v{76 + i}, v{76 + i}, v{40 + i}, vcc")
    perm(80, 48, 48, "s12"); perm(81, 50, 48, "s13"); perm(82, 50, 50, "s12"); perm(83, 52, 52, "s12")
    for s_, o in ((2, 84), (3, 88)):
        d0, d4 = SL[s_], SL[s_] + 4
        perm(o, d0, d0, "s12"); perm(o + 1, d0, d0, "s12"); perm(o + 2, d4, d0, "v127"); perm(o + 3, d4, d4, "s12")
    scout(a, None)
    for s_, o in ((0, 76), (1, 80), (2, 84), (3, 88)):
        a(f"buffer_store_dwordx4 v[{o}:{o + 3}], v63, s[72:75], 0 offen offset:{1024 * s_}" + SC1)
    if OPT_WB2:
        nw = a.newlabel("nowb2")
        a("s_cmp_lg_u32 s67, 0")
        a(f"s_cbranch_scc1 {nw}")
        a("s_lshr_b32 s14, s2, 3")
        a(f"s_cmp_lg_u32 s14, {OPT_WB2 - 1}")
        a(f"s_cbranch_scc1 {nw}")
        a("s_waitcnt vmcnt(0)")
        a("buffer_wbl2 sc1")
        a.label(nw)
    dbg_stamp(a, 1, 0, 60, 61)
    if STAMP:
        a("s_waitcnt vmcnt(0)")
        (stamp(a, 5) if not KGREP else None)
        stamp_flush(a, 8, 0)
    a("s_endpgm")


def f32hex(x):
    import struct
    return hex(struct.unpack("<I", struct.pack("<f", float(x)))[0])


def emit_prep(a):
    k = "prep_kernel"
    a.raw(f".globl {k}")
    a.raw(".p2align 8")
    a.raw(f".type {k},@function")
    a.label(k)
    a("s_cmp_ge_u32 s2, 256")
    a("s_cbranch_scc1 L_prep_exit")
    stamp(a, 0)
    load_kernargs(a)
    code_prefetch(a, "L_prep_exit", 120, 121)
    a("v_lshrrev_b32 v1, 6, v0")
    a("v_and_b32 v2, 63, v0")
    a("s_nop 0")
    a("v_readfirstlane_b32 s3, v1")
    a("s_mov_b32 s4, 0x9d7a6b85" if OPT_KFIRST else "s_mov_b32 s4, 0x9b436210")
    a("s_mov_b32 s5, 0x43c210" if OPT_KFIRST else "s_mov_b32 s5, 0xa7cd85")
    a("s_lshl_b32 s3, s3, 2")
    a("s_lshr_b64 s[4:5], s[4:5], s3")
    a("s_and_b32 s3, s4, 15")
    a("s_cmp_lt_u32 s3, 5")
    a("s_cbranch_scc1 L_tile")
    if NOKGEN:
        a("s_endpgm")
    a("s_setprio 3")
    emit_kgen_issue(a)
    a.label("L_tile")
    emit_tilewave(a)
    a.label("L_kgen")
    emit_kgen(a)
    a.label("L_prep_exit")
    a("s_endpgm")


class Lay:
    def __init__(self, name, half, tiles, jobs):
        self.name = name
        self.half = half
        self.tiles = list(tiles)
        self.jobs = jobs
        self.nslot = 8 * jobs
        self.ubytes = 2048 if half else 4096
        self.UP = self.ubytes + 512
        self.PO = self.ubytes + 64
        self.KP = 2 * self.PO
        self.merged = (jobs == 2 and not OPT_QT)
        self.YP = 4672 if self.merged else (2112 if OPT_QT or jobs == 2 else 2624)
        self.YT = 640 if self.YP == 2624 else 512
        self.YR = 40 if self.YP == 2624 else 32
        self.U0 = 0
        self.K0 = self.nslot * self.UP
        self.Y0 = self.K0 + self.nslot * self.KP
        self.end = self.Y0 + (8 if self.merged else self.nslot) * self.YP
        self.nd = self.ubytes // 1024


T1 = Lay("T1", False, range(4, 8), 1)
T2 = Lay("T2", True, range(0, 4), 2)
K2_LDS = max(T1.end, T2.end)
assert T1.K0 % 128 == 0 and T1.KP % 128 == 0 and T1.PO % 128 == 64
assert T2.K0 % 128 == 0 and T2.KP % 128 == 0 and T2.PO % 128 == 64

V_U, V_KB, V_YW, V_TR, V_OUT, V_Q, V_L16, V_T0, V_T1 = 4, 5, 9, 10, 11, 12, 13, 14, 15
V_ACC = 16
V_B = 48
V_QD = 32
V_E = 88
V_K0 = 2


class Stream:
    def __init__(self, a, max_out=14):
        self.a = a
        self.q = []
        self.n = 0
        self.max_out = max_out
        self.done = set()

    def ins(self, txt):
        self.a(txt)
        self.n += 1

    def lds(self, txt, tag):
        if len(self.q) >= self.max_out:
            keep = self.max_out - 1
            self._wait(keep)
        self.ins(txt)
        self.q.append(tag)

    def _wait(self, keep):
        if len(self.q) > keep:
            self.ins(f"s_waitcnt lgkmcnt({keep})")
            for t in self.q[:len(self.q) - keep]:
                self.done.add(t)
            self.q = self.q[len(self.q) - keep:]

    def need(self, tags):
        last = -1
        for i, t in enumerate(self.q):
            if t in tags:
                last = i
        if last >= 0:
            self._wait(len(self.q) - 1 - last)

    def pad_since(self, n0, states):
        k = states - (self.n - n0)
        while k > 0:
            c = min(k, 16)
            self.ins(f"s_nop {c - 1}")
            self.n += c - 1
            k -= c


def emit_conv_body(a, T):
    J = T.jobs
    a("s_lshl_b32 s8, s5, 3")
    a("s_add_u32 s8, s8, s3")
    a("s_mul_i32 s9, s4, 640")
    a("s_add_u32 s9, s9, s8")
    a("s_lshl_b32 s10, s8, 12")
    a("s_lshl_b32 s13, s9, 12")
    if T.half:
        a("s_add_u32 s13, s13, 2048")
    a(f"s_mul_i32 s70, s3, {T.UP}")
    a(f"s_mul_i32 s71, s3, {T.KP}")
    a(f"s_add_u32 s71, s71, {T.K0}")
    a(f"v_lshlrev_b32 v{V_L16}, 4, v1")
    a("v_and_b32 v88, 15, v1")
    a("v_lshrrev_b32 v89, 4, v1")
    a("v_lshlrev_b32 v90, 5, v88")
    a("v_lshlrev_b32 v91, 4, v89")
    a("v_sub_u32 v90, v91, v90")
    a("s_add_u32 s14, s70, 480")
    a(f"v_add_u32 v{V_U}, s14, v90")
    a("v_add_u32 v90, 1, v88")
    a("v_and_b32 v91, 1, v90")
    a("v_lshl_add_u32 v90, v89, 3, v90")
    a("v_lshrrev_b32 v90, 1, v90")
    a("v_lshlrev_b32 v90, 2, v90")
    a(f"v_mul_u32_u24 v91, {T.PO}, v91")
    a("v_add_u32 v90, v90, v91")
    a(f"v_add_u32 v{V_KB}, s71, v90")
    nkb = 2 if T.half else 4
    for kk in range(1, nkb):
        a(f"v_add_u32 v{V_KB + kk}, {1024 * kk}, v{V_KB}")
    if T.half:
        for kk in range(2):
            a(f"v_add_u32 v{V_KB + 2 + kk}, {8 * T.KP + 1024 * kk}, v{V_KB}")
    a(f"s_add_u32 s14, s70, {T.ubytes}")
    a("v_lshl_add_u32 v90, v1, 4, s14")
    a(f"s_sub_u32 s14, s71, {30 * 16}")
    a("v_lshl_add_u32 v91, v1, 4, s14")
    a(f"s_add_u32 s14, s71, {T.PO - 32 * 16}")
    a("v_lshl_add_u32 v92, v1, 4, s14")
    a("v_cmp_gt_u32 vcc, 32, v1")
    a(f"v_mov_b32 v93, {8 * T.KP}")
    a(f"v_mov_b32 v94, {8 * T.UP}")
    a("v_cndmask_b32 v91, v92, v91, vcc")
    a("v_cmp_gt_u32 vcc, 30, v1")
    for r in range(80, 84):
        a(f"v_mov_b32 v{r}, 0")
    a("v_cndmask_b32 v90, v91, v90, vcc")
    a("v_cndmask_b32 v93, v93, v94, vcc")
    a("s_mov_b32 exec_hi, 3")
    for j in range(J):
        a("ds_write_b128 v90, v[80:83]")
        if j + 1 < J:
            a("v_add_u32 v90, v90, v93")
    a("s_mov_b64 exec, -1")
    a(f"s_mul_i32 s14, s3, {T.YP}")
    a(f"s_add_u32 s14, s14, {T.Y0}")
    a("s_lshl_b32 s11, s5, 4")
    if not T.merged:
        a(f"v_mul_u32_u24 v90, {T.YR}, v88")
        a("v_lshl_add_u32 v90, v89, 3, v90")
        a(f"v_add_u32 v{V_YW}, s14, v90")
        if OPT_QT:
            a("v_lshlrev_b32 v90, 5, v88")
            a("v_lshl_add_u32 v90, v89, 3, v90")
        if OPT_QT:
            a(f"v_add_u32 v{V_Q}, s10, v90")
        a("s_and_b32 s12, s3, 3")
        a("v_bfe_u32 v90, v1, 2, 2")
        a(f"v_mul_u32_u24 v90, {T.YP}, v90")
        a("v_and_b32 v91, 3, v1")
        a("v_lshl_add_u32 v90, v91, 3, v90")
        a(f"v_mul_u32_u24 v91, {T.YR}, v89")
        a("v_add_u32 v90, v90, v91")
        a(f"s_mul_i32 s14, s12, {4 * T.YR}")
        a(f"s_add_u32 s14, s14, {T.Y0}")
        a(f"v_add_u32 v{V_TR}, s14, v90")
        a("s_lshl_b32 s14, s12, 6")
        a("v_add_u32 v90, s14, v1")
        if not OPT_QT:
            a(f"v_mul_u32_u24 v{V_Q}, 1280, v90")
            a(f"v_add_u32 v{V_Q}, s11, v{V_Q}")
        a(f"v_mul_u32_u24 v{V_OUT}, 2560, v90")
        a("s_mul_i32 s14, s4, 1280")
        a("s_add_u32 s14, s14, s11")
        a(f"v_add_u32 v{V_OUT}, s14, v{V_OUT}")
    else:
        a("v_mul_u32_u24 v90, 72, v88")
        a("v_lshl_add_u32 v90, v89, 4, v90")
        a(f"v_add_u32 v{V_YW}, s14, v90")
        a("v_bfe_u32 v90, v1, 2, 2")
        a(f"v_mul_u32_u24 v90, {T.YP}, v90")
        a("v_and_b32 v91, 3, v1")
        a("v_lshl_add_u32 v90, v91, 3, v90")
        a("v_lshrrev_b32 v91, 1, v89")
        a("v_mul_u32_u24 v91, 72, v91")
        a("v_add_u32 v90, v90, v91")
        a("v_and_b32 v91, 1, v89")
        a("v_lshl_add_u32 v90, v91, 5, v90")
        a("s_mul_i32 s14, s3, 144")
        a(f"s_add_u32 s14, s14, {T.Y0}")
        a(f"v_add_u32 v{V_TR}, s14, v90")
        a("s_lshl_b32 s14, s3, 5")
        a("v_lshrrev_b32 v90, 1, v1")
        a("v_add_u32 v90, s14, v90")
        a("v_and_b32 v91, 1, v1")
        a("v_lshlrev_b32 v91, 4, v91")
        a("v_add_u32 v91, s11, v91")
        a(f"v_mul_u32_u24 v{V_Q}, 1280, v90")
        a(f"v_add_u32 v{V_Q}, v{V_Q}, v91")
        a(f"v_mul_u32_u24 v{V_OUT}, 2560, v90")
        a(f"v_add_u32 v{V_OUT}, v{V_OUT}, v91")
        a("s_mul_i32 s14, s4, 1280")
        a(f"v_add_u32 v{V_OUT}, s14, v{V_OUT}")
    a(f"v_mov_b32 v{V_T0}, s71")
    a(f"s_mov_b32 s50, {WS_KA}")
    a("s_mov_b32 s51, 0x00020000")
    a(f"s_mov_b32 s54, {640 * 4096}")
    a("s_mov_b32 s55, 0x00020000")
    a("s_waitcnt lgkmcnt(0)")
    stamp(a, 1, True)
    if DBGT:
        nd = a.newlabel("nd")
        a("s_cmp_lg_u32 s2, 0")
        a(f"s_cbranch_scc1 {nd}")
        dbg_stamp(a, 2, 512, 86, 87)
        a.label(nd)
    a(f"s_mov_b32 s48, s{P_WS}")
    a(f"s_and_b32 s49, s{P_WS + 1}, 0xffff")
    a(f"s_add_u32 s6, s{P_WS}, {WS_KA}")
    a(f"s_addc_u32 s7, s{P_WS + 1}, 0")
    a("s_cmp_eq_u32 s4, 1")
    a(f"s_cselect_b32 s6, s{P_SSK}, s6")
    a(f"s_cselect_b32 s7, s{P_SSK + 1}, s7")
    a("s_mov_b32 s52, s6")
    a("s_and_b32 s53, s7, 0xffff")

    def dma_one(job, kind, kk):
        if kind == "U":
            src, srd, dst = f"s_add_u32 s15, s13, {job * 32768}", "s[48:51]", f"s_add_u32 m0, s70, {job * 8 * T.UP}"
        elif kind == "E":
            src, srd, dst = f"s_add_u32 s15, s10, {job * 32768}", "s[52:55]", f"s_add_u32 m0, s71, {job * 8 * T.KP + 32}"
        else:
            src, srd, dst = f"s_add_u32 s15, s10, {job * 32768 + 2}", "s[52:55]", f"s_add_u32 m0, s71, {job * 8 * T.KP + T.PO + 32}"
        return [src, dst, "s_nop 0", f"buffer_load_dwordx4 v{V_L16}, {srd}, s15 offen offset:{1024 * kk} lds"]

    if not T.half:
        order = [("U", 3), ("E", 3), ("O", 3), ("E", 2), ("O", 2), ("E", 1), ("O", 1), ("U", 2), ("E", 0), ("O", 0), ("U", 1), ("U", 0)]
        nfirst = 7
    else:
        order = [("U", 1), ("E", 1), ("O", 1), ("E", 0), ("O", 0), ("U", 0)]
        nfirst = 5
    xs = a.newlabel("xdma")
    a("s_cmp_ge_u32 s3, 4")
    a(f"s_cbranch_scc1 {xs}")
    for kind, kk in order[:nfirst]:
        for ln in dma_one(0, kind, kk):
            a(ln)
    a.label(xs)
    stamp(a, 2, True)
    for j in range(J):
        a(f"s_add_u32 s14, s10, {j * 32768}")
        a(f"s_load_dword s{72 + j}, s[6:7], s14")
    a("s_lshl_b32 s11, s8, 1")
    a("s_and_b32 s11, s11, 0xfffffffc")
    for j in range(J):
        a(f"s_add_u32 s14, s11, {16 * j}")
        a(f"s_load_dword s{76 + j}, s[{P_SSD}:{P_SSD + 1}], s14")
    if OPT_QT:
        a(f"s_add_u32 s56, s{P_WS}, {WS_QT}")
        a(f"s_addc_u32 s57, s{P_WS + 1}, 0")
        a("s_and_b32 s57, s57, 0xffff")
    else:
        a(f"s_mov_b32 s56, s{P_Q}")
        a(f"s_and_b32 s57, s{P_Q + 1}, 0xffff")
    a("s_mov_b32 s59, 0x00020000")
    make_srd(a, 60, P_OUT, L * 2560)
    a("s_cmp_eq_u32 s4, 1")
    a(f"s_cselect_b32 s58, {640 * 4096}, 0")
    if OPT_QT:
        a("s_cselect_b32 s69, 0, 0x3f803f80")
    else:
        a("s_cselect_b32 s69, 0, 0x3f800000")
        a("s_cselect_b32 s67, 0, 0x3f80")
        a("v_mov_b32 v86, 0xffff")
        a("v_mov_b32 v87, 0xffff0000")
    a("s_cmp_ge_u32 s3, 4")
    a(f"s_cbranch_scc1 L_{T.name}_Y")
    emit_conv_stream(a, T, 0, order, nfirst, dma_one)
    a.label(f"L_{T.name}_Y")
    emit_conv_stream(a, T, 1, order, nfirst, dma_one)


def emit_conv_stream(a, T, G, order, nfirst, dma_one):
    J = T.jobs
    st = Stream(a)
    vm = []
    k0_ready = [False]

    def make_k0():
        st.ins("s_waitcnt lgkmcnt(0)")
        for t in st.q:
            st.done.add(t)
        st.q = []
        st.ins("s_and_b32 s14, s8, 1")
        st.ins("s_lshl_b32 s14, s14, 4")
        for j in range(J):
            st.ins(f"s_lshl_b32 s{72 + j}, s{72 + j}, 16")
            st.ins(f"s_lshr_b32 s{76 + j}, s{76 + j}, s14")
            st.ins(f"s_lshl_b32 s{76 + j}, s{76 + j}, 16")
        st.ins("s_cmp_eq_u32 s4, 1")
        for j in range(J):
            st.ins(f"s_cselect_b32 s{76 + j}, s{76 + j}, 0")
        for j in range(J):
            st.ins(f"v_mov_b32 v{V_K0 + j}, s{72 + j}")
            st.ins(f"v_add_f32 v{V_K0 + j}, s{76 + j}, v{V_K0 + j}")
            st.ins(f"v_cvt_pk_bf16_f32 v{V_K0 + j}, v{V_K0 + j}, v{V_K0 + j}")
        k0_ready[0] = True

    def patch(j):
        if not k0_ready[0]:
            make_k0()
        st.lds(f"ds_write_b16 v{V_T0}, v{V_K0 + j} offset:{j * 8 * T.KP + 32}", ("patch", j, 0))
        st.lds(f"ds_write_b16 v{V_T0}, v{V_K0 + j} offset:{j * 8 * T.KP + T.PO + 30}", ("patch", j, 1))

    tiles = T.tiles
    nlo, nhi = tiles[0], tiles[-1]

    def phys(j, cp):
        if not T.half:
            return cp % 5
        return cp if j == 0 else (cp + 1)

    mf = []
    seen = set()
    for j in range(J):
        for m in range(0, nhi + 1):
            ns = list(range(nhi, max(m, nlo) - 1, -1))
            if m == 0 and j == 0 and OPT_NOUT:
                pairs = [(r, n) for n in ns for r in range(8)]
            else:
                pairs = [(r, n) for r in range(8) for n in ns]
            for r, n in pairs:
                cp = n - m
                first = (j, n) not in seen
                seen.add((j, n))
                mf.append(dict(rd=j, m=m, r=r, n=n, cp=cp, c=8 * cp + r, aslot=8 * phys(j, cp) + r, bslot=r,
                               first=first, atag=("A", j, 8 * cp + r), btag=("B", j, m, r)))
    nM = len(mf)
    loads = []
    have = set()
    last_use_a, last_use_b = {}, {}
    prev_last_b = {}
    lastb_by_tag = {}
    for i, x in enumerate(mf):
        lastb_by_tag[x['btag']] = i
    slot_prev_tag = {}
    for i, x in enumerate(mf):
        if x['btag'] not in have:
            have.add(x['btag'])
            pt = slot_prev_tag.get(x['bslot'])
            loads.append(dict(tag=x['btag'], kind='B', need=i, free=(lastb_by_tag[pt] if pt else -1), x=x))
            slot_prev_tag[x['bslot']] = x['btag']
        if x['atag'] not in have:
            have.add(x['atag'])
            loads.append(dict(tag=x['atag'], kind='A', need=i, free=last_use_a.get(x['aslot'], -1), x=x))
        last_use_a[x['aslot']] = i
    first_idx = {}
    for i, x in enumerate(mf):
        first_idx.setdefault(x['rd'], i)

    uoff0 = 1536 if T.half else 3584

    def src_pieces(ld):
        x = ld['x']
        j = x['rd']
        if ld['kind'] == 'B':
            gamma = 8 * x['m'] - x['r']
            lo = uoff0 - 64 * gamma
            hi = lo + 528 + 16
            return {("dma", j, "U", k_) for k_ in range(T.nd) if lo < 1024 * (k_ + 1) and hi > 1024 * k_}
        c = x['c']
        lo = 64 * c - 32
        hi = 64 * c + 96
        out = set()
        for k_ in range(T.nd):
            if lo < 1024 * (k_ + 1) and hi > 1024 * k_:
                out |= {("dma", j, "E", k_), ("dma", j, "O", k_)}
        if c == 0:
            out.add(("patched", j))
        return out

    landed = set()

    def vwait(tags):
        idx = [i for i, t in enumerate(vm) if t in tags and t not in landed]
        if not idx:
            return
        last = max(idx)
        keep = len(vm) - 1 - last
        st.ins(f"s_waitcnt vmcnt({keep})")
        for t in vm[:last + 1]:
            landed.add(t)

    def ensure(ld):
        need = src_pieces(ld)
        j = ld['x']['rd']
        if ("patched", j) in need:
            need.discard(("patched", j))
            if ("patched", j) not in landed:
                vwait({("dma", j, "E", 0)})
                patch(j)
                landed.add(("patched", j))
        for t in need:
            assert t in vm, ("DMA piece not issued before use", t, ld['x'])
        vwait(need)

    def available(ld):
        for t in src_pieces(ld):
            if t[0] != "patched" and t not in vm:
                return False
        return True

    def emit_load(ld):
        x = ld['x']
        j = x['rd']
        ensure(ld)
        if ld['kind'] == 'B':
            gamma = 8 * x['m'] - x['r']
            off = uoff0 - 64 * gamma + j * 8 * T.UP
            d = V_B + 4 * x['bslot']
            st.lds(f"ds_read_b128 v[{d}:{d + 3}], v{V_U} offset:{off}", ld['tag'])
        else:
            c = x['c']
            base = V_KB + (c >> 4) + (2 * j if T.half else 0)
            o = 16 * (c & 15)
            d = 4 * x['aslot']
            st.lds(f"ds_read2_b32 a[{d}:{d + 1}], v{base} offset0:{o} offset1:{o + 1}", (ld['tag'], 0))
            st.lds(f"ds_read2_b32 a[{d + 2}:{d + 3}], v{base} offset0:{o + 2} offset1:{o + 3}", ld['tag'])

    aux = {}

    def add_aux(i, fn):
        aux.setdefault(min(i, nM), []).append(fn)

    last_of_tile = {}
    for i, x in enumerate(mf):
        last_of_tile[(x['rd'], x['n'])] = i
    mf_pos = {}

    def vmem(lines, tag):
        for ln in lines:
            st.ins(ln)
        vm.append(tag)

    fillers = []

    def epi1(j, n, urgent):
        def fn():
            i = last_of_tile[(j, n)]
            ab = V_ACC + 4 * (n - nlo)
            qb = V_QD + 2 * (4 * j + n - nlo)
            u = 84
            pre = [f"v_or_b32 v{qb}, s69, v{qb}", f"v_or_b32 v{qb + 1}, s69, v{qb + 1}",
                   f"v_lshlrev_b32 v{u}, 16, v{qb}", f"v_and_b32 v{u + 1}, 0xffff0000, v{qb}",
                   f"v_lshlrev_b32 v{u + 2}, 16, v{qb + 1}", f"v_and_b32 v{u + 3}, 0xffff0000, v{qb + 1}"]
            post = [f"v_mul_f32 v{u}, v{u}, v{ab}", f"v_mul_f32 v{u + 1}, v{u + 1}, v{ab + 1}",
                    f"v_mul_f32 v{u + 2}, v{u + 2}, v{ab + 2}", f"v_mul_f32 v{u + 3}, v{u + 3}, v{ab + 3}",
                    f"v_cvt_pk_bf16_f32 v{u}, v{u}, v{u + 1}", f"v_cvt_pk_bf16_f32 v{u + 1}, v{u + 2}, v{u + 3}"]
            vwait({("q", j, n)})
            for t_ in pre:
                st.ins(t_)
            st.pad_since(mf_pos[i], 8)
            for t_ in post:
                st.ins(t_)
            st.lds(f"ds_write_b64 v{V_YW}, v[{u}:{u + 1}] offset:{j * 8 * T.YP + 512 * (n - nlo)}", ("Y", j, n))
        return fn

    cur = [0]

    def epi2(j, n):
        def fn():
            while fillers:
                fillers.pop(0)[1]()
            st.need({("Y", j, n)})
            st.ins("s_barrier")
            if ((n - nlo) & 1) != G:
                return
            o = j * 8 * T.YP + 512 * (n - nlo)
            t = V_E
            st.lds(f"ds_read_b64_tr_b16 v[{t}:{t + 1}], v{V_TR} offset:{o}", ("T", j, n, 0))
            st.lds(f"ds_read_b64_tr_b16 v[{t + 2}:{t + 3}], v{V_TR} offset:{o + 4 * T.YP}", ("T", j, n, 1))
            rdy = cur[0] + 4

            def fin():
                st.need({("T", j, n, 0), ("T", j, n, 1)})
                vmem([f"s_mov_b32 s68, {n * 256 * 2560 + j * 16}",
                      f"buffer_store_dwordx4 v[{t}:{t + 3}], v{V_OUT}, s[60:63], s68 offen"], ("st", j, n))
            fillers.append((rdy, fin))
        return fn

    def gate_fillers(rdy, t, qb, waits):
        u = V_E + 4
        fillers.append((rdy, waits))
        seq = []
        for p in range(2):
            i0, i1 = 2 * p, 2 * p + 1
            seq += [f"v_and_or_b32 v{u}, v{qb + i0}, v86, s67",
                    f"v_and_or_b32 v{u + 1}, v{qb + i0}, v87, s69",
                    f"v_and_or_b32 v{u + 2}, v{qb + i1}, v86, s67",
                    f"v_and_or_b32 v{u + 3}, v{qb + i1}, v87, s69",
                    f"v_dot2_f32_bf16 v{u}, v{t + i0}, v{u}, 0",
                    f"v_dot2_f32_bf16 v{u + 1}, v{t + i0}, v{u + 1}, 0",
                    f"v_dot2_f32_bf16 v{u + 2}, v{t + i1}, v{u + 2}, 0",
                    f"v_dot2_f32_bf16 v{u + 3}, v{t + i1}, v{u + 3}, 0",
                    "s_nop 1",
                    f"v_cvt_pk_bf16_f32 v{t + i0}, v{u}, v{u + 1}",
                    f"v_cvt_pk_bf16_f32 v{t + i1}, v{u + 2}, v{u + 3}"]
        for txt in seq:
            fillers.append((rdy, (lambda txt: (lambda: st.ins(txt)))(txt)))

    def epi1_rows(j, n):
        def fn():
            i = last_of_tile[(j, n)]
            st.pad_since(mf_pos[i], 8)
            ab = V_ACC + 4 * (n - nlo)
            st.ins(f"v_cvt_pk_bf16_f32 v84, v{ab}, v{ab + 1}")
            st.ins(f"v_cvt_pk_bf16_f32 v85, v{ab + 2}, v{ab + 3}")
            if not T.merged:
                st.lds(f"ds_write_b64 v{V_YW}, v[84:85] offset:{j * 8 * T.YP + T.YT * (n - nlo)}", ("Y", j, n))
            else:
                o = 1152 * (n - nlo) + 2 * j
                st.lds(f"ds_write_b16 v{V_YW}, v84 offset:{o}", ("Y", j, n, 0))
                st.lds(f"ds_write_b16_d16_hi v{V_YW}, v84 offset:{o + 4}", ("Y", j, n, 1))
                st.lds(f"ds_write_b16 v{V_YW}, v85 offset:{o + 8}", ("Y", j, n, 2))
                st.lds(f"ds_write_b16_d16_hi v{V_YW}, v85 offset:{o + 12}", ("Y", j, n))
        return fn

    def epi2_rows(j, n):
        def fn():
            while fillers:
                fillers.pop(0)[1]()
            st.need({("Y", j, n)})
            st.ins("s_barrier")
            if not T.merged and ((n - nlo) & 1) != G:
                return
            t = V_E
            if not T.merged:
                o = j * 8 * T.YP + T.YT * (n - nlo)
                qtag = ("q", j, (n - nlo) >> 1)
                qb = V_QD + 4 * (2 * j + ((n - nlo) >> 1))
                soff = n * 256 * 2560 + j * 16
            else:
                o = 1152 * (n - nlo)
                qtag = ("q", 0, n - nlo)
                qb = V_QD + 4 * (n - nlo)
                soff = n * 256 * 2560
            st.lds(f"ds_read_b64_tr_b16 v[{t}:{t + 1}], v{V_TR} offset:{o}", ("T", j, n, 0))
            st.lds(f"ds_read_b64_tr_b16 v[{t + 2}:{t + 3}], v{V_TR} offset:{o + 4 * T.YP}", ("T", j, n, 1))
            rdy = cur[0] + 4

            def waits():
                vwait({qtag})
                st.need({("T", j, n, 0), ("T", j, n, 1)})
            gate_fillers(rdy, t, qb, waits)
            fillers.append((rdy, lambda: vmem([f"s_mov_b32 s68, {soff}",
                                               f"buffer_store_dwordx4 v[{t}:{t + 3}], v{V_OUT}, s[60:63], s68 offen"], ("st", j, n))))
        return fn

    for k_, (kind, kk) in enumerate(order[nfirst:]):
        add_aux(1 + 3 * k_, (lambda kind, kk: (lambda: vmem(dma_one(0, kind, kk), ("dma", 0, kind, kk))))(kind, kk))
    rest0 = len(order) - nfirst
    for j in range(1, J):
        start = first_idx[j - 1] + 12
        for k_, (kind, kk) in enumerate(order):
            add_aux(start + 5 * k_, (lambda j, kind, kk: (lambda: vmem(dma_one(j, kind, kk), ("dma", j, kind, kk))))(j, kind, kk))
    if OPT_QT:
        for j in range(J):
            for n in tiles:
                at = first_idx[j] + (2 + 3 * rest0 if j == 0 else -24) + 2 * (n - nlo)

                def mkq(j, n):
                    def fn():
                        r0 = V_QD + 2 * (4 * j + n - nlo)
                        vmem([f"s_mov_b32 s14, {n * 512 + j * 32768}",
                              f"buffer_load_dwordx2 v[{r0}:{r0 + 1}], v{V_Q}, s[56:59], s14 offen"], ("q", j, n))
                    return fn
                add_aux(at, mkq(j, n))

        for j in range(J):
            for n in tiles:
                i = last_of_tile[(j, n)]
                last_in_job = (n == nhi and j + 1 < J)
                add_aux(i + 1 + (0 if last_in_job else 2), epi1(j, n, last_in_job))
                add_aux(i + 1 + 8, epi2(j, n))

    else:
        if T.merged:
            qlist = [(0, k_, nlo + k_, 0) for k_ in range(4)]
        else:
            qlist = [(0, qi, nlo + 2 * qi + G, qi) for qi in range(2)]
        for k_, (tj, ti, tile, ri) in enumerate(qlist):
            at = first_idx[0] + 2 + 3 * rest0 + ((QSTART + QSTEP * k_) if not T.merged else (QSTART_M + QSTEP_M * k_))

            def mkq(tj, ti, tile, k_):
                def fn():
                    r0 = V_QD + 4 * k_
                    vmem([f"s_mov_b32 s14, {tile * 256 * 1280}",
                          f"buffer_load_dwordx4 v[{r0}:{r0 + 3}], v{V_Q}, s[56:59], s14 offen"], ("q", tj, ti))
                return fn
            add_aux(at, mkq(tj, ti, tile, k_))
        for j in range(J):
            for n in tiles:
                i = last_of_tile[(j, n)]
                last_in_job = (n == nhi and j + 1 < J)
                add_aux(i + 1 + (0 if last_in_job else 4), epi1_rows(j, n))
                if T.merged and j == 0:
                    continue
                add_aux(i + 1 + 9, epi2_rows(j, n))

    stamp(a, 4, True)
    qa = [ld for ld in loads if ld['kind'] == 'A']
    qb_ = [ld for ld in loads if ld['kind'] == 'B']
    issued = set()
    issue_at = {}
    for j in range(1, J):
        for k_, (kind, kk) in enumerate(order):
            issue_at[("dma", j, kind, kk)] = first_idx[j - 1] + 12 + 5 * k_
    for k_, (kind, kk) in enumerate(order):
        issue_at[("dma", 0, kind, kk)] = -60 if k_ < nfirst else 1 + 3 * (k_ - nfirst) - 20

    def hint(t, i):
        return t in issue_at and i - issue_at[t] > 40

    def next_free(q, i):
        for ld in q:
            if id(ld) in issued:
                continue
            if ld['free'] < i and available(ld):
                if all((t in landed or t[0] == "patched" or ld['need'] - i < 24 or hint(t, i)) for t in src_pieces(ld)):
                    return ld
        return None

    def issue_loads(i, budget):
        cnt = 0
        while cnt < budget:
            cb_ = next_free(qb_, i) if len(st.q) + 1 <= st.max_out else None
            ca_ = next_free(qa, i) if len(st.q) + 2 <= st.max_out else None
            cand = None
            if cb_ is not None and (ca_ is None or cb_['need'] <= ca_['need']):
                cand = cb_
            elif ca_ is not None:
                cand = ca_
            if cand is None:
                break
            emit_load(cand)
            issued.add(id(cand))
            cnt += 2 if cand['kind'] == 'A' else 1
        return cnt

    if G == 1:
        a("s_barrier")
        for kind, kk in order[:nfirst]:
            for ln in dma_one(0, kind, kk):
                a(ln)
    if G == 1 and OPT_CPF and OPT_PF:
        nocp = a.newlabel("nocp")
        a("s_cmp_lg_u32 s3, 7")
        a(f"s_cbranch_scc1 {nocp}")
        lab = a.newlabel("pc")
        a("s_getpc_b64 s[82:83]")
        a.label(lab)
        a("v_lshlrev_b32 v94, 7, v1")
        a(f"v_min_u32 v94, L_end_{T.name}-{lab}-4, v94")
        a("global_load_dword v95, v94, s[82:83]")
        a.label(nocp)
    for kind, kk in order[:nfirst]:
        vm.append(("dma", 0, kind, kk))
    first = True
    for i, x in enumerate(mf):
        cur[0] = i
        if G == 0 and i == 1:
            st.ins("s_barrier")
        if STAMP and STEPSTAMP < 0 and i == 64:
            stamp(a, 6, True)
        if STAMP and STEPSTAMP >= 0 and x['rd'] == STEPSTAMP and (i == 0 or mf[i - 1]['m'] != x['m'] or mf[i - 1]['rd'] != x['rd']):
            a(f"s_memtime s[{ST0 + 2 * x['m']}:{ST0 + 2 * x['m'] + 1}]")
        for fn in aux.get(i, []):
            fn()
        for q_ in (qb_, qa):
            for ld in q_:
                if ld['need'] <= i and id(ld) not in issued:
                    emit_load(ld)
                    issued.add(id(ld))
        if first:
            stamp(a, 5, True)
            first = False
        nl = issue_loads(i, 4 if x['m'] == 0 else 2)
        nf = 0
        while fillers and fillers[0][0] <= i and nf < (3 if nl < 2 else 2):
            fillers.pop(0)[1]()
            nf += 1
        st.need({x['atag'], x['btag']})
        ab = V_ACC + 4 * (x['n'] - nlo)
        src_c = "0" if x['first'] else f"v[{ab}:{ab + 3}]"
        bs = V_B + 4 * x['bslot']
        st.ins(f"v_mfma_f32_16x16x32_bf16 v[{ab}:{ab + 3}], a[{4 * x['aslot']}:{4 * x['aslot'] + 3}], v[{bs}:{bs + 3}], {src_c}")
        mf_pos[i] = st.n
    stamp(a, 7, True)
    cur[0] = nM
    for fn in aux.get(nM, []):
        fn()
    while fillers:
        fillers.pop(0)[1]()
    dbg_stamp(a, 3, 512, 86, 87)
    if STAMP:
        stamp_flush(a, 8, 1)
    if G == 1:
        a.label(f"L_end_{T.name}")
    a("s_endpgm")


def emit_conv(a):
    k = "conv_kernel"
    a.raw(f".globl {k}")
    a.raw(".p2align 8")
    a.raw(f".type {k},@function")
    a.label(k)
    a("s_cmp_ge_u32 s2, 240")
    a("s_cbranch_scc1 L_conv_exit")
    stamp(a, 0, True)
    load_kernargs(a)
    if not OPT_CPF:
        code_prefetch(a, "L_conv_exit", 94, 95)
    a("v_lshrrev_b32 v2, 6, v0")
    a("v_and_b32 v1, 63, v0")
    a("s_and_b32 s6, s2, 7")
    a("v_readfirstlane_b32 s3, v2")
    a("s_lshr_b32 s7, s2, 3")
    a("s_mul_i32 s5, s6, 10")
    a("s_cmp_ge_u32 s7, 20")
    a("s_cbranch_scc1 L_T2")
    a("s_cmp_ge_u32 s7, 10")
    a("s_cselect_b32 s4, 1, 0")
    a("s_mul_i32 s8, s4, 10")
    a("s_sub_u32 s7, s7, s8")
    a("s_add_u32 s5, s5, s7")
    emit_conv_body(a, T1)
    a.label("L_T2")
    a("s_sub_u32 s7, s7, 20")
    a("s_cmp_ge_u32 s7, 5")
    a("s_cselect_b32 s4, 1, 0")
    a("s_mul_i32 s8, s4, 5")
    a("s_sub_u32 s7, s7, s8")
    a("s_lshl_b32 s7, s7, 1")
    a("s_add_u32 s5, s5, s7")
    emit_conv_body(a, T2)
    a.label("L_conv_exit")
    a("s_endpgm")


def kd(name, vgpr, sgpr, accum):
    return f""".amdhsa_kernel {name}
  .amdhsa_next_free_vgpr {vgpr}
  .amdhsa_next_free_sgpr {sgpr}
  .amdhsa_accum_offset {accum}
  .amdhsa_group_segment_fixed_size 0
  .amdhsa_kernarg_size 128
  .amdhsa_user_sgpr_count 2
  .amdhsa_user_sgpr_kernarg_segment_ptr 1
  .amdhsa_system_sgpr_workgroup_id_x 1
.end_amdhsa_kernel
"""


HEADER = open("cdna_kernels/" + NAME + ".s.ref").read().split("; Override launch geometry")[0]


def build():
    a = Asm()
    a.raw(HEADER.rstrip("\n"))
    a.raw(f"; @launch kernel=prep_kernel grid=(256,1,1) block=(896,1,1) lds={K1_LDS}")
    a.raw(f"; @launch kernel=conv_kernel grid=(240,1,1) block=(512,1,1) lds={K2_LDS}")
    a.raw('.amdgcn_target "amdgcn-amd-amdhsa--gfx950"')
    a.raw(".text")
    emit_prep(a)
    emit_conv(a)
    a.raw('.section .rodata,"a"')
    a.raw(".p2align 6")
    a.raw(kd("prep_kernel", 128, 102 if (STAMP or DBGT) else 80, 128))
    a.raw(".p2align 6")
    a.raw(kd("conv_kernel", 256, 102 if (STAMP or DBGT) else 84, 96))
    return a.text()


if __name__ == "__main__":
    out = sys.argv[1] if len(sys.argv) > 1 else "cdna_kernels/" + NAME + ".s"
    open(out, "w").write(build())
    print("wrote", out)
```

```python
import sys

NAME = "concat_heads__ssm_conv_s4d__ssm_conv_h3__prompt"

L = 2048
D = 640
NM = 192
ROWB = 1280
TENS = L * ROWB

WS_UT = 0
WS_KA = 1280 * 4096
WS_QT = WS_KA + 640 * 4096
WS_END = WS_QT + 640 * 4096

P_U, P_LOGA, P_AIM, P_CR, P_CI, P_LDT, P_DSK, P_Q, P_K, P_V, P_SHK, P_SSK, P_SSD, P_OUT, P_DBG, P_WS = [16 + 2 * i for i in range(16)]


import os
STAMP = bool(int(os.environ.get("STAMP", "0")))
STEPSTAMP = int(os.environ.get("STEPSTAMP", "-1"))
OPT_PRIO = int(os.environ.get("OPT_PRIO", "0"))
OPT_YLATE = int(os.environ.get("OPT_YLATE", "1"))
EPI_T2 = int(os.environ.get("EPI_T2", "60"))
EPI_T2_STEP = int(os.environ.get("EPI_T2_STEP", "10"))
OPT_NOUT = int(os.environ.get("OPT_NOUT", "1"))
DBGT = int(os.environ.get("DBGT", "0"))
OPT_QT = int(os.environ.get("OPT_QT", "0"))
QSTART = int(os.environ.get("QSTART", "4"))
QSTEP = int(os.environ.get("QSTEP", "6"))
QSTART_M = int(os.environ.get("QSTART_M", "44"))
QSTEP_M = int(os.environ.get("QSTEP_M", "8"))
OPT_SC1 = int(os.environ.get("OPT_SC1", "0"))
OPT_SKEW = int(os.environ.get("OPT_SKEW", "1"))
OPT_CPF = int(os.environ.get("OPT_CPF", "1"))
OPT_MPF = int(os.environ.get("OPT_MPF", "1"))
OPT_XMAP = int(os.environ.get("OPT_XMAP", "0"))
OPT_SCOUT = int(os.environ.get("OPT_SCOUT", "0"))
KGREP = int(os.environ.get("KGREP", "0"))
NOKGEN = int(os.environ.get("NOKGEN", "0"))
OPT_PF = int(os.environ.get("OPT_PF", "1"))
OPT_RBM = int(os.environ.get("OPT_RBM", "0"))
OPT_LATE = int(os.environ.get("OPT_LATE", "0"))


def code_prefetch(a, endlabel, vtmp, vdst):
    if not OPT_PF:
        return
    lab = a.newlabel("pc")
    a("s_getpc_b64 s[10:11]")
    a.label(lab)
    a(f"v_lshlrev_b32 v{vtmp}, 7, v0")
    a(f"v_min_u32 v{vtmp}, {endlabel}-{lab}-4, v{vtmp}")
    a(f"global_load_dword v{vdst}, v{vtmp}, s[10:11]")


WS_STAMP = 16 << 20
ST0 = 84


def stamp(a, i, k2=False):
    if STAMP and not (k2 and STEPSTAMP >= 0):
        a(f"s_memrealtime s[{ST0 + 2 * i}:{ST0 + 2 * i + 1}]")


def stamp_flush(a, n, kern):
    if not STAMP:
        return
    a("s_waitcnt lgkmcnt(0)")
    make_srd(a, 76, P_WS, WS_STAMP + (4 << 20))
    a("s_lshl_b32 s80, s2, 4")
    a("s_add_u32 s80, s80, s3")
    a("s_lshl_b32 s80, s80, 5")
    a(f"s_add_u32 s80, s80, {WS_STAMP + kern * (1 << 20)}")
    a("s_mov_b64 exec, 1")
    a("v_mov_b32 v250, s80" if False else "v_mov_b32 v9, s80")
    for i in range(n):
        a(f"v_mov_b32 v8, s{ST0 + 2 * i}")
        a(f"buffer_store_dword v8, v9, s[76:79], 0 offen offset:{4 * i}")
    a("s_mov_b64 exec, -1")


SC1 = {0: "", 1: " sc1", 2: " nt", 3: " sc0", 4: " sc0 nt"}[OPT_SC1]


def dbg_stamp(a, slot, back, vA=60, vB=61):
    if not DBGT:
        return
    a("s_memrealtime s[90:91]")
    a("s_waitcnt lgkmcnt(0)")
    a(f"s_sub_u32 s92, s{P_DBG}, {back}")
    a(f"s_subb_u32 s93, s{P_DBG + 1}, 0")
    a(f"v_mov_b32 v{vA}, {4 * slot}")
    a(f"v_mov_b32 v{vB}, s90")
    a("s_mov_b64 s[94:95], exec")
    a("s_mov_b64 exec, 1")
    a(f"global_atomic_umax v{vA}, v{vB}, s[92:93]")
    a("s_mov_b64 exec, s[94:95]")


class Asm:
    def __init__(self):
        self.lines = []
        self.nlab = 0

    def __call__(self, s):
        self.lines.append("    " + s)

    def raw(self, s):
        self.lines.append(s)

    def label(self, s):
        self.lines.append(s + ":")

    def c(self, s):
        self.lines.append("    ; " + s)

    def newlabel(self, base):
        self.nlab += 1
        return f"L_{base}_{self.nlab}"

    def text(self):
        return "\n".join(self.lines) + "\n"


def vr(i, n=1):
    return f"v{i}" if n == 1 else f"v[{i}:{i + n - 1}]"


def ar(i, n=1):
    return f"a{i}" if n == 1 else f"a[{i}:{i + n - 1}]"


def sr(i, n=1):
    return f"s{i}" if n == 1 else f"s[{i}:{i + n - 1}]"


def make_srd(a, dst, ptr, nbytes):
    a(f"s_mov_b32 s{dst}, s{ptr}")
    a(f"s_and_b32 s{dst + 1}, s{ptr + 1}, 0xffff")
    a(f"s_mov_b32 s{dst + 2}, {nbytes}")
    a(f"s_mov_b32 s{dst + 3}, 0x00020000")


def load_kernargs(a):
    a("s_load_dwordx16 s[16:31], s[0:1], 0")
    a("s_load_dwordx16 s[32:47], s[0:1], 64")


TW_RAWK = 0
TW_RAWV = 12288
TW_RAWU = TW_RAWV + 10240
TW_RAWQ = TW_RAWU + 10240
TW_STG = TW_RAWQ + (10240 if OPT_QT else 0)
KG_OFF = TW_STG + 5 * 5120
KG_CNT = KG_OFF + 9 * 9216
K1_LDS = KG_CNT + 64


def lds_signal(a, addr_v, one_v):
    a("s_mov_b64 exec, 1")
    a(f"ds_add_u32 v{addr_v}, v{one_v}")
    a("s_mov_b64 exec, -1")


def lds_wait_count(a, addr_v, tmp_v, tmp_s, count, name):
    spin = a.newlabel(name)
    a.label(spin)
    a(f"ds_read_b32 v{tmp_v}, v{addr_v}")
    a("s_waitcnt lgkmcnt(0)")
    a(f"v_readfirstlane_b32 s{tmp_s}, v{tmp_v}")
    a(f"s_cmp_lt_u32 s{tmp_s}, {count}")
    a(f"s_cbranch_scc1 {spin}")


def emit_tilewave(a):
    a.c("---- tile waves: workgroup tile = 32 rows x 160 channels of u, k, v ; wave w owns 32 channels ----")
    if OPT_XMAP:
        a("s_lshr_b32 s7, s2, 5")
        a("s_lshl_b32 s7, s7, 3")
        a("s_and_b32 s8, s2, 7")
        a("s_add_u32 s8, s8, s7")
        a("s_bfe_u32 s7, s2, 0x20003")
    else:
        a("s_lshr_b32 s8, s2, 2")
        a("s_and_b32 s7, s2, 3")
    a("s_mul_i32 s9, s8, 40960")
    a("s_mul_i32 s10, s7, 320")
    a("s_add_u32 s9, s9, s10")
    a("s_lshl_b32 s11, s3, 6")
    a("s_add_u32 s10, s10, s11")
    a("s_lshl_b32 s12, s3, 6")
    a("v_add_u32 v3, s12, v2")
    a("v_mul_u32_u24 v4, 52429, v3")
    a("v_lshrrev_b32 v4, 20, v4")
    a("v_mul_u32_u24 v5, 20, v4")
    a("v_sub_u32 v5, v3, v5")
    a("v_mul_u32_u24 v6, 1280, v4")
    a("v_lshl_add_u32 v6, v5, 4, v6")
    a("v_add_u32 v5, s9, v6")
    a("v_add_u32 v6, 20480, v5")
    a("v_subrev_u32 v7, 5120, v5")
    a("s_lshl_b32 s12, s3, 10")
    a("s_waitcnt lgkmcnt(0)")
    stamp(a, 1)
    if DBGT:
        nd = a.newlabel("nd")
        a("s_cmp_lg_u32 s2, 0")
        a(f"s_cbranch_scc1 {nd}")
        dbg_stamp(a, 0, 0, 60, 61)
        a.label(nd)
    make_srd(a, 48, P_U, TENS)
    make_srd(a, 52, P_K, TENS)
    make_srd(a, 56, P_V, TENS)
    make_srd(a, 60, P_SHK, 640 * 8)
    if OPT_QT:
        make_srd(a, 72, P_Q, TENS)
    a("v_bfe_u32 v8, v2, 4, 1")
    a("v_and_b32 v10, 15, v2")
    a("v_lshl_add_u32 v11, v8, 4, v10")
    a("s_lshl_b32 s13, s10, 2")
    a("v_lshl_add_u32 v12, v11, 3, s13")
    a("s_barrier")
    a("buffer_load_dwordx2 v[40:41], v12, s[60:63], 0 offen")
    a(f"s_add_u32 m0, s12, {TW_RAWK + 1280}")
    a("s_nop 0")
    a("buffer_load_dwordx4 v5, s[52:55], 0 offen lds")
    a(f"s_add_u32 m0, s12, {TW_RAWK + 1280 + 5120}")
    a("s_nop 0")
    a("buffer_load_dwordx4 v6, s[52:55], 0 offen lds")
    nohalo = a.newlabel("nohalo")
    a("s_cmp_gt_u32 s3, 1")
    a(f"s_cbranch_scc1 {nohalo}")
    a("s_cmp_eq_u32 s3, 0")
    a("s_cselect_b32 exec_hi, -1, 0")
    a("s_cselect_b32 exec_lo, -1, 0xffff")
    a(f"s_add_u32 m0, s12, {TW_RAWK}")
    a("s_nop 0")
    a("buffer_load_dwordx4 v7, s[52:55], 0 offen lds")
    a("s_mov_b64 exec, -1")
    a.label(nohalo)
    for srd, base in (((56, TW_RAWV), (48, TW_RAWU), (72, TW_RAWQ)) if OPT_QT else ((56, TW_RAWV), (48, TW_RAWU))):
        a(f"s_add_u32 m0, s12, {base}")
        a("s_nop 0")
        a(f"buffer_load_dwordx4 v5, s[{srd}:{srd + 3}], 0 offen lds")
        a(f"s_add_u32 m0, s12, {base + 5120}")
        a("s_nop 0")
        a(f"buffer_load_dwordx4 v6, s[{srd}:{srd + 3}], 0 offen lds")
    stamp(a, 2)
    a("v_lshrrev_b32 v3, 2, v2")
    a("v_and_b32 v4, 3, v2")
    a("v_bfe_u32 v8, v2, 4, 1")
    a("v_lshrrev_b32 v9, 5, v2")
    a("v_and_b32 v10, 15, v2")
    a("v_lshl_add_u32 v11, v8, 4, v10")
    make_srd(a, 64, P_WS, WS_END)
    a("v_and_b32 v13, 3, v3")
    a("v_sub_u32 v13, 3, v13")
    a("v_lshl_add_u32 v13, v9, 2, v13")
    a("v_mul_u32_u24 v13, 320, v13")
    a("v_lshl_add_u32 v13, v8, 5, v13")
    a("v_lshl_add_u32 v13, v4, 3, v13")
    a("v_add_u32 v13, s11, v13")
    a("s_mul_i32 s12, s3, 5120")
    a(f"s_add_u32 s12, s12, {TW_STG}")
    a("v_mul_u32_u24 v14, 80, v11")
    a("v_lshlrev_b32 v15, 3, v9")
    a("v_sub_u32 v14, v14, v15")
    a("s_add_u32 s13, s12, 8")
    a("v_add_u32 v14, s13, v14")
    a("v_mul_u32_u24 v15, 80, v3")
    a("v_lshl_add_u32 v15, v4, 4, v15")
    a("v_add_u32 v15, s12, v15")
    a("s_lshl_b32 s13, s10, 11")
    a("s_lshl_b32 s14, s8, 6")
    a("s_sub_u32 s13, s13, s14")
    a("s_add_u32 s13, s13, 4032")
    a("v_lshlrev_b32 v16, 12, v3")
    a("v_lshl_add_u32 v16, v4, 4, v16")
    a("v_add_u32 v16, s13, v16")
    a(f"v_mov_b32 v36, {KG_CNT + 12}")
    a("v_mov_b32 v37, 1")
    if OPT_SCOUT:
        a("s_mov_b32 s70, 0")
        a("s_mov_b64 exec, 0")
        for w_, nm in enumerate(("K0", "K1", "K2", "K3", "K4")):
            a(f"s_cmp_eq_u32 s3, {w_}")
            a(f"s_cbranch_scc1 L_sc_{nm}")
        a.label("L_scout_ret")
        a("s_add_u32 s70, s70, 1")
        a("s_cmp_eq_u32 s70, 1")
        a("s_cbranch_scc0 L_scout_p2")
        a("s_cmp_eq_u32 s3, 0")
        a("s_cbranch_scc1 L_sc_F0")
        a("s_cmp_eq_u32 s3, 1")
        a("s_cbranch_scc1 L_sc_F1")
        a("s_add_u32 s70, s70, 1")
        a.label("L_scout_p2")
        a("s_cmp_eq_u32 s70, 2")
        a("s_cbranch_scc1 L_tproc")
        a("s_mov_b64 exec, -1")
    a("s_setprio 2")
    a("s_waitcnt vmcnt(2)" if OPT_QT else "s_waitcnt vmcnt(0)")
    lds_signal(a, 36, 37)
    stamp(a, 3)
    if OPT_MPF:
        nopf = a.newlabel("nopf")
        if OPT_QT:
            a("s_cmp_ge_u32 s3, 2")
            a(f"s_cbranch_scc1 {nopf}")
            a(f"s_mov_b32 s68, s{P_SSK}")
            a(f"s_mov_b32 s69, s{P_SSK + 1}")
        else:
            a("s_cmp_ge_u32 s3, 4")
            a(f"s_cbranch_scc1 {nopf}")
            a("s_cmp_ge_u32 s3, 2")
            a(f"s_cselect_b32 s68, s{P_Q}, s{P_SSK}")
            a(f"s_cselect_b32 s69, s{P_Q + 1}, s{P_SSK + 1}")
        a("s_and_b32 s69, s69, 0xffff")
        a(f"s_mov_b32 s70, {TENS}")
        a("s_mov_b32 s71, 0x00020000")
        a("s_mul_i32 s15, s2, 10240")
        a("s_and_b32 s14, s3, 1")
        a("s_lshl_b32 s14, s14, 13")
        a("s_add_u32 s15, s15, s14")
        a("v_lshlrev_b32 v39, 7, v2")
        a("v_add_u32 v39, s15, v39")
        a("s_and_b32 s14, s3, 1")
        a("s_cmp_eq_u32 s14, 1")
        a("s_cselect_b32 exec_lo, 0xffff, -1")
        a("s_cselect_b32 exec_hi, 0, -1")
        a("buffer_load_dword v45, v39, s[68:71], 0 offen")
        a("s_mov_b64 exec, -1")
        a.label(nopf)
        if OPT_CPF:
            nocp = a.newlabel("nocp")
            a("s_cmp_lg_u32 s3, 4")
            a(f"s_cbranch_scc1 {nocp}")
            a("s_cmp_ge_u32 s2, 8")
            a(f"s_cbranch_scc1 {nocp}")
            lab = a.newlabel("pc")
            a("s_getpc_b64 s[68:69]")
            a.label(lab)
            a("v_lshlrev_b32 v39, 7, v2")
            a(f"v_add_u32 v39, conv_kernel-{lab}, v39")
            for k_ in range(3):
                a(f"v_min_u32 v46, L_conv_exit-{lab}, v39")
                a("global_load_dword v45, v46, s[68:69]")
                a("v_add_u32 v39, 8192, v39")
            a.label(nocp)
    a("v_alignbit_b32 v42, v41, v40, 16")
    a("v_lshlrev_b32 v43, 16, v40")
    a("v_lshrrev_b32 v44, 16, v41")
    lds_wait_count(a, 36, 38, 14, 5, "tile_spin")
    a.label("L_tproc")
    for j in range(4):
        a(f"ds_read_b64_tr_b16 v[{18 + 2 * j}:{19 + 2 * j}], v13 offset:{TW_RAWK + 1280 + 2560 * j}")
        a(f"ds_read_b64_tr_b16 v[{26 + 2 * j}:{27 + 2 * j}], v13 offset:{TW_RAWK + 2560 * j}")
        a(f"ds_read_b64_tr_b16 v[{46 + 2 * j}:{47 + 2 * j}], v13 offset:{TW_RAWV + 2560 * j}")
    for j in range(3):
        a(f"ds_read_b64_tr_b16 v[{54 + 2 * j}:{55 + 2 * j}], v13 offset:{TW_RAWU + 2560 * j}")
    for j in range(4):
        kc, kp, vv = 18 + 2 * j, 26 + 2 * j, 46 + 2 * j
        t = 64 + 10 * (j & 1)
        a(f"s_waitcnt lgkmcnt({12 - 3 * j})")
        if j == 0:
            a(f"ds_read_b64_tr_b16 v[60:61], v13 offset:{TW_RAWU + 2560 * 3}")
        a(f"v_dot2_f32_bf16 v{t + 0}, v{kc}, v40, 0")
        a(f"v_dot2_f32_bf16 v{t + 1}, v{kc}, v43, 0")
        a(f"v_dot2_f32_bf16 v{t + 2}, v{kc + 1}, v40, 0")
        a(f"v_dot2_f32_bf16 v{t + 3}, v{kc + 1}, v43, 0")
        a(f"v_dot2_f32_bf16 v{t + 0}, v{kc + 1}, v41, v{t + 0}")
        a(f"v_dot2_f32_bf16 v{t + 1}, v{kc + 1}, v42, v{t + 1}")
        a(f"v_dot2_f32_bf16 v{t + 2}, v{kp}, v41, v{t + 2}")
        a(f"v_dot2_f32_bf16 v{t + 3}, v{kp}, v42, v{t + 3}")
        a(f"v_dot2_f32_bf16 v{t + 1}, v{kp}, v44, v{t + 1}")
        a(f"v_dot2_f32_bf16 v{t + 3}, v{kp + 1}, v44, v{t + 3}")
        a(f"v_lshlrev_b32 v{t + 4}, 16, v{vv}")
        a(f"v_and_b32 v{t + 5}, 0xffff0000, v{vv}")
        a(f"v_lshlrev_b32 v{t + 6}, 16, v{vv + 1}")
        a(f"v_and_b32 v{t + 7}, 0xffff0000, v{vv + 1}")
        a(f"v_mul_f32 v{t + 0}, v{t + 0}, v{t + 4}")
        a(f"v_mul_f32 v{t + 1}, v{t + 1}, v{t + 5}")
        a(f"v_mul_f32 v{t + 2}, v{t + 2}, v{t + 6}")
        a(f"v_mul_f32 v{t + 3}, v{t + 3}, v{t + 7}")
        a(f"v_cvt_pk_bf16_f32 v{t + 8}, v{t + 0}, v{t + 1}")
        a(f"v_cvt_pk_bf16_f32 v{t + 9}, v{t + 2}, v{t + 3}")
        a(f"ds_write_b64 v14, v[{t + 8}:{t + 9}] offset:{2560 + 16 * (3 - j)}")
    a("s_waitcnt lgkmcnt(4)")
    for j in range(4):
        a(f"ds_write_b64 v14, v[{54 + 2 * j}:{55 + 2 * j}] offset:{16 * (3 - j)}")
    a("s_waitcnt lgkmcnt(0)")
    for i in range(2):
        a(f"ds_read_b128 v[{18 + 4 * i}:{21 + 4 * i}], v15 offset:{2560 + 1280 * i}")
    for i in range(2):
        a(f"ds_read_b128 v[{26 + 4 * i}:{29 + 4 * i}], v15 offset:{1280 * i}")
    a(f"v_add_u32 v17, {640 * 4096}, v16")
    a("v_add_u32 v34, 65536, v17")
    a("v_add_u32 v35, 65536, v16")
    scout(a, None)
    a("s_waitcnt lgkmcnt(3)")
    a("buffer_store_dwordx4 v[18:21], v17, s[64:67], 0 offen" + SC1)
    a("s_waitcnt lgkmcnt(2)")
    a("buffer_store_dwordx4 v[22:25], v34, s[64:67], 0 offen" + SC1)
    a("s_waitcnt lgkmcnt(1)")
    a("buffer_store_dwordx4 v[26:29], v16, s[64:67], 0 offen" + SC1)
    a("s_waitcnt lgkmcnt(0)")
    a("buffer_store_dwordx4 v[30:33], v35, s[64:67], 0 offen" + SC1)
    if OPT_QT:
        a("s_waitcnt vmcnt(4)")
        a(f"v_mov_b32 v36, {KG_CNT + 16}")
        lds_signal(a, 36, 37)
        lds_wait_count(a, 36, 38, 14, 5, "tileq_spin")
        a("v_and_b32 v46, 3, v3")
        a("v_lshlrev_b32 v47, 1, v46")
        a("v_subrev_u32 v47, 3, v47")
        a("v_mul_i32_i24 v47, 320, v47")
        a("v_add_u32 v47, v13, v47")
        for j in range(4):
            a(f"ds_read_b64_tr_b16 v[{54 + 2 * j}:{55 + 2 * j}], v47 offset:{TW_RAWQ + 2560 * j}")
        a("v_lshlrev_b32 v48, 4, v9")
        a("v_add_u32 v48, v14, v48")
        a("v_subrev_u32 v48, 8, v48")
        a("s_lshl_b32 s14, s8, 7")
        a(f"s_add_u32 s14, s14, {WS_QT - 4032}")
        a("v_add_u32 v49, s14, v16")
        a("v_add_u32 v50, 65536, v49")
        a("s_waitcnt lgkmcnt(0)")
        for j in range(4):
            a(f"ds_write_b64 v48, v[{54 + 2 * j}:{55 + 2 * j}] offset:{16 * j}")
        a("s_waitcnt lgkmcnt(0)")
        for i in range(2):
            a(f"ds_read_b128 v[{64 + 4 * i}:{67 + 4 * i}], v15 offset:{1280 * i}")
        a("s_waitcnt lgkmcnt(1)")
        a("buffer_store_dwordx4 v[64:67], v49, s[64:67], 0 offen" + SC1)
        a("s_waitcnt lgkmcnt(0)")
        a("buffer_store_dwordx4 v[68:71], v50, s[64:67], 0 offen" + SC1)
    if STAMP:
        stamp(a, 4)
        a("s_waitcnt vmcnt(0)")
        stamp(a, 5)
        stamp_flush(a, 6, 0)
    a("s_endpgm")


LOG2E = 0x3fb8aa3b
INV2PI = 0x3e22f983


def cmul(a, d, x, y, t):
    a(f"v_pk_mul_f32 v[{t}:{t + 1}], v[{x}:{x + 1}], v[{y}:{y + 1}] op_sel:[0,0] op_sel_hi:[0,1]")
    a(f"v_pk_fma_f32 v[{d}:{d + 1}], v[{x}:{x + 1}], v[{y}:{y + 1}], v[{t}:{t + 1}] op_sel:[1,1,0] op_sel_hi:[1,0,1] neg_lo:[0,1,0]")


KG_BUF = 4608
KG_WAVE = 2 * KG_BUF


def scout(a, entry):
    if OPT_SCOUT:
        a("s_cbranch_execz L_scout_ret")
        if entry:
            a.label("L_sc_" + entry)


def scout_entry(a, entry):
    if OPT_SCOUT:
        a.label("L_sc_" + entry)


def emit_kgen_issue(a):
    a.c("---- kgen waves: issue parameter loads as early as possible ----")
    a("s_sub_u32 s6, s3, 5")
    a("s_mul_i32 s7, s6, 43")
    a("s_lshr_b32 s7, s7, 7")
    a("s_mov_b32 s67, s7")
    a("s_mul_i32 s4, s7, 3")
    a("s_sub_u32 s4, s6, s4")
    a("s_lshr_b32 s5, s2, 1")
    a("s_mul_i32 s5, s5, 5")
    a("s_and_b32 s8, s2, 1")
    a("s_mul_i32 s9, s8, 3")
    a("s_add_u32 s5, s5, s9")
    a("s_add_u32 s5, s5, s7")
    a("s_lshr_b32 s9, s7, 1")
    a("s_and_b32 s9, s9, s8")
    a("s_cmp_eq_u32 s9, 1")
    a("s_cbranch_scc1 L_prep_exit")
    a("s_mul_i32 s9, s5, 384")
    a("s_lshl_b32 s7, s4, 7")
    a("s_add_u32 s9, s9, s7")
    a("v_lshl_add_u32 v3, v2, 1, s9")
    for r in range(10, 14):
        a(f"v_mov_b32 v{r}, 0")
    a("s_lshl_b32 s7, s5, 1")
    a("s_and_b32 s7, s7, 0xfffffffc")
    a("s_mov_b32 s50, 245760")
    a("s_mov_b32 s51, 0x00020000")
    a("s_mov_b32 s54, 245760")
    a("s_mov_b32 s55, 0x00020000")
    a("s_mov_b32 s58, 245760")
    a("s_mov_b32 s59, 0x00020000")
    a("s_mov_b32 s62, 245760")
    a("s_mov_b32 s63, 0x00020000")
    a("v_lshlrev_b32 v4, 2, v2")
    a(f"v_add_u32 v4, {KG_CNT}, v4")
    a("v_mov_b32 v5, 0")
    a("s_mov_b64 exec, 31")
    a("ds_write_b32 v4, v5")
    a("s_mov_b64 exec, -1")
    a("s_waitcnt lgkmcnt(0)")
    stamp(a, 1)
    for srd, p, dst in ((48, P_LOGA, 10), (52, P_AIM, 11), (56, P_CR, 12), (60, P_CI, 13)):
        a(f"s_mov_b32 s{srd}, s{p}")
        a(f"s_and_b32 s{srd + 1}, s{p + 1}, 0xffff")
        a(f"buffer_load_short_d16_hi v{dst}, v3, s[{srd}:{srd + 3}], 0 offen")
    a("s_barrier")
    a(f"s_load_dword s64, s[{P_LDT}:{P_LDT + 1}], s7")
    a(f"s_load_dword s65, s[{P_DSK}:{P_DSK + 1}], s7")
    if KGREP:
        a(f"s_mov_b32 s68, {KGREP}")
    a("s_branch L_kgen")


def emit_kgen(a):
    a.c("---- S4D kernel generation: 64 modes per wave ----")
    a(f"s_mul_i32 s8, s6, {KG_WAVE}")
    a(f"s_add_u32 s8, s8, {KG_OFF}")
    make_srd(a, 72, P_WS, WS_END)
    a("s_mov_b32 m0, s8")
    a("v_and_b32 v5, 15, v2")
    a("v_lshrrev_b32 v6, 4, v2")
    a("v_mul_u32_u24 v7, 288, v5")
    a("v_lshl_add_u32 v7, v6, 4, v7")
    a("v_add_u32 v7, s8, v7")
    a("v_lshlrev_b32 v8, 4, v2")
    a("v_add_u32 v9, s8, v8")
    a("v_lshlrev_b32 v60, 4, v5")
    a("v_add_u32 v60, s8, v60")
    a("v_and_b32 v61, 1, v6")
    a("v_lshrrev_b32 v62, 1, v6")
    a("v_lshl_add_u32 v56, v61, 3, v60")
    a("v_lshl_add_u32 v56, v62, 8, v56")
    a("v_lshl_add_u32 v57, v6, 8, v60")
    a("v_add_u32 v57, 512, v57")
    a("v_lshl_add_u32 v58, v6, 9, v60")
    a("v_cmp_gt_u32 vcc, 2, v6")
    a("v_mov_b32 v61, 8")
    a("v_mov_b32 v62, 4")
    a("v_cndmask_b32 v57, v58, v57, vcc")
    a("v_cndmask_b32 v61, v61, v62, vcc")
    a("v_add_u32 v58, v57, v61")
    a("v_mov_b32 v61, 256")
    a("v_mov_b32 v62, 8")
    a("v_cndmask_b32 v61, v61, v62, vcc")
    a("v_add_u32 v59, v57, v61")
    a("v_mov_b32 v61, 264")
    a("v_mov_b32 v62, 12")
    a("v_cndmask_b32 v61, v61, v62, vcc")
    a("v_add_u32 v124, v57, v61")
    a("v_lshl_add_u32 v61, v6, 10, v60")
    a("v_add_u32 v61, 2048, v61")
    a("v_lshlrev_b32 v62, 1, v2")
    a("v_add_u32 v62, s8, v62")
    a("v_add_u32 v62, 5120, v62")
    a("v_cndmask_b32 v126, v62, v61, vcc")
    a("v_cmp_gt_u32 vcc, 3, v6")
    a("s_nop 1")
    a("v_cndmask_b32 v125, v62, v61, vcc")
    a("v_and_b32 v60, 1, v2")
    a("v_cmp_eq_u32 vcc, 1, v60")
    a("v_mov_b32 v61, 0x05040100")
    a("v_mov_b32 v62, 0x05040504")
    a("v_cndmask_b32 v127, v61, v62, vcc")
    a("s_mul_i32 s6, s5, 4096")
    a(f"s_add_u32 s6, s6, {WS_KA}")
    a("v_add_u32 v63, s6, v8")
    a("s_mov_b32 s12, 0x01000100")
    a("s_mov_b32 s13, 0x05040100")
    a(f"s_mov_b32 s9, {LOG2E:#x}")
    a(f"s_mov_b32 s10, {INV2PI:#x}")
    (stamp(a, 2) if not KGREP else None)
    a("s_waitcnt lgkmcnt(0)")
    a("s_and_b32 s66, s5, 1")
    a("s_lshl_b32 s66, s66, 4")
    a("s_lshr_b32 s64, s64, s66")
    a("s_lshl_b32 s64, s64, 16")
    a("s_lshr_b32 s65, s65, s66")
    a("s_lshl_b32 s65, s65, 16")
    a("v_mov_b32 v14, s64")
    a("v_mov_b32 v15, s65")
    a("v_cmp_eq_u32 vcc, 0, v2")
    a("s_nop 1")
    a("v_cndmask_b32 v15, 0, v15, vcc")
    a("v_cmp_gt_u32 vcc, 32, v2")
    a("s_waitcnt vmcnt(0)")
    if KGREP:
        a("v_mov_b32 v56, v10")
        a("v_mov_b32 v57, v11")
        a("v_mov_b32 v58, v12")
        a("v_mov_b32 v59, v13")
        a.label("L_kg_again")
        a("v_mov_b32 v10, v56")
        a("v_mov_b32 v11, v57")
        a("v_mov_b32 v12, v58")
        a("v_mov_b32 v13, v59")
        a("v_mov_b32 v14, s64")
        a("s_cmp_eq_u32 s68, %d" % KGREP)
        a("s_cbranch_scc0 L_kg_n1")
        a("s_memrealtime s[86:87]")
        a("s_memtime s[88:89]")
        a.label("L_kg_n1")
        a("s_cmp_eq_u32 s68, %d" % (KGREP - 1))
        a("s_cbranch_scc0 L_kg_n2")
        a("s_memrealtime s[90:91]")
        a("s_memtime s[92:93]")
        a.label("L_kg_n2")
        a("s_cmp_eq_u32 s68, %d" % (KGREP - 2))
        a("s_cbranch_scc0 L_kg_n3")
        a("s_memrealtime s[94:95]")
        a("s_memtime s[96:97]")
        a.label("L_kg_n3")
    (stamp(a, 3) if not KGREP else None)
    a("s_setprio 0")
    scout_entry(a, "K0")
    a("v_mul_f32 v14, s9, v14")
    a("v_mul_f32 v10, s9, v10")
    a("v_exp_f32 v14, v14")
    a("v_exp_f32 v10, v10")
    a("s_nop 0")
    a("v_cvt_pk_bf16_f32 v14, v14, v10")
    a("v_and_b32 v10, 0xffff0000, v14")
    a("v_lshlrev_b32 v14, 16, v14")
    a("v_mul_f32 v10, v10, v14")
    a("v_mul_f32 v11, v11, v14")
    a("v_add_f32 v14, v14, v14")
    a("v_mul_f32 v16, v12, v14")
    a("v_mul_f32 v17, v13, v14")
    a("v_mul_f32 v10, s9, v10")
    a("v_sub_f32 v10, 0, v10")
    a("v_mul_f32 v11, s10, v11")
    def cexp(dst, scale):
        t0, t1, t2 = 24, 25, 26
        if scale == 1:
            a(f"v_mov_b32 v{t0}, v10")
            a(f"v_mov_b32 v{t1}, v11")
        else:
            a(f"v_mul_f32 v{t0}, {f32hex(scale)}, v10")
            a(f"v_mul_f32 v{t1}, {f32hex(scale)}, v11")
        a(f"v_rndne_f32 v{t2}, v{t1}")
        a(f"v_exp_f32 v{t0}, v{t0}")
        a(f"v_sub_f32 v{t1}, v{t1}, v{t2}")
        a(f"v_cos_f32 v{t2}, v{t1}")
        a(f"v_sin_f32 v{t1}, v{t1}")
        a("s_nop 0")
        a(f"v_mul_f32 v{dst}, v{t0}, v{t2}")
        a(f"v_mul_f32 v{dst + 1}, v{t0}, v{t1}")
    cexp(18, 1)
    cexp(20, 8)
    cexp(22, 128)
    E1, E8, E128, C2 = 18, 20, 22, 16
    TMP = [24, 26, 28, 30]
    R = [32 + 2 * j for j in range(8)]
    EJ, YB = 48, 50
    CV = [52, 53, 54, 55]
    def wr_row(src, buf, row, negim, cv):
        neg = "-" if negim else ""
        a(f"v_cvt_pk_bf16_f32 v{cv}, v{src}, {neg}v{src + 1}")
        a(f"ds_write_addtid_b32 v{cv} offset:{buf * KG_BUF + row * 288}")

    a("v_mov_b32 v52, 0x3f80")
    a("ds_write_addtid_b32 v52 offset:0")
    wr_row(E8, 0, 1, True, 53)
    a(f"v_mov_b32 v{R[0]}, v{C2}")
    a(f"v_mov_b32 v{R[0] + 1}, v{C2 + 1}")
    ycur = E8
    for b in range(2, 16):
        if b == 3:
            scout(a, "K1")
        if b == 10:
            scout(a, "K2")
        src = ycur
        cmul_y = (YB, src, E8, TMP[0])
        if b - 1 <= 7:
            j = b - 1
            a(f"v_pk_mul_f32 v[{TMP[0]}:{TMP[0] + 1}], v[{src}:{src + 1}], v[{E8}:{E8 + 1}] op_sel:[0,0] op_sel_hi:[0,1]")
            a(f"v_pk_mul_f32 v[{TMP[1]}:{TMP[1] + 1}], v[{R[j - 1]}:{R[j - 1] + 1}], v[{E1}:{E1 + 1}] op_sel:[0,0] op_sel_hi:[0,1]")
            a(f"v_pk_fma_f32 v[{YB}:{YB + 1}], v[{src}:{src + 1}], v[{E8}:{E8 + 1}], v[{TMP[0]}:{TMP[0] + 1}] op_sel:[1,1,0] op_sel_hi:[1,0,1] neg_lo:[0,1,0]")
            a(f"v_pk_fma_f32 v[{R[j]}:{R[j] + 1}], v[{R[j - 1]}:{R[j - 1] + 1}], v[{E1}:{E1 + 1}], v[{TMP[1]}:{TMP[1] + 1}] op_sel:[1,1,0] op_sel_hi:[1,0,1] neg_lo:[0,1,0]")
            wr_row(R[j - 1], 1, j - 1, False, 54)
        else:
            cmul(a, YB, src, E8, TMP[0])
            j = b - 9
            if j == 0:
                wr_row(R[7], 1, 7, False, 54)
            cmul(a, R[j], R[j], E128, TMP[1])
            wr_row(R[j], 1, 8 + j, False, 54)
        wr_row(YB, 0, b, True, 53)
        ycur = YB
    cmul(a, R[7], R[7], E128, TMP[1])
    wr_row(R[7], 1, 15, False, 54)
    scout(a, "K3")
    YOP, XOP, ACC = 64, 80, 96
    a("s_waitcnt lgkmcnt(0)")
    for ks in range(4):
        a(f"ds_read_b128 v[{YOP + 4 * ks}:{YOP + 4 * ks + 3}], v7 offset:{64 * ks}")
    for ks in range(4):
        a(f"ds_read_b128 v[{XOP + 4 * ks}:{XOP + 4 * ks + 3}], v7 offset:{KG_BUF + 64 * ks}")
    for idx, j in enumerate([0, 2, 4, 6]):
        cmul(a, R[j], R[j], E128, TMP[idx % 4])
    a("s_waitcnt lgkmcnt(4)")
    for idx, j in enumerate([0, 2, 4, 6]):
        wr_row(R[j], 0, idx, False, CV[idx])
    for idx, j in enumerate([0, 2, 4, 6]):
        cmul(a, R[j], R[j], E128, TMP[idx % 4])
    a("s_waitcnt lgkmcnt(4)")
    for ks in range(4):
        c = "0" if ks == 0 else f"v[{ACC}:{ACC + 3}]"
        a(f"v_mfma_f32_16x16x32_bf16 v[{ACC}:{ACC + 3}], v[{XOP + 4 * ks}:{XOP + 4 * ks + 3}], v[{YOP + 4 * ks}:{YOP + 4 * ks + 3}], {c}")
    for idx, j in enumerate([0, 2, 4, 6]):
        wr_row(R[j], 0, 4 + idx, False, CV[idx])
    scout(a, "K4")
    for aa in range(4):
        for idx, j in enumerate([0, 4]):
            cmul(a, R[j], R[j], E128, TMP[idx])
        for idx, j in enumerate([0, 4]):
            wr_row(R[j], 0, 8 + 2 * aa + idx, False, CV[(2 * aa + idx) % 4])
    for aa in range(9):
        cmul(a, R[0], R[0], E128, TMP[aa % 2])
        wr_row(R[0], 1, aa, False, CV[aa % 4])
    a("s_waitcnt lgkmcnt(9)")
    for ks in range(4):
        a(f"ds_read_b128 v[{XOP + 4 * ks}:{XOP + 4 * ks + 3}], v7 offset:{64 * ks}")
    a("s_waitcnt lgkmcnt(0)")
    for ks in range(4):
        c = "0" if ks == 0 else f"v[{ACC + 4}:{ACC + 7}]"
        a(f"v_mfma_f32_16x16x32_bf16 v[{ACC + 4}:{ACC + 7}], v[{XOP + 4 * ks}:{XOP + 4 * ks + 3}], v[{YOP + 4 * ks}:{YOP + 4 * ks + 3}], {c}")
    XO2 = 108
    for ks in range(4):
        a(f"ds_read_b128 v[{XO2 + 4 * ks}:{XO2 + 4 * ks + 3}], v7 offset:{KG_BUF + 64 * ks}")
    a("s_waitcnt lgkmcnt(0)")
    for ks in range(4):
        c = "0" if ks == 0 else f"v[{ACC + 8}:{ACC + 11}]"
        a(f"v_mfma_f32_16x16x32_bf16 v[{ACC + 8}:{ACC + 11}], v[{XO2 + 4 * ks}:{XO2 + 4 * ks + 3}], v[{YOP + 4 * ks}:{YOP + 4 * ks + 3}], {c}")
    if KGREP:
        a("s_nop 7")
        a("s_nop 7")
        a("s_sub_u32 s68, s68, 1")
        a("s_cmp_gt_u32 s68, 0")
        a("s_cbranch_scc1 L_kg_again")
        a("s_memrealtime s[98:99]")
    scout(a, None)
    a("s_nop 7")
    a("s_nop 1")
    done = a.newlabel("kg_w0")
    a("s_cmp_eq_u32 s4, 0")
    a(f"s_cbranch_scc1 {done}")
    for t in range(3):
        a(f"ds_write_b128 v9, v[{ACC + 4 * t}:{ACC + 4 * t + 3}] offset:{1024 * t}")
    a("s_lshl_b32 s15, s67, 2")
    a(f"s_add_u32 s15, s15, {KG_CNT}")
    a("v_mov_b32 v10, s15")
    a("v_mov_b32 v11, 1")
    a("s_waitcnt lgkmcnt(0)")
    lds_signal(a, 10, 11)
    if STAMP:
        (stamp(a, 4) if not KGREP else None)
        (stamp(a, 5) if not KGREP else None)
        stamp_flush(a, 8, 0)
    a("s_endpgm")
    a.label(done)
    a("s_lshl_b32 s15, s67, 2")
    a(f"s_add_u32 s15, s15, {KG_CNT}")
    a("v_mov_b32 v10, s15")
    lds_wait_count(a, 10, 11, 14, 2, "kg_spin")
    (stamp(a, 4) if not KGREP else None)
    scout_entry(a, "F0")
    for wv in (1, 2):
        for t in range(3):
            a(f"ds_read_b128 v[{32 + 12 * (wv - 1) + 4 * t}:{35 + 12 * (wv - 1) + 4 * t}], v9 offset:{wv * KG_WAVE + 1024 * t}")
    a("s_waitcnt lgkmcnt(0)")
    for i in range(12):
        a(f"v_add_f32 v{ACC + i}, v{ACC + i}, v{32 + i}")
    for i in range(12):
        a(f"v_add_f32 v{ACC + i}, v{ACC + i}, v{44 + i}")
    a(f"v_add_f32 v{ACC}, v{ACC}, v15")
    for i in range(6):
        a(f"v_cvt_pk_bf16_f32 v{56 + i - 24}, v{ACC + 2 * i}, v{ACC + 2 * i + 1}")
    scout(a, "F1")
    a("ds_write_b16 v56, v32 offset:0")
    a("ds_write_b16_d16_hi v56, v32 offset:2")
    a("ds_write_b16 v56, v33 offset:4")
    a("ds_write_b16_d16_hi v56, v33 offset:6")
    a("ds_write_b16 v57, v34")
    a("ds_write_b16_d16_hi v58, v34")
    a("ds_write_b16 v59, v35")
    a("ds_write_b16_d16_hi v124, v35")
    a("ds_write_b16 v125, v36 offset:0")
    a("ds_write_b16_d16_hi v126, v36 offset:256")
    a("ds_write_b16 v126, v37 offset:512")
    a("ds_write_b16_d16_hi v126, v37 offset:768")
    a("s_waitcnt lgkmcnt(0)")
    SL = [40, 48, 64, 70]
    for s in range(4):
        a(f"ds_read_b128 v[{SL[s]}:{SL[s] + 3}], v9 offset:{1024 * s}")
        a(f"ds_read_b32 v{SL[s] + 4}, v9 offset:{1024 * s + 16}")
    a("s_waitcnt lgkmcnt(0)")
    def perm(d, s0, s1, sel):
        a(f"v_perm_b32 v{d}, v{s0}, v{s1}, {sel}")
    perm(76, 40, 40, "s12"); perm(77, 42, 41, "s13"); perm(78, 42, 42, "s12"); perm(79, 44, 43, "s13")
    for i in range(4):
        a(f"v_cndmask_b32 v{76 + i}, v{76 + i}, v{40 + i}, vcc")
    perm(80, 48, 48, "s12"); perm(81, 50, 48, "s13"); perm(82, 50, 50, "s12"); perm(83, 52, 52, "s12")
    for s_, o in ((2, 84), (3, 88)):
        d0, d4 = SL[s_], SL[s_] + 4
        perm(o, d0, d0, "s12"); perm(o + 1, d0, d0, "s12"); perm(o + 2, d4, d0, "v127"); perm(o + 3, d4, d4, "s12")
    scout(a, None)
    for s_, o in ((0, 76), (1, 80), (2, 84), (3, 88)):
        a(f"buffer_store_dwordx4 v[{o}:{o + 3}], v63, s[72:75], 0 offen offset:{1024 * s_}" + SC1)
    dbg_stamp(a, 1, 0, 60, 61)
    if STAMP:
        a("s_waitcnt vmcnt(0)")
        (stamp(a, 5) if not KGREP else None)
        stamp_flush(a, 8, 0)
    a("s_endpgm")


def f32hex(x):
    import struct
    return hex(struct.unpack("<I", struct.pack("<f", float(x)))[0])


def emit_prep(a):
    k = "prep_kernel"
    a.raw(f".globl {k}")
    a.raw(".p2align 8")
    a.raw(f".type {k},@function")
    a.label(k)
    a("s_cmp_ge_u32 s2, 256")
    a("s_cbranch_scc1 L_prep_exit")
    stamp(a, 0)
    load_kernargs(a)
    code_prefetch(a, "L_prep_exit", 120, 121)
    a("v_lshrrev_b32 v1, 6, v0")
    a("v_and_b32 v2, 63, v0")
    a("s_nop 0")
    a("v_readfirstlane_b32 s3, v1")
    a("s_mov_b32 s4, 0x9b436210")
    a("s_mov_b32 s5, 0xa7cd85")
    a("s_lshl_b32 s3, s3, 2")
    a("s_lshr_b64 s[4:5], s[4:5], s3")
    a("s_and_b32 s3, s4, 15")
    a("s_cmp_lt_u32 s3, 5")
    a("s_cbranch_scc1 L_tile")
    if NOKGEN:
        a("s_endpgm")
    a("s_setprio 3")
    emit_kgen_issue(a)
    a.label("L_tile")
    emit_tilewave(a)
    a.label("L_kgen")
    emit_kgen(a)
    a.label("L_prep_exit")
    a("s_endpgm")


class Lay:
    def __init__(self, name, half, tiles, jobs):
        self.name = name
        self.half = half
        self.tiles = list(tiles)
        self.jobs = jobs
        self.nslot = 8 * jobs
        self.ubytes = 2048 if half else 4096
        self.UP = self.ubytes + 512
        self.PO = self.ubytes + 64
        self.KP = 2 * self.PO
        self.merged = (jobs == 2 and not OPT_QT)
        self.YP = 4672 if self.merged else (2112 if OPT_QT or jobs == 2 else 2624)
        self.YT = 640 if self.YP == 2624 else 512
        self.YR = 40 if self.YP == 2624 else 32
        self.U0 = 0
        self.K0 = self.nslot * self.UP
        self.Y0 = self.K0 + self.nslot * self.KP
        self.end = self.Y0 + (8 if self.merged else self.nslot) * self.YP
        self.nd = self.ubytes // 1024


T1 = Lay("T1", False, range(4, 8), 1)
T2 = Lay("T2", True, range(0, 4), 2)
K2_LDS = max(T1.end, T2.end)
assert T1.K0 % 128 == 0 and T1.KP % 128 == 0 and T1.PO % 128 == 64
assert T2.K0 % 128 == 0 and T2.KP % 128 == 0 and T2.PO % 128 == 64

V_U, V_KB, V_YW, V_TR, V_OUT, V_Q, V_L16, V_T0, V_T1 = 4, 5, 9, 10, 11, 12, 13, 14, 15
V_ACC = 16
V_B = 48
V_QD = 32
V_E = 88
V_K0 = 2


class Stream:
    def __init__(self, a, max_out=14):
        self.a = a
        self.q = []
        self.n = 0
        self.max_out = max_out
        self.done = set()

    def ins(self, txt):
        self.a(txt)
        self.n += 1

    def lds(self, txt, tag):
        if len(self.q) >= self.max_out:
            keep = self.max_out - 1
            self._wait(keep)
        self.ins(txt)
        self.q.append(tag)

    def _wait(self, keep):
        if len(self.q) > keep:
            self.ins(f"s_waitcnt lgkmcnt({keep})")
            for t in self.q[:len(self.q) - keep]:
                self.done.add(t)
            self.q = self.q[len(self.q) - keep:]

    def need(self, tags):
        last = -1
        for i, t in enumerate(self.q):
            if t in tags:
                last = i
        if last >= 0:
            self._wait(len(self.q) - 1 - last)

    def pad_since(self, n0, states):
        k = states - (self.n - n0)
        while k > 0:
            c = min(k, 16)
            self.ins(f"s_nop {c - 1}")
            self.n += c - 1
            k -= c


def emit_conv_body(a, T):
    J = T.jobs
    a("s_lshl_b32 s8, s5, 3")
    a("s_add_u32 s8, s8, s3")
    a("s_mul_i32 s9, s4, 640")
    a("s_add_u32 s9, s9, s8")
    a("s_lshl_b32 s10, s8, 12")
    a("s_lshl_b32 s13, s9, 12")
    if T.half:
        a("s_add_u32 s13, s13, 2048")
    a(f"s_mul_i32 s70, s3, {T.UP}")
    a(f"s_mul_i32 s71, s3, {T.KP}")
    a(f"s_add_u32 s71, s71, {T.K0}")
    a(f"v_lshlrev_b32 v{V_L16}, 4, v1")
    a("v_and_b32 v88, 15, v1")
    a("v_lshrrev_b32 v89, 4, v1")
    a("v_lshlrev_b32 v90, 5, v88")
    a("v_lshlrev_b32 v91, 4, v89")
    a("v_sub_u32 v90, v91, v90")
    a("s_add_u32 s14, s70, 480")
    a(f"v_add_u32 v{V_U}, s14, v90")
    a("v_add_u32 v90, 1, v88")
    a("v_and_b32 v91, 1, v90")
    a("v_lshl_add_u32 v90, v89, 3, v90")
    a("v_lshrrev_b32 v90, 1, v90")
    a("v_lshlrev_b32 v90, 2, v90")
    a(f"v_mul_u32_u24 v91, {T.PO}, v91")
    a("v_add_u32 v90, v90, v91")
    a(f"v_add_u32 v{V_KB}, s71, v90")
    nkb = 2 if T.half else 4
    for kk in range(1, nkb):
        a(f"v_add_u32 v{V_KB + kk}, {1024 * kk}, v{V_KB}")
    if T.half:
        for kk in range(2):
            a(f"v_add_u32 v{V_KB + 2 + kk}, {8 * T.KP + 1024 * kk}, v{V_KB}")
    a(f"s_add_u32 s14, s70, {T.ubytes}")
    a("v_lshl_add_u32 v90, v1, 4, s14")
    a(f"s_sub_u32 s14, s71, {30 * 16}")
    a("v_lshl_add_u32 v91, v1, 4, s14")
    a(f"s_add_u32 s14, s71, {T.PO - 32 * 16}")
    a("v_lshl_add_u32 v92, v1, 4, s14")
    a("v_cmp_gt_u32 vcc, 32, v1")
    a(f"v_mov_b32 v93, {8 * T.KP}")
    a(f"v_mov_b32 v94, {8 * T.UP}")
    a("v_cndmask_b32 v91, v92, v91, vcc")
    a("v_cmp_gt_u32 vcc, 30, v1")
    for r in range(80, 84):
        a(f"v_mov_b32 v{r}, 0")
    a("v_cndmask_b32 v90, v91, v90, vcc")
    a("v_cndmask_b32 v93, v93, v94, vcc")
    a("s_mov_b32 exec_hi, 3")
    for j in range(J):
        a("ds_write_b128 v90, v[80:83]")
        if j + 1 < J:
            a("v_add_u32 v90, v90, v93")
    a("s_mov_b64 exec, -1")
    a(f"s_mul_i32 s14, s3, {T.YP}")
    a(f"s_add_u32 s14, s14, {T.Y0}")
    a("s_lshl_b32 s11, s5, 4")
    if not T.merged:
        a(f"v_mul_u32_u24 v90, {T.YR}, v88")
        a("v_lshl_add_u32 v90, v89, 3, v90")
        a(f"v_add_u32 v{V_YW}, s14, v90")
        if OPT_QT:
            a("v_lshlrev_b32 v90, 5, v88")
            a("v_lshl_add_u32 v90, v89, 3, v90")
        if OPT_QT:
            a(f"v_add_u32 v{V_Q}, s10, v90")
        a("s_and_b32 s12, s3, 3")
        a("v_bfe_u32 v90, v1, 2, 2")
        a(f"v_mul_u32_u24 v90, {T.YP}, v90")
        a("v_and_b32 v91, 3, v1")
        a("v_lshl_add_u32 v90, v91, 3, v90")
        a(f"v_mul_u32_u24 v91, {T.YR}, v89")
        a("v_add_u32 v90, v90, v91")
        a(f"s_mul_i32 s14, s12, {4 * T.YR}")
        a(f"s_add_u32 s14, s14, {T.Y0}")
        a(f"v_add_u32 v{V_TR}, s14, v90")
        a("s_lshl_b32 s14, s12, 6")
        a("v_add_u32 v90, s14, v1")
        if not OPT_QT:
            a(f"v_mul_u32_u24 v{V_Q}, 1280, v90")
            a(f"v_add_u32 v{V_Q}, s11, v{V_Q}")
        a(f"v_mul_u32_u24 v{V_OUT}, 2560, v90")
        a("s_mul_i32 s14, s4, 1280")
        a("s_add_u32 s14, s14, s11")
        a(f"v_add_u32 v{V_OUT}, s14, v{V_OUT}")
    else:
        a("v_mul_u32_u24 v90, 72, v88")
        a("v_lshl_add_u32 v90, v89, 4, v90")
        a(f"v_add_u32 v{V_YW}, s14, v90")
        a("v_bfe_u32 v90, v1, 2, 2")
        a(f"v_mul_u32_u24 v90, {T.YP}, v90")
        a("v_and_b32 v91, 3, v1")
        a("v_lshl_add_u32 v90, v91, 3, v90")
        a("v_lshrrev_b32 v91, 1, v89")
        a("v_mul_u32_u24 v91, 72, v91")
        a("v_add_u32 v90, v90, v91")
        a("v_and_b32 v91, 1, v89")
        a("v_lshl_add_u32 v90, v91, 5, v90")
        a("s_mul_i32 s14, s3, 144")
        a(f"s_add_u32 s14, s14, {T.Y0}")
        a(f"v_add_u32 v{V_TR}, s14, v90")
        a("s_lshl_b32 s14, s3, 5")
        a("v_lshrrev_b32 v90, 1, v1")
        a("v_add_u32 v90, s14, v90")
        a("v_and_b32 v91, 1, v1")
        a("v_lshlrev_b32 v91, 4, v91")
        a("v_add_u32 v91, s11, v91")
        a(f"v_mul_u32_u24 v{V_Q}, 1280, v90")
        a(f"v_add_u32 v{V_Q}, v{V_Q}, v91")
        a(f"v_mul_u32_u24 v{V_OUT}, 2560, v90")
        a(f"v_add_u32 v{V_OUT}, v{V_OUT}, v91")
        a("s_mul_i32 s14, s4, 1280")
        a(f"v_add_u32 v{V_OUT}, s14, v{V_OUT}")
    a(f"v_mov_b32 v{V_T0}, s71")
    a(f"s_mov_b32 s50, {WS_KA}")
    a("s_mov_b32 s51, 0x00020000")
    a(f"s_mov_b32 s54, {640 * 4096}")
    a("s_mov_b32 s55, 0x00020000")
    a("s_waitcnt lgkmcnt(0)")
    stamp(a, 1, True)
    if DBGT:
        nd = a.newlabel("nd")
        a("s_cmp_lg_u32 s2, 0")
        a(f"s_cbranch_scc1 {nd}")
        dbg_stamp(a, 2, 512, 86, 87)
        a.label(nd)
    a(f"s_mov_b32 s48, s{P_WS}")
    a(f"s_and_b32 s49, s{P_WS + 1}, 0xffff")
    a(f"s_add_u32 s6, s{P_WS}, {WS_KA}")
    a(f"s_addc_u32 s7, s{P_WS + 1}, 0")
    a("s_cmp_eq_u32 s4, 1")
    a(f"s_cselect_b32 s6, s{P_SSK}, s6")
    a(f"s_cselect_b32 s7, s{P_SSK + 1}, s7")
    a("s_mov_b32 s52, s6")
    a("s_and_b32 s53, s7, 0xffff")

    def dma_one(job, kind, kk):
        if kind == "U":
            src, srd, dst = f"s_add_u32 s15, s13, {job * 32768}", "s[48:51]", f"s_add_u32 m0, s70, {job * 8 * T.UP}"
        elif kind == "E":
            src, srd, dst = f"s_add_u32 s15, s10, {job * 32768}", "s[52:55]", f"s_add_u32 m0, s71, {job * 8 * T.KP + 32}"
        else:
            src, srd, dst = f"s_add_u32 s15, s10, {job * 32768 + 2}", "s[52:55]", f"s_add_u32 m0, s71, {job * 8 * T.KP + T.PO + 32}"
        return [src, dst, "s_nop 0", f"buffer_load_dwordx4 v{V_L16}, {srd}, s15 offen offset:{1024 * kk} lds"]

    if not T.half:
        order = [("U", 3), ("E", 3), ("O", 3), ("E", 2), ("O", 2), ("E", 1), ("O", 1), ("U", 2), ("E", 0), ("O", 0), ("U", 1), ("U", 0)]
        nfirst = 7
    else:
        order = [("U", 1), ("E", 1), ("O", 1), ("E", 0), ("O", 0), ("U", 0)]
        nfirst = 5
    xs = a.newlabel("xdma")
    a("s_cmp_ge_u32 s3, 4")
    a(f"s_cbranch_scc1 {xs}")
    for kind, kk in order[:nfirst]:
        for ln in dma_one(0, kind, kk):
            a(ln)
    a.label(xs)
    stamp(a, 2, True)
    for j in range(J):
        a(f"s_add_u32 s14, s10, {j * 32768}")
        a(f"s_load_dword s{72 + j}, s[6:7], s14")
    a("s_lshl_b32 s11, s8, 1")
    a("s_and_b32 s11, s11, 0xfffffffc")
    for j in range(J):
        a(f"s_add_u32 s14, s11, {16 * j}")
        a(f"s_load_dword s{76 + j}, s[{P_SSD}:{P_SSD + 1}], s14")
    if OPT_QT:
        a(f"s_add_u32 s56, s{P_WS}, {WS_QT}")
        a(f"s_addc_u32 s57, s{P_WS + 1}, 0")
        a("s_and_b32 s57, s57, 0xffff")
    else:
        a(f"s_mov_b32 s56, s{P_Q}")
        a(f"s_and_b32 s57, s{P_Q + 1}, 0xffff")
    a("s_mov_b32 s59, 0x00020000")
    make_srd(a, 60, P_OUT, L * 2560)
    a("s_cmp_eq_u32 s4, 1")
    a(f"s_cselect_b32 s58, {640 * 4096}, 0")
    if OPT_QT:
        a("s_cselect_b32 s69, 0, 0x3f803f80")
    else:
        a("s_cselect_b32 s69, 0, 0x3f800000")
        a("s_cselect_b32 s67, 0, 0x3f80")
        a("v_mov_b32 v86, 0xffff")
        a("v_mov_b32 v87, 0xffff0000")
    a("s_cmp_ge_u32 s3, 4")
    a(f"s_cbranch_scc1 L_{T.name}_Y")
    emit_conv_stream(a, T, 0, order, nfirst, dma_one)
    a.label(f"L_{T.name}_Y")
    emit_conv_stream(a, T, 1, order, nfirst, dma_one)


def emit_conv_stream(a, T, G, order, nfirst, dma_one):
    J = T.jobs
    st = Stream(a)
    vm = []
    k0_ready = [False]

    def make_k0():
        st.ins("s_waitcnt lgkmcnt(0)")
        for t in st.q:
            st.done.add(t)
        st.q = []
        st.ins("s_and_b32 s14, s8, 1")
        st.ins("s_lshl_b32 s14, s14, 4")
        for j in range(J):
            st.ins(f"s_lshl_b32 s{72 + j}, s{72 + j}, 16")
            st.ins(f"s_lshr_b32 s{76 + j}, s{76 + j}, s14")
            st.ins(f"s_lshl_b32 s{76 + j}, s{76 + j}, 16")
        st.ins("s_cmp_eq_u32 s4, 1")
        for j in range(J):
            st.ins(f"s_cselect_b32 s{76 + j}, s{76 + j}, 0")
        for j in range(J):
            st.ins(f"v_mov_b32 v{V_K0 + j}, s{72 + j}")
            st.ins(f"v_add_f32 v{V_K0 + j}, s{76 + j}, v{V_K0 + j}")
            st.ins(f"v_cvt_pk_bf16_f32 v{V_K0 + j}, v{V_K0 + j}, v{V_K0 + j}")
        k0_ready[0] = True

    def patch(j):
        if not k0_ready[0]:
            make_k0()
        st.lds(f"ds_write_b16 v{V_T0}, v{V_K0 + j} offset:{j * 8 * T.KP + 32}", ("patch", j, 0))
        st.lds(f"ds_write_b16 v{V_T0}, v{V_K0 + j} offset:{j * 8 * T.KP + T.PO + 30}", ("patch", j, 1))

    tiles = T.tiles
    nlo, nhi = tiles[0], tiles[-1]

    def phys(j, cp):
        if not T.half:
            return cp % 5
        return cp if j == 0 else (cp + 1)

    mf = []
    seen = set()
    for j in range(J):
        for m in range(0, nhi + 1):
            ns = list(range(nhi, max(m, nlo) - 1, -1))
            if m == 0 and j == 0 and OPT_NOUT:
                pairs = [(r, n) for n in ns for r in range(8)]
            else:
                pairs = [(r, n) for r in range(8) for n in ns]
            for r, n in pairs:
                cp = n - m
                first = (j, n) not in seen
                seen.add((j, n))
                mf.append(dict(rd=j, m=m, r=r, n=n, cp=cp, c=8 * cp + r, aslot=8 * phys(j, cp) + r, bslot=r,
                               first=first, atag=("A", j, 8 * cp + r), btag=("B", j, m, r)))
    nM = len(mf)
    loads = []
    have = set()
    last_use_a, last_use_b = {}, {}
    prev_last_b = {}
    lastb_by_tag = {}
    for i, x in enumerate(mf):
        lastb_by_tag[x['btag']] = i
    slot_prev_tag = {}
    for i, x in enumerate(mf):
        if x['btag'] not in have:
            have.add(x['btag'])
            pt = slot_prev_tag.get(x['bslot'])
            loads.append(dict(tag=x['btag'], kind='B', need=i, free=(lastb_by_tag[pt] if pt else -1), x=x))
            slot_prev_tag[x['bslot']] = x['btag']
        if x['atag'] not in have:
            have.add(x['atag'])
            loads.append(dict(tag=x['atag'], kind='A', need=i, free=last_use_a.get(x['aslot'], -1), x=x))
        last_use_a[x['aslot']] = i
    first_idx = {}
    for i, x in enumerate(mf):
        first_idx.setdefault(x['rd'], i)

    uoff0 = 1536 if T.half else 3584

    def src_pieces(ld):
        x = ld['x']
        j = x['rd']
        if ld['kind'] == 'B':
            gamma = 8 * x['m'] - x['r']
            lo = uoff0 - 64 * gamma
            hi = lo + 528 + 16
            return {("dma", j, "U", k_) for k_ in range(T.nd) if lo < 1024 * (k_ + 1) and hi > 1024 * k_}
        c = x['c']
        lo = 64 * c - 32
        hi = 64 * c + 96
        out = set()
        for k_ in range(T.nd):
            if lo < 1024 * (k_ + 1) and hi > 1024 * k_:
                out |= {("dma", j, "E", k_), ("dma", j, "O", k_)}
        if c == 0:
            out.add(("patched", j))
        return out

    landed = set()

    def vwait(tags):
        idx = [i for i, t in enumerate(vm) if t in tags and t not in landed]
        if not idx:
            return
        last = max(idx)
        keep = len(vm) - 1 - last
        st.ins(f"s_waitcnt vmcnt({keep})")
        for t in vm[:last + 1]:
            landed.add(t)

    def ensure(ld):
        need = src_pieces(ld)
        j = ld['x']['rd']
        if ("patched", j) in need:
            need.discard(("patched", j))
            if ("patched", j) not in landed:
                vwait({("dma", j, "E", 0)})
                patch(j)
                landed.add(("patched", j))
        for t in need:
            assert t in vm, ("DMA piece not issued before use", t, ld['x'])
        vwait(need)

    def available(ld):
        for t in src_pieces(ld):
            if t[0] != "patched" and t not in vm:
                return False
        return True

    def emit_load(ld):
        x = ld['x']
        j = x['rd']
        ensure(ld)
        if ld['kind'] == 'B':
            gamma = 8 * x['m'] - x['r']
            off = uoff0 - 64 * gamma + j * 8 * T.UP
            d = V_B + 4 * x['bslot']
            st.lds(f"ds_read_b128 v[{d}:{d + 3}], v{V_U} offset:{off}", ld['tag'])
        else:
            c = x['c']
            base = V_KB + (c >> 4) + (2 * j if T.half else 0)
            o = 16 * (c & 15)
            d = 4 * x['aslot']
            st.lds(f"ds_read2_b32 a[{d}:{d + 1}], v{base} offset0:{o} offset1:{o + 1}", (ld['tag'], 0))
            st.lds(f"ds_read2_b32 a[{d + 2}:{d + 3}], v{base} offset0:{o + 2} offset1:{o + 3}", ld['tag'])

    aux = {}

    def add_aux(i, fn):
        aux.setdefault(min(i, nM), []).append(fn)

    last_of_tile = {}
    for i, x in enumerate(mf):
        last_of_tile[(x['rd'], x['n'])] = i
    mf_pos = {}

    def vmem(lines, tag):
        for ln in lines:
            st.ins(ln)
        vm.append(tag)

    fillers = []

    def epi1(j, n, urgent):
        def fn():
            i = last_of_tile[(j, n)]
            ab = V_ACC + 4 * (n - nlo)
            qb = V_QD + 2 * (4 * j + n - nlo)
            u = 84
            pre = [f"v_or_b32 v{qb}, s69, v{qb}", f"v_or_b32 v{qb + 1}, s69, v{qb + 1}",
                   f"v_lshlrev_b32 v{u}, 16, v{qb}", f"v_and_b32 v{u + 1}, 0xffff0000, v{qb}",
                   f"v_lshlrev_b32 v{u + 2}, 16, v{qb + 1}", f"v_and_b32 v{u + 3}, 0xffff0000, v{qb + 1}"]
            post = [f"v_mul_f32 v{u}, v{u}, v{ab}", f"v_mul_f32 v{u + 1}, v{u + 1}, v{ab + 1}",
                    f"v_mul_f32 v{u + 2}, v{u + 2}, v{ab + 2}", f"v_mul_f32 v{u + 3}, v{u + 3}, v{ab + 3}",
                    f"v_cvt_pk_bf16_f32 v{u}, v{u}, v{u + 1}", f"v_cvt_pk_bf16_f32 v{u + 1}, v{u + 2}, v{u + 3}"]
            vwait({("q", j, n)})
            for t_ in pre:
                st.ins(t_)
            st.pad_since(mf_pos[i], 8)
            for t_ in post:
                st.ins(t_)
            st.lds(f"ds_write_b64 v{V_YW}, v[{u}:{u + 1}] offset:{j * 8 * T.YP + 512 * (n - nlo)}", ("Y", j, n))
        return fn

    cur = [0]

    def epi2(j, n):
        def fn():
            while fillers:
                fillers.pop(0)[1]()
            st.need({("Y", j, n)})
            st.ins("s_barrier")
            if ((n - nlo) & 1) != G:
                return
            o = j * 8 * T.YP + 512 * (n - nlo)
            t = V_E
            st.lds(f"ds_read_b64_tr_b16 v[{t}:{t + 1}], v{V_TR} offset:{o}", ("T", j, n, 0))
            st.lds(f"ds_read_b64_tr_b16 v[{t + 2}:{t + 3}], v{V_TR} offset:{o + 4 * T.YP}", ("T", j, n, 1))
            rdy = cur[0] + 4

            def fin():
                st.need({("T", j, n, 0), ("T", j, n, 1)})
                vmem([f"s_mov_b32 s68, {n * 256 * 2560 + j * 16}",
                      f"buffer_store_dwordx4 v[{t}:{t + 3}], v{V_OUT}, s[60:63], s68 offen"], ("st", j, n))
            fillers.append((rdy, fin))
        return fn

    def gate_fillers(rdy, t, qb, waits):
        u = V_E + 4
        fillers.append((rdy, waits))
        seq = []
        for p in range(2):
            i0, i1 = 2 * p, 2 * p + 1
            seq += [f"v_and_or_b32 v{u}, v{qb + i0}, v86, s67",
                    f"v_and_or_b32 v{u + 1}, v{qb + i0}, v87, s69",
                    f"v_and_or_b32 v{u + 2}, v{qb + i1}, v86, s67",
                    f"v_and_or_b32 v{u + 3}, v{qb + i1}, v87, s69",
                    f"v_dot2_f32_bf16 v{u}, v{t + i0}, v{u}, 0",
                    f"v_dot2_f32_bf16 v{u + 1}, v{t + i0}, v{u + 1}, 0",
                    f"v_dot2_f32_bf16 v{u + 2}, v{t + i1}, v{u + 2}, 0",
                    f"v_dot2_f32_bf16 v{u + 3}, v{t + i1}, v{u + 3}, 0",
                    "s_nop 1",
                    f"v_cvt_pk_bf16_f32 v{t + i0}, v{u}, v{u + 1}",
                    f"v_cvt_pk_bf16_f32 v{t + i1}, v{u + 2}, v{u + 3}"]
        for txt in seq:
            fillers.append((rdy, (lambda txt: (lambda: st.ins(txt)))(txt)))

    def epi1_rows(j, n):
        def fn():
            i = last_of_tile[(j, n)]
            st.pad_since(mf_pos[i], 8)
            ab = V_ACC + 4 * (n - nlo)
            st.ins(f"v_cvt_pk_bf16_f32 v84, v{ab}, v{ab + 1}")
            st.ins(f"v_cvt_pk_bf16_f32 v85, v{ab + 2}, v{ab + 3}")
            if not T.merged:
                st.lds(f"ds_write_b64 v{V_YW}, v[84:85] offset:{j * 8 * T.YP + T.YT * (n - nlo)}", ("Y", j, n))
            else:
                o = 1152 * (n - nlo) + 2 * j
                st.lds(f"ds_write_b16 v{V_YW}, v84 offset:{o}", ("Y", j, n, 0))
                st.lds(f"ds_write_b16_d16_hi v{V_YW}, v84 offset:{o + 4}", ("Y", j, n, 1))
                st.lds(f"ds_write_b16 v{V_YW}, v85 offset:{o + 8}", ("Y", j, n, 2))
                st.lds(f"ds_write_b16_d16_hi v{V_YW}, v85 offset:{o + 12}", ("Y", j, n))
        return fn

    def epi2_rows(j, n):
        def fn():
            while fillers:
                fillers.pop(0)[1]()
            st.need({("Y", j, n)})
            st.ins("s_barrier")
            if not T.merged and ((n - nlo) & 1) != G:
                return
            t = V_E
            if not T.merged:
                o = j * 8 * T.YP + T.YT * (n - nlo)
                qtag = ("q", j, (n - nlo) >> 1)
                qb = V_QD + 4 * (2 * j + ((n - nlo) >> 1))
                soff = n * 256 * 2560 + j * 16
            else:
                o = 1152 * (n - nlo)
                qtag = ("q", 0, n - nlo)
                qb = V_QD + 4 * (n - nlo)
                soff = n * 256 * 2560
            st.lds(f"ds_read_b64_tr_b16 v[{t}:{t + 1}], v{V_TR} offset:{o}", ("T", j, n, 0))
            st.lds(f"ds_read_b64_tr_b16 v[{t + 2}:{t + 3}], v{V_TR} offset:{o + 4 * T.YP}", ("T", j, n, 1))
            rdy = cur[0] + 4

            def waits():
                vwait({qtag})
                st.need({("T", j, n, 0), ("T", j, n, 1)})
            gate_fillers(rdy, t, qb, waits)
            fillers.append((rdy, lambda: vmem([f"s_mov_b32 s68, {soff}",
                                               f"buffer_store_dwordx4 v[{t}:{t + 3}], v{V_OUT}, s[60:63], s68 offen"], ("st", j, n))))
        return fn

    for k_, (kind, kk) in enumerate(order[nfirst:]):
        add_aux(1 + 3 * k_, (lambda kind, kk: (lambda: vmem(dma_one(0, kind, kk), ("dma", 0, kind, kk))))(kind, kk))
    rest0 = len(order) - nfirst
    for j in range(1, J):
        start = first_idx[j - 1] + 12
        for k_, (kind, kk) in enumerate(order):
            add_aux(start + 5 * k_, (lambda j, kind, kk: (lambda: vmem(dma_one(j, kind, kk), ("dma", j, kind, kk))))(j, kind, kk))
    if OPT_QT:
        for j in range(J):
            for n in tiles:
                at = first_idx[j] + (2 + 3 * rest0 if j == 0 else -24) + 2 * (n - nlo)

                def mkq(j, n):
                    def fn():
                        r0 = V_QD + 2 * (4 * j + n - nlo)
                        vmem([f"s_mov_b32 s14, {n * 512 + j * 32768}",
                              f"buffer_load_dwordx2 v[{r0}:{r0 + 1}], v{V_Q}, s[56:59], s14 offen"], ("q", j, n))
                    return fn
                add_aux(at, mkq(j, n))

        for j in range(J):
            for n in tiles:
                i = last_of_tile[(j, n)]
                last_in_job = (n == nhi and j + 1 < J)
                add_aux(i + 1 + (0 if last_in_job else 2), epi1(j, n, last_in_job))
                add_aux(i + 1 + 8, epi2(j, n))

    else:
        if T.merged:
            qlist = [(0, k_, nlo + k_, 0) for k_ in range(4)]
        else:
            qlist = [(0, qi, nlo + 2 * qi + G, qi) for qi in range(2)]
        for k_, (tj, ti, tile, ri) in enumerate(qlist):
            at = first_idx[0] + 2 + 3 * rest0 + ((QSTART + QSTEP * k_) if not T.merged else (QSTART_M + QSTEP_M * k_))

            def mkq(tj, ti, tile, k_):
                def fn():
                    r0 = V_QD + 4 * k_
                    vmem([f"s_mov_b32 s14, {tile * 256 * 1280}",
                          f"buffer_load_dwordx4 v[{r0}:{r0 + 3}], v{V_Q}, s[56:59], s14 offen"], ("q", tj, ti))
                return fn
            add_aux(at, mkq(tj, ti, tile, k_))
        for j in range(J):
            for n in tiles:
                i = last_of_tile[(j, n)]
                last_in_job = (n == nhi and j + 1 < J)
                add_aux(i + 1 + (0 if last_in_job else 4), epi1_rows(j, n))
                if T.merged and j == 0:
                    continue
                add_aux(i + 1 + 9, epi2_rows(j, n))

    stamp(a, 4, True)
    qa = [ld for ld in loads if ld['kind'] == 'A']
    qb_ = [ld for ld in loads if ld['kind'] == 'B']
    issued = set()
    issue_at = {}
    for j in range(1, J):
        for k_, (kind, kk) in enumerate(order):
            issue_at[("dma", j, kind, kk)] = first_idx[j - 1] + 12 + 5 * k_
    for k_, (kind, kk) in enumerate(order):
        issue_at[("dma", 0, kind, kk)] = -60 if k_ < nfirst else 1 + 3 * (k_ - nfirst) - 20

    def hint(t, i):
        return t in issue_at and i - issue_at[t] > 40

    def next_free(q, i):
        for ld in q:
            if id(ld) in issued:
                continue
            if ld['free'] < i and available(ld):
                if all((t in landed or t[0] == "patched" or ld['need'] - i < 24 or hint(t, i)) for t in src_pieces(ld)):
                    return ld
        return None

    def issue_loads(i, budget):
        cnt = 0
        while cnt < budget:
            cb_ = next_free(qb_, i) if len(st.q) + 1 <= st.max_out else None
            ca_ = next_free(qa, i) if len(st.q) + 2 <= st.max_out else None
            cand = None
            if cb_ is not None and (ca_ is None or cb_['need'] <= ca_['need']):
                cand = cb_
            elif ca_ is not None:
                cand = ca_
            if cand is None:
                break
            emit_load(cand)
            issued.add(id(cand))
            cnt += 2 if cand['kind'] == 'A' else 1
        return cnt

    if G == 1:
        a("s_barrier")
        for kind, kk in order[:nfirst]:
            for ln in dma_one(0, kind, kk):
                a(ln)
    if G == 1 and OPT_CPF and OPT_PF:
        nocp = a.newlabel("nocp")
        a("s_cmp_lg_u32 s3, 7")
        a(f"s_cbranch_scc1 {nocp}")
        lab = a.newlabel("pc")
        a("s_getpc_b64 s[82:83]")
        a.label(lab)
        a("v_lshlrev_b32 v94, 7, v1")
        a(f"v_min_u32 v94, L_end_{T.name}-{lab}-4, v94")
        a("global_load_dword v95, v94, s[82:83]")
        a.label(nocp)
    for kind, kk in order[:nfirst]:
        vm.append(("dma", 0, kind, kk))
    first = True
    for i, x in enumerate(mf):
        cur[0] = i
        if G == 0 and i == 1:
            st.ins("s_barrier")
        if STAMP and STEPSTAMP < 0 and i == 64:
            stamp(a, 6, True)
        if STAMP and STEPSTAMP >= 0 and x['rd'] == STEPSTAMP and (i == 0 or mf[i - 1]['m'] != x['m'] or mf[i - 1]['rd'] != x['rd']):
            a(f"s_memtime s[{ST0 + 2 * x['m']}:{ST0 + 2 * x['m'] + 1}]")
        for fn in aux.get(i, []):
            fn()
        for q_ in (qb_, qa):
            for ld in q_:
                if ld['need'] <= i and id(ld) not in issued:
                    emit_load(ld)
                    issued.add(id(ld))
        if first:
            stamp(a, 5, True)
            first = False
        nl = issue_loads(i, 4 if x['m'] == 0 else 2)
        nf = 0
        while fillers and fillers[0][0] <= i and nf < (3 if nl < 2 else 2):
            fillers.pop(0)[1]()
            nf += 1
        st.need({x['atag'], x['btag']})
        ab = V_ACC + 4 * (x['n'] - nlo)
        src_c = "0" if x['first'] else f"v[{ab}:{ab + 3}]"
        bs = V_B + 4 * x['bslot']
        st.ins(f"v_mfma_f32_16x16x32_bf16 v[{ab}:{ab + 3}], a[{4 * x['aslot']}:{4 * x['aslot'] + 3}], v[{bs}:{bs + 3}], {src_c}")
        mf_pos[i] = st.n
    stamp(a, 7, True)
    cur[0] = nM
    for fn in aux.get(nM, []):
        fn()
    while fillers:
        fillers.pop(0)[1]()
    dbg_stamp(a, 3, 512, 86, 87)
    if STAMP:
        stamp_flush(a, 8, 1)
    if G == 1:
        a.label(f"L_end_{T.name}")
    a("s_endpgm")


def emit_conv(a):
    k = "conv_kernel"
    a.raw(f".globl {k}")
    a.raw(".p2align 8")
    a.raw(f".type {k},@function")
    a.label(k)
    a("s_cmp_ge_u32 s2, 240")
    a("s_cbranch_scc1 L_conv_exit")
    stamp(a, 0, True)
    load_kernargs(a)
    if not OPT_CPF:
        code_prefetch(a, "L_conv_exit", 94, 95)
    a("v_lshrrev_b32 v2, 6, v0")
    a("v_and_b32 v1, 63, v0")
    a("s_and_b32 s6, s2, 7")
    a("v_readfirstlane_b32 s3, v2")
    a("s_lshr_b32 s7, s2, 3")
    a("s_mul_i32 s5, s6, 10")
    a("s_cmp_ge_u32 s7, 20")
    a("s_cbranch_scc1 L_T2")
    a("s_cmp_ge_u32 s7, 10")
    a("s_cselect_b32 s4, 1, 0")
    a("s_mul_i32 s8, s4, 10")
    a("s_sub_u32 s7, s7, s8")
    a("s_add_u32 s5, s5, s7")
    emit_conv_body(a, T1)
    a.label("L_T2")
    a("s_sub_u32 s7, s7, 20")
    a("s_cmp_ge_u32 s7, 5")
    a("s_cselect_b32 s4, 1, 0")
    a("s_mul_i32 s8, s4, 5")
    a("s_sub_u32 s7, s7, s8")
    a("s_lshl_b32 s7, s7, 1")
    a("s_add_u32 s5, s5, s7")
    emit_conv_body(a, T2)
    a.label("L_conv_exit")
    a("s_endpgm")


def kd(name, vgpr, sgpr, accum):
    return f""".amdhsa_kernel {name}
  .amdhsa_next_free_vgpr {vgpr}
  .amdhsa_next_free_sgpr {sgpr}
  .amdhsa_accum_offset {accum}
  .amdhsa_group_segment_fixed_size 0
  .amdhsa_kernarg_size 128
  .amdhsa_user_sgpr_count 2
  .amdhsa_user_sgpr_kernarg_segment_ptr 1
  .amdhsa_system_sgpr_workgroup_id_x 1
.end_amdhsa_kernel
"""


HEADER = open("cdna_kernels/" + NAME + ".s.ref").read().split("; Override launch geometry")[0]


def build():
    a = Asm()
    a.raw(HEADER.rstrip("\n"))
    a.raw(f"; @launch kernel=prep_kernel grid=(256,1,1) block=(896,1,1) lds={K1_LDS}")
    a.raw(f"; @launch kernel=conv_kernel grid=(240,1,1) block=(512,1,1) lds={K2_LDS}")
    a.raw('.amdgcn_target "amdgcn-amd-amdhsa--gfx950"')
    a.raw(".text")
    emit_prep(a)
    emit_conv(a)
    a.raw('.section .rodata,"a"')
    a.raw(".p2align 6")
    a.raw(kd("prep_kernel", 128, 102 if (STAMP or DBGT) else 80, 128))
    a.raw(".p2align 6")
    a.raw(kd("conv_kernel", 256, 102 if (STAMP or DBGT) else 84, 96))
    return a.text()


if __name__ == "__main__":
    out = sys.argv[1] if len(sys.argv) > 1 else "cdna_kernels/" + NAME + ".s"
    open(out, "w").write(build())
    print("wrote", out)
```

```python
import sys

NAME = "concat_heads__ssm_conv_s4d__ssm_conv_h3__prompt"

L = 2048
D = 640
NM = 192
ROWB = 1280
TENS = L * ROWB

WS_UT = 0
WS_KA = 1280 * 4096
WS_QT = WS_KA + 640 * 4096
WS_END = WS_QT + 640 * 4096

P_U, P_LOGA, P_AIM, P_CR, P_CI, P_LDT, P_DSK, P_Q, P_K, P_V, P_SHK, P_SSK, P_SSD, P_OUT, P_DBG, P_WS = [16 + 2 * i for i in range(16)]


import os
STAMP = bool(int(os.environ.get("STAMP", "0")))
STEPSTAMP = int(os.environ.get("STEPSTAMP", "-1"))
OPT_PRIO = int(os.environ.get("OPT_PRIO", "0"))
OPT_YLATE = int(os.environ.get("OPT_YLATE", "1"))
EPI_T2 = int(os.environ.get("EPI_T2", "60"))
EPI_T2_STEP = int(os.environ.get("EPI_T2_STEP", "10"))
OPT_NOUT = int(os.environ.get("OPT_NOUT", "1"))
DBGT = int(os.environ.get("DBGT", "0"))
OPT_QT = int(os.environ.get("OPT_QT", "0"))
QSTART = int(os.environ.get("QSTART", "4"))
QSTEP = int(os.environ.get("QSTEP", "6"))
QSTART_M = int(os.environ.get("QSTART_M", "44"))
QSTEP_M = int(os.environ.get("QSTEP_M", "8"))
OPT_WB = int(os.environ.get("OPT_WB", "0"))
OPT_KFIRST = int(os.environ.get("OPT_KFIRST", "0"))
OPT_WB2 = int(os.environ.get("OPT_WB2", "0"))
OPT_OST = int(os.environ.get("OPT_OST", "0"))
OPT_NT = int(os.environ.get("OPT_NT", "3"))
OPT_MPF_WHAT = int(os.environ.get("OPT_MPF_WHAT", "3"))
OPT_SC1 = int(os.environ.get("OPT_SC1", "0"))
OPT_SKEW = int(os.environ.get("OPT_SKEW", "1"))
OPT_CPF = int(os.environ.get("OPT_CPF", "1"))
OPT_MPF = int(os.environ.get("OPT_MPF", "2"))
OPT_XMAP = int(os.environ.get("OPT_XMAP", "1"))
OPT_SCOUT = int(os.environ.get("OPT_SCOUT", "0"))
KGREP = int(os.environ.get("KGREP", "0"))
NOKGEN = int(os.environ.get("NOKGEN", "0"))
OPT_PF = int(os.environ.get("OPT_PF", "1"))
OPT_RBM = int(os.environ.get("OPT_RBM", "0"))
OPT_LATE = int(os.environ.get("OPT_LATE", "0"))


def code_prefetch(a, endlabel, vtmp, vdst):
    if not OPT_PF:
        return
    lab = a.newlabel("pc")
    a("s_getpc_b64 s[10:11]")
    a.label(lab)
    a(f"v_lshlrev_b32 v{vtmp}, 7, v0")
    a(f"v_min_u32 v{vtmp}, {endlabel}-{lab}-4, v{vtmp}")
    a(f"global_load_dword v{vdst}, v{vtmp}, s[10:11]")


WS_STAMP = 16 << 20
ST0 = 84


def stamp(a, i, k2=False):
    if STAMP and not (k2 and STEPSTAMP >= 0):
        a(f"s_memrealtime s[{ST0 + 2 * i}:{ST0 + 2 * i + 1}]")


def stamp_flush(a, n, kern):
    if not STAMP:
        return
    a("s_waitcnt lgkmcnt(0)")
    make_srd(a, 76, P_WS, WS_STAMP + (4 << 20))
    a("s_lshl_b32 s80, s2, 4")
    a("s_add_u32 s80, s80, s3")
    a("s_lshl_b32 s80, s80, 5")
    a(f"s_add_u32 s80, s80, {WS_STAMP + kern * (1 << 20)}")
    a("s_mov_b64 exec, 1")
    a("v_mov_b32 v250, s80" if False else "v_mov_b32 v9, s80")
    for i in range(n):
        a(f"v_mov_b32 v8, s{ST0 + 2 * i}")
        a(f"buffer_store_dword v8, v9, s[76:79], 0 offen offset:{4 * i}")
    a("s_mov_b64 exec, -1")


SC1 = {0: "", 1: " sc1", 2: " nt", 3: " sc0", 4: " sc0 nt"}[OPT_SC1]


def dbg_stamp(a, slot, back, vA=60, vB=61):
    if not DBGT:
        return
    a("s_memrealtime s[90:91]")
    a("s_waitcnt lgkmcnt(0)")
    a(f"s_sub_u32 s92, s{P_DBG}, {back}")
    a(f"s_subb_u32 s93, s{P_DBG + 1}, 0")
    a(f"v_mov_b32 v{vA}, {4 * slot}")
    a(f"v_mov_b32 v{vB}, s90")
    a("s_mov_b64 s[94:95], exec")
    a("s_mov_b64 exec, 1")
    a(f"global_atomic_umax v{vA}, v{vB}, s[92:93]")
    a("s_mov_b64 exec, s[94:95]")


OST = {0: "", 1: " sc1", 2: " nt", 3: " sc0 sc1", 4: " sc1 nt"}[OPT_OST]


NT1 = " nt" if OPT_NT & 1 else ""
NT2 = " nt" if OPT_NT & 2 else ""


class Asm:
    def __init__(self):
        self.lines = []
        self.nlab = 0

    def __call__(self, s):
        s = s.replace(" lds nt", " nt lds")
        self.lines.append("    " + s)

    def raw(self, s):
        self.lines.append(s)

    def label(self, s):
        self.lines.append(s + ":")

    def c(self, s):
        self.lines.append("    ; " + s)

    def newlabel(self, base):
        self.nlab += 1
        return f"L_{base}_{self.nlab}"

    def text(self):
        return "\n".join(self.lines) + "\n"


def vr(i, n=1):
    return f"v{i}" if n == 1 else f"v[{i}:{i + n - 1}]"


def ar(i, n=1):
    return f"a{i}" if n == 1 else f"a[{i}:{i + n - 1}]"


def sr(i, n=1):
    return f"s{i}" if n == 1 else f"s[{i}:{i + n - 1}]"


def make_srd(a, dst, ptr, nbytes):
    a(f"s_mov_b32 s{dst}, s{ptr}")
    a(f"s_and_b32 s{dst + 1}, s{ptr + 1}, 0xffff")
    a(f"s_mov_b32 s{dst + 2}, {nbytes}")
    a(f"s_mov_b32 s{dst + 3}, 0x00020000")


def load_kernargs(a):
    a("s_load_dwordx16 s[16:31], s[0:1], 0")
    a("s_load_dwordx16 s[32:47], s[0:1], 64")


TW_RAWK = 0
TW_RAWV = 12288
TW_RAWU = TW_RAWV + 10240
TW_RAWQ = TW_RAWU + 10240
TW_STG = TW_RAWQ + (10240 if OPT_QT else 0)
KG_OFF = TW_STG + 5 * 5120
KG_CNT = KG_OFF + 9 * 9216
K1_LDS = KG_CNT + 64


def lds_signal(a, addr_v, one_v):
    a("s_mov_b64 exec, 1")
    a(f"ds_add_u32 v{addr_v}, v{one_v}")
    a("s_mov_b64 exec, -1")


def lds_wait_count(a, addr_v, tmp_v, tmp_s, count, name):
    spin = a.newlabel(name)
    a.label(spin)
    a(f"ds_read_b32 v{tmp_v}, v{addr_v}")
    a("s_waitcnt lgkmcnt(0)")
    a(f"v_readfirstlane_b32 s{tmp_s}, v{tmp_v}")
    a(f"s_cmp_lt_u32 s{tmp_s}, {count}")
    a(f"s_cbranch_scc1 {spin}")


def emit_mpf(a):
    nopf = a.newlabel("nopf")
    if OPT_QT:
        a("s_cmp_ge_u32 s3, 2")
        a(f"s_cbranch_scc1 {nopf}")
        a(f"s_mov_b32 s68, s{P_SSK}")
        a(f"s_mov_b32 s69, s{P_SSK + 1}")
    else:
        a("s_cmp_ge_u32 s3, 4")
        a(f"s_cbranch_scc1 {nopf}")
        a("s_cmp_ge_u32 s3, 2")
        a(f"s_cselect_b32 s68, s{P_Q}, s{P_SSK}")
        a(f"s_cselect_b32 s69, s{P_Q + 1}, s{P_SSK + 1}")
    a("s_and_b32 s69, s69, 0xffff")
    a(f"s_mov_b32 s70, {TENS}")
    a("s_mov_b32 s71, 0x00020000")
    a("s_mul_i32 s15, s2, 10240")
    a("s_and_b32 s14, s3, 1")
    a("s_lshl_b32 s14, s14, 13")
    a("s_add_u32 s15, s15, s14")
    a("v_lshlrev_b32 v39, 7, v2")
    a("v_add_u32 v39, s15, v39")
    a("s_and_b32 s14, s3, 1")
    a("s_cmp_eq_u32 s14, 1")
    a("s_cselect_b32 exec_lo, 0xffff, -1")
    a("s_cselect_b32 exec_hi, 0, -1")
    a("buffer_load_dword v45, v39, s[68:71], 0 offen")
    a("s_mov_b64 exec, -1")
    a.label(nopf)
    if OPT_CPF:
        nocp = a.newlabel("nocp")
        a("s_cmp_lg_u32 s3, 4")
        a(f"s_cbranch_scc1 {nocp}")
        a("s_cmp_ge_u32 s2, 8")
        a(f"s_cbranch_scc1 {nocp}")
        lab = a.newlabel("pc")
        a("s_getpc_b64 s[68:69]")
        a.label(lab)
        a("v_lshlrev_b32 v39, 7, v2")
        a(f"v_add_u32 v39, conv_kernel-{lab}, v39")
        for k_ in range(3):
            a(f"v_min_u32 v46, L_conv_exit-{lab}, v39")
            a("global_load_dword v45, v46, s[68:69]")
            a("v_add_u32 v39, 8192, v39")
        a.label(nocp)


def emit_mpf_kgen(a):
    nopf = a.newlabel("nopf")
    what = OPT_MPF_WHAT if OPT_MPF == 2 else 0
    if what == 0:
        a(f"s_branch {nopf}")
    a("s_cmp_lg_u32 s4, 1")
    a(f"s_cbranch_scc1 {nopf}")
    if what == 3:
        a("s_cmp_ge_u32 s67, 2")
        a(f"s_cbranch_scc1 {nopf}")
    else:
        a(f"s_cmp_lg_u32 s67, {0 if what == 1 else 1}")
        a(f"s_cbranch_scc1 {nopf}")
    a("s_cmp_eq_u32 s67, 1")
    a(f"s_cselect_b32 s68, s{P_Q}, s{P_SSK}")
    a(f"s_cselect_b32 s69, s{P_Q + 1}, s{P_SSK + 1}")
    a("s_and_b32 s69, s69, 0xffff")
    a(f"s_mov_b32 s70, {TENS}")
    a("s_mov_b32 s71, 0x00020000")
    a("s_mul_i32 s15, s2, 10240")
    a("v_lshlrev_b32 v60, 7, v2")
    a("v_add_u32 v60, s15, v60")
    a("buffer_load_dword v56, v60, s[68:71], 0 offen")
    a("s_mov_b32 exec_lo, 0xffff")
    a("s_mov_b32 exec_hi, 0")
    a("v_add_u32 v60, 8192, v60")
    a("buffer_load_dword v57, v60, s[68:71], 0 offen")
    a("s_mov_b64 exec, -1")
    a.label(nopf)
    if OPT_CPF:
        nocp = a.newlabel("nocp")
        a("s_cmp_lg_u32 s4, 2")
        a(f"s_cbranch_scc1 {nocp}")
        a("s_cmp_lg_u32 s67, 0")
        a(f"s_cbranch_scc1 {nocp}")
        a("s_cmp_ge_u32 s2, 8")
        a(f"s_cbranch_scc1 {nocp}")
        lab = a.newlabel("pc")
        a("s_getpc_b64 s[68:69]")
        a.label(lab)
        a("v_lshlrev_b32 v60, 7, v2")
        a(f"v_add_u32 v60, conv_kernel-{lab}, v60")
        for k_ in range(3):
            a(f"v_min_u32 v61, L_conv_exit-{lab}, v60")
            a(f"global_load_dword v{57 + k_}, v61, s[68:69]")
            a("v_add_u32 v60, 8192, v60")
        a.label(nocp)


def emit_tilewave(a):
    a.c("---- tile waves: workgroup tile = 32 rows x 160 channels of u, k, v ; wave w owns 32 channels ----")
    if OPT_XMAP:
        a("s_lshr_b32 s7, s2, 5")
        a("s_lshl_b32 s7, s7, 3")
        a("s_and_b32 s8, s2, 7")
        a("s_add_u32 s8, s8, s7")
        a("s_bfe_u32 s7, s2, 0x20003")
    else:
        a("s_lshr_b32 s8, s2, 2")
        a("s_and_b32 s7, s2, 3")
    a("s_mul_i32 s9, s8, 40960")
    a("s_mul_i32 s10, s7, 320")
    a("s_add_u32 s9, s9, s10")
    a("s_lshl_b32 s11, s3, 6")
    a("s_add_u32 s10, s10, s11")
    a("s_lshl_b32 s12, s3, 6")
    a("v_add_u32 v3, s12, v2")
    a("v_mul_u32_u24 v4, 52429, v3")
    a("v_lshrrev_b32 v4, 20, v4")
    a("v_mul_u32_u24 v5, 20, v4")
    a("v_sub_u32 v5, v3, v5")
    a("v_mul_u32_u24 v6, 1280, v4")
    a("v_lshl_add_u32 v6, v5, 4, v6")
    a("v_add_u32 v5, s9, v6")
    a("v_add_u32 v6, 20480, v5")
    a("v_subrev_u32 v7, 5120, v5")
    a("s_lshl_b32 s12, s3, 10")
    a("s_waitcnt lgkmcnt(0)")
    stamp(a, 1)
    if DBGT:
        nd = a.newlabel("nd")
        a("s_cmp_lg_u32 s2, 0")
        a(f"s_cbranch_scc1 {nd}")
        dbg_stamp(a, 0, 0, 60, 61)
        a.label(nd)
    make_srd(a, 48, P_U, TENS)
    make_srd(a, 52, P_K, TENS)
    make_srd(a, 56, P_V, TENS)
    make_srd(a, 60, P_SHK, 640 * 8)
    if OPT_QT:
        make_srd(a, 72, P_Q, TENS)
    a("v_bfe_u32 v8, v2, 4, 1")
    a("v_and_b32 v10, 15, v2")
    a("v_lshl_add_u32 v11, v8, 4, v10")
    a("s_lshl_b32 s13, s10, 2")
    a("v_lshl_add_u32 v12, v11, 3, s13")
    a("s_barrier")
    a("buffer_load_dwordx2 v[40:41], v12, s[60:63], 0 offen")
    a(f"s_add_u32 m0, s12, {TW_RAWK + 1280}")
    a("s_nop 0")
    a("buffer_load_dwordx4 v5, s[52:55], 0 offen lds" + NT1)
    a(f"s_add_u32 m0, s12, {TW_RAWK + 1280 + 5120}")
    a("s_nop 0")
    a("buffer_load_dwordx4 v6, s[52:55], 0 offen lds" + NT1)
    nohalo = a.newlabel("nohalo")
    a("s_cmp_gt_u32 s3, 1")
    a(f"s_cbranch_scc1 {nohalo}")
    a("s_cmp_eq_u32 s3, 0")
    a("s_cselect_b32 exec_hi, -1, 0")
    a("s_cselect_b32 exec_lo, -1, 0xffff")
    a(f"s_add_u32 m0, s12, {TW_RAWK}")
    a("s_nop 0")
    a("buffer_load_dwordx4 v7, s[52:55], 0 offen lds" + NT1)
    a("s_mov_b64 exec, -1")
    a.label(nohalo)
    for srd, base in (((56, TW_RAWV), (48, TW_RAWU), (72, TW_RAWQ)) if OPT_QT else ((56, TW_RAWV), (48, TW_RAWU))):
        a(f"s_add_u32 m0, s12, {base}")
        a("s_nop 0")
        a(f"buffer_load_dwordx4 v5, s[{srd}:{srd + 3}], 0 offen lds" + NT1)
        a(f"s_add_u32 m0, s12, {base + 5120}")
        a("s_nop 0")
        a(f"buffer_load_dwordx4 v6, s[{srd}:{srd + 3}], 0 offen lds" + NT1)
    stamp(a, 2)
    a("v_lshrrev_b32 v3, 2, v2")
    a("v_and_b32 v4, 3, v2")
    a("v_bfe_u32 v8, v2, 4, 1")
    a("v_lshrrev_b32 v9, 5, v2")
    a("v_and_b32 v10, 15, v2")
    a("v_lshl_add_u32 v11, v8, 4, v10")
    make_srd(a, 64, P_WS, WS_END)
    a("v_and_b32 v13, 3, v3")
    a("v_sub_u32 v13, 3, v13")
    a("v_lshl_add_u32 v13, v9, 2, v13")
    a("v_mul_u32_u24 v13, 320, v13")
    a("v_lshl_add_u32 v13, v8, 5, v13")
    a("v_lshl_add_u32 v13, v4, 3, v13")
    a("v_add_u32 v13, s11, v13")
    a("s_mul_i32 s12, s3, 5120")
    a(f"s_add_u32 s12, s12, {TW_STG}")
    a("v_mul_u32_u24 v14, 80, v11")
    a("v_lshlrev_b32 v15, 3, v9")
    a("v_sub_u32 v14, v14, v15")
    a("s_add_u32 s13, s12, 8")
    a("v_add_u32 v14, s13, v14")
    a("v_mul_u32_u24 v15, 80, v3")
    a("v_lshl_add_u32 v15, v4, 4, v15")
    a("v_add_u32 v15, s12, v15")
    a("s_lshl_b32 s13, s10, 11")
    a("s_lshl_b32 s14, s8, 6")
    a("s_sub_u32 s13, s13, s14")
    a("s_add_u32 s13, s13, 4032")
    a("v_lshlrev_b32 v16, 12, v3")
    a("v_lshl_add_u32 v16, v4, 4, v16")
    a("v_add_u32 v16, s13, v16")
    a(f"v_mov_b32 v36, {KG_CNT + 12}")
    a("v_mov_b32 v37, 1")
    if OPT_SCOUT:
        a("s_mov_b32 s70, 0")
        a("s_mov_b64 exec, 0")
        for w_, nm in enumerate(("K0", "K1", "K2", "K3", "K4")):
            a(f"s_cmp_eq_u32 s3, {w_}")
            a(f"s_cbranch_scc1 L_sc_{nm}")
        a.label("L_scout_ret")
        a("s_add_u32 s70, s70, 1")
        a("s_cmp_eq_u32 s70, 1")
        a("s_cbranch_scc0 L_scout_p2")
        a("s_cmp_eq_u32 s3, 0")
        a("s_cbranch_scc1 L_sc_F0")
        a("s_cmp_eq_u32 s3, 1")
        a("s_cbranch_scc1 L_sc_F1")
        a("s_add_u32 s70, s70, 1")
        a.label("L_scout_p2")
        a("s_cmp_eq_u32 s70, 2")
        a("s_cbranch_scc1 L_tproc")
        a("s_mov_b64 exec, -1")
    a("s_setprio 2")
    a("s_waitcnt vmcnt(2)" if OPT_QT else "s_waitcnt vmcnt(0)")
    lds_signal(a, 36, 37)
    stamp(a, 3)
    if OPT_MPF == 1:
        emit_mpf(a)
    a("v_alignbit_b32 v42, v41, v40, 16")
    a("v_lshlrev_b32 v43, 16, v40")
    a("v_lshrrev_b32 v44, 16, v41")
    lds_wait_count(a, 36, 38, 14, 5, "tile_spin")
    a.label("L_tproc")
    for j in range(4):
        a(f"ds_read_b64_tr_b16 v[{18 + 2 * j}:{19 + 2 * j}], v13 offset:{TW_RAWK + 1280 + 2560 * j}")
        a(f"ds_read_b64_tr_b16 v[{26 + 2 * j}:{27 + 2 * j}], v13 offset:{TW_RAWK + 2560 * j}")
        a(f"ds_read_b64_tr_b16 v[{46 + 2 * j}:{47 + 2 * j}], v13 offset:{TW_RAWV + 2560 * j}")
    for j in range(3):
        a(f"ds_read_b64_tr_b16 v[{54 + 2 * j}:{55 + 2 * j}], v13 offset:{TW_RAWU + 2560 * j}")
    for j in range(4):
        kc, kp, vv = 18 + 2 * j, 26 + 2 * j, 46 + 2 * j
        t = 64 + 10 * (j & 1)
        a(f"s_waitcnt lgkmcnt({12 - 3 * j})")
        if j == 0:
            a(f"ds_read_b64_tr_b16 v[60:61], v13 offset:{TW_RAWU + 2560 * 3}")
        a(f"v_dot2_f32_bf16 v{t + 0}, v{kc}, v40, 0")
        a(f"v_dot2_f32_bf16 v{t + 1}, v{kc}, v43, 0")
        a(f"v_dot2_f32_bf16 v{t + 2}, v{kc + 1}, v40, 0")
        a(f"v_dot2_f32_bf16 v{t + 3}, v{kc + 1}, v43, 0")
        a(f"v_dot2_f32_bf16 v{t + 0}, v{kc + 1}, v41, v{t + 0}")
        a(f"v_dot2_f32_bf16 v{t + 1}, v{kc + 1}, v42, v{t + 1}")
        a(f"v_dot2_f32_bf16 v{t + 2}, v{kp}, v41, v{t + 2}")
        a(f"v_dot2_f32_bf16 v{t + 3}, v{kp}, v42, v{t + 3}")
        a(f"v_dot2_f32_bf16 v{t + 1}, v{kp}, v44, v{t + 1}")
        a(f"v_dot2_f32_bf16 v{t + 3}, v{kp + 1}, v44, v{t + 3}")
        a(f"v_lshlrev_b32 v{t + 4}, 16, v{vv}")
        a(f"v_and_b32 v{t + 5}, 0xffff0000, v{vv}")
        a(f"v_lshlrev_b32 v{t + 6}, 16, v{vv + 1}")
        a(f"v_and_b32 v{t + 7}, 0xffff0000, v{vv + 1}")
        a(f"v_mul_f32 v{t + 0}, v{t + 0}, v{t + 4}")
        a(f"v_mul_f32 v{t + 1}, v{t + 1}, v{t + 5}")
        a(f"v_mul_f32 v{t + 2}, v{t + 2}, v{t + 6}")
        a(f"v_mul_f32 v{t + 3}, v{t + 3}, v{t + 7}")
        a(f"v_cvt_pk_bf16_f32 v{t + 8}, v{t + 0}, v{t + 1}")
        a(f"v_cvt_pk_bf16_f32 v{t + 9}, v{t + 2}, v{t + 3}")
        a(f"ds_write_b64 v14, v[{t + 8}:{t + 9}] offset:{2560 + 16 * (3 - j)}")
    a("s_waitcnt lgkmcnt(4)")
    for j in range(4):
        a(f"ds_write_b64 v14, v[{54 + 2 * j}:{55 + 2 * j}] offset:{16 * (3 - j)}")
    a("s_waitcnt lgkmcnt(0)")
    for i in range(2):
        a(f"ds_read_b128 v[{18 + 4 * i}:{21 + 4 * i}], v15 offset:{2560 + 1280 * i}")
    for i in range(2):
        a(f"ds_read_b128 v[{26 + 4 * i}:{29 + 4 * i}], v15 offset:{1280 * i}")
    a(f"v_add_u32 v17, {640 * 4096}, v16")
    a("v_add_u32 v34, 65536, v17")
    a("v_add_u32 v35, 65536, v16")
    scout(a, None)
    a("s_waitcnt lgkmcnt(3)")
    a("buffer_store_dwordx4 v[18:21], v17, s[64:67], 0 offen" + SC1)
    a("s_waitcnt lgkmcnt(2)")
    a("buffer_store_dwordx4 v[22:25], v34, s[64:67], 0 offen" + SC1)
    a("s_waitcnt lgkmcnt(1)")
    a("buffer_store_dwordx4 v[26:29], v16, s[64:67], 0 offen" + SC1)
    a("s_waitcnt lgkmcnt(0)")
    a("buffer_store_dwordx4 v[30:33], v35, s[64:67], 0 offen" + SC1)
    if OPT_QT:
        a("s_waitcnt vmcnt(4)")
        a(f"v_mov_b32 v36, {KG_CNT + 16}")
        lds_signal(a, 36, 37)
        lds_wait_count(a, 36, 38, 14, 5, "tileq_spin")
        a("v_and_b32 v46, 3, v3")
        a("v_lshlrev_b32 v47, 1, v46")
        a("v_subrev_u32 v47, 3, v47")
        a("v_mul_i32_i24 v47, 320, v47")
        a("v_add_u32 v47, v13, v47")
        for j in range(4):
            a(f"ds_read_b64_tr_b16 v[{54 + 2 * j}:{55 + 2 * j}], v47 offset:{TW_RAWQ + 2560 * j}")
        a("v_lshlrev_b32 v48, 4, v9")
        a("v_add_u32 v48, v14, v48")
        a("v_subrev_u32 v48, 8, v48")
        a("s_lshl_b32 s14, s8, 7")
        a(f"s_add_u32 s14, s14, {WS_QT - 4032}")
        a("v_add_u32 v49, s14, v16")
        a("v_add_u32 v50, 65536, v49")
        a("s_waitcnt lgkmcnt(0)")
        for j in range(4):
            a(f"ds_write_b64 v48, v[{54 + 2 * j}:{55 + 2 * j}] offset:{16 * j}")
        a("s_waitcnt lgkmcnt(0)")
        for i in range(2):
            a(f"ds_read_b128 v[{64 + 4 * i}:{67 + 4 * i}], v15 offset:{1280 * i}")
        a("s_waitcnt lgkmcnt(1)")
        a("buffer_store_dwordx4 v[64:67], v49, s[64:67], 0 offen" + SC1)
        a("s_waitcnt lgkmcnt(0)")
        a("buffer_store_dwordx4 v[68:71], v50, s[64:67], 0 offen" + SC1)
    if OPT_WB:
        nw = a.newlabel("nowb")
        a("s_cmp_lg_u32 s3, 0")
        a(f"s_cbranch_scc1 {nw}")
        a("s_lshr_b32 s14, s2, 3")
        a(f"s_cmp_lg_u32 s14, {OPT_WB - 1}")
        a(f"s_cbranch_scc1 {nw}")
        a("s_waitcnt vmcnt(0)")
        a("buffer_wbl2 sc1")
        a.label(nw)
    if STAMP:
        stamp(a, 4)
        a("s_waitcnt vmcnt(0)")
        stamp(a, 5)
        stamp_flush(a, 6, 0)
    a("s_endpgm")


LOG2E = 0x3fb8aa3b
INV2PI = 0x3e22f983


def cmul(a, d, x, y, t):
    a(f"v_pk_mul_f32 v[{t}:{t + 1}], v[{x}:{x + 1}], v[{y}:{y + 1}] op_sel:[0,0] op_sel_hi:[0,1]")
    a(f"v_pk_fma_f32 v[{d}:{d + 1}], v[{x}:{x + 1}], v[{y}:{y + 1}], v[{t}:{t + 1}] op_sel:[1,1,0] op_sel_hi:[1,0,1] neg_lo:[0,1,0]")


KG_BUF = 4608
KG_WAVE = 2 * KG_BUF


def scout(a, entry):
    if OPT_SCOUT:
        a("s_cbranch_execz L_scout_ret")
        if entry:
            a.label("L_sc_" + entry)


def scout_entry(a, entry):
    if OPT_SCOUT:
        a.label("L_sc_" + entry)


def emit_kgen_issue(a):
    a.c("---- kgen waves: issue parameter loads as early as possible ----")
    a("s_sub_u32 s6, s3, 5")
    a("s_mul_i32 s7, s6, 43")
    a("s_lshr_b32 s7, s7, 7")
    a("s_mov_b32 s67, s7")
    a("s_mul_i32 s4, s7, 3")
    a("s_sub_u32 s4, s6, s4")
    a("s_lshr_b32 s5, s2, 1")
    a("s_mul_i32 s5, s5, 5")
    a("s_and_b32 s8, s2, 1")
    a("s_mul_i32 s9, s8, 3")
    a("s_add_u32 s5, s5, s9")
    a("s_add_u32 s5, s5, s7")
    a("s_lshr_b32 s9, s7, 1")
    a("s_and_b32 s9, s9, s8")
    a("s_cmp_eq_u32 s9, 1")
    a("s_cbranch_scc1 L_prep_exit")
    a("s_mul_i32 s9, s5, 384")
    a("s_lshl_b32 s7, s4, 7")
    a("s_add_u32 s9, s9, s7")
    a("v_lshl_add_u32 v3, v2, 1, s9")
    for r in range(10, 14):
        a(f"v_mov_b32 v{r}, 0")
    a("s_lshl_b32 s7, s5, 1")
    a("s_and_b32 s7, s7, 0xfffffffc")
    a("s_mov_b32 s50, 245760")
    a("s_mov_b32 s51, 0x00020000")
    a("s_mov_b32 s54, 245760")
    a("s_mov_b32 s55, 0x00020000")
    a("s_mov_b32 s58, 245760")
    a("s_mov_b32 s59, 0x00020000")
    a("s_mov_b32 s62, 245760")
    a("s_mov_b32 s63, 0x00020000")
    a("v_lshlrev_b32 v4, 2, v2")
    a(f"v_add_u32 v4, {KG_CNT}, v4")
    a("v_mov_b32 v5, 0")
    a("s_mov_b64 exec, 31")
    a("ds_write_b32 v4, v5")
    a("s_mov_b64 exec, -1")
    a("s_waitcnt lgkmcnt(0)")
    stamp(a, 1)
    for srd, p, dst in ((48, P_LOGA, 10), (52, P_AIM, 11), (56, P_CR, 12), (60, P_CI, 13)):
        a(f"s_mov_b32 s{srd}, s{p}")
        a(f"s_and_b32 s{srd + 1}, s{p + 1}, 0xffff")
        a(f"buffer_load_short_d16_hi v{dst}, v3, s[{srd}:{srd + 3}], 0 offen" + NT2)
    a("s_barrier")
    a(f"s_load_dword s64, s[{P_LDT}:{P_LDT + 1}], s7")
    a(f"s_load_dword s65, s[{P_DSK}:{P_DSK + 1}], s7")
    if KGREP:
        a(f"s_mov_b32 s68, {KGREP}")
    a("s_branch L_kgen")


def emit_kgen(a):
    a.c("---- S4D kernel generation: 64 modes per wave ----")
    a(f"s_mul_i32 s8, s6, {KG_WAVE}")
    a(f"s_add_u32 s8, s8, {KG_OFF}")
    make_srd(a, 72, P_WS, WS_END)
    a("s_mov_b32 m0, s8")
    a("v_and_b32 v5, 15, v2")
    a("v_lshrrev_b32 v6, 4, v2")
    a("v_mul_u32_u24 v7, 288, v5")
    a("v_lshl_add_u32 v7, v6, 4, v7")
    a("v_add_u32 v7, s8, v7")
    a("v_lshlrev_b32 v8, 4, v2")
    a("v_add_u32 v9, s8, v8")
    a("v_lshlrev_b32 v60, 4, v5")
    a("v_add_u32 v60, s8, v60")
    a("v_and_b32 v61, 1, v6")
    a("v_lshrrev_b32 v62, 1, v6")
    a("v_lshl_add_u32 v56, v61, 3, v60")
    a("v_lshl_add_u32 v56, v62, 8, v56")
    a("v_lshl_add_u32 v57, v6, 8, v60")
    a("v_add_u32 v57, 512, v57")
    a("v_lshl_add_u32 v58, v6, 9, v60")
    a("v_cmp_gt_u32 vcc, 2, v6")
    a("v_mov_b32 v61, 8")
    a("v_mov_b32 v62, 4")
    a("v_cndmask_b32 v57, v58, v57, vcc")
    a("v_cndmask_b32 v61, v61, v62, vcc")
    a("v_add_u32 v58, v57, v61")
    a("v_mov_b32 v61, 256")
    a("v_mov_b32 v62, 8")
    a("v_cndmask_b32 v61, v61, v62, vcc")
    a("v_add_u32 v59, v57, v61")
    a("v_mov_b32 v61, 264")
    a("v_mov_b32 v62, 12")
    a("v_cndmask_b32 v61, v61, v62, vcc")
    a("v_add_u32 v124, v57, v61")
    a("v_lshl_add_u32 v61, v6, 10, v60")
    a("v_add_u32 v61, 2048, v61")
    a("v_lshlrev_b32 v62, 1, v2")
    a("v_add_u32 v62, s8, v62")
    a("v_add_u32 v62, 5120, v62")
    a("v_cndmask_b32 v126, v62, v61, vcc")
    a("v_cmp_gt_u32 vcc, 3, v6")
    a("s_nop 1")
    a("v_cndmask_b32 v125, v62, v61, vcc")
    a("v_and_b32 v60, 1, v2")
    a("v_cmp_eq_u32 vcc, 1, v60")
    a("v_mov_b32 v61, 0x05040100")
    a("v_mov_b32 v62, 0x05040504")
    a("v_cndmask_b32 v127, v61, v62, vcc")
    a("s_mul_i32 s6, s5, 4096")
    a(f"s_add_u32 s6, s6, {WS_KA}")
    a("v_add_u32 v63, s6, v8")
    a("s_mov_b32 s12, 0x01000100")
    a("s_mov_b32 s13, 0x05040100")
    a(f"s_mov_b32 s9, {LOG2E:#x}")
    a(f"s_mov_b32 s10, {INV2PI:#x}")
    (stamp(a, 2) if not KGREP else None)
    a("s_waitcnt lgkmcnt(0)")
    a("s_and_b32 s66, s5, 1")
    a("s_lshl_b32 s66, s66, 4")
    a("s_lshr_b32 s64, s64, s66")
    a("s_lshl_b32 s64, s64, 16")
    a("s_lshr_b32 s65, s65, s66")
    a("s_lshl_b32 s65, s65, 16")
    a("v_mov_b32 v14, s64")
    a("v_mov_b32 v15, s65")
    a("v_cmp_eq_u32 vcc, 0, v2")
    a("s_nop 1")
    a("v_cndmask_b32 v15, 0, v15, vcc")
    a("v_cmp_gt_u32 vcc, 32, v2")
    a("s_waitcnt vmcnt(0)")
    if KGREP:
        a("v_mov_b32 v56, v10")
        a("v_mov_b32 v57, v11")
        a("v_mov_b32 v58, v12")
        a("v_mov_b32 v59, v13")
        a.label("L_kg_again")
        a("v_mov_b32 v10, v56")
        a("v_mov_b32 v11, v57")
        a("v_mov_b32 v12, v58")
        a("v_mov_b32 v13, v59")
        a("v_mov_b32 v14, s64")
        a("s_cmp_eq_u32 s68, %d" % KGREP)
        a("s_cbranch_scc0 L_kg_n1")
        a("s_memrealtime s[86:87]")
        a("s_memtime s[88:89]")
        a.label("L_kg_n1")
        a("s_cmp_eq_u32 s68, %d" % (KGREP - 1))
        a("s_cbranch_scc0 L_kg_n2")
        a("s_memrealtime s[90:91]")
        a("s_memtime s[92:93]")
        a.label("L_kg_n2")
        a("s_cmp_eq_u32 s68, %d" % (KGREP - 2))
        a("s_cbranch_scc0 L_kg_n3")
        a("s_memrealtime s[94:95]")
        a("s_memtime s[96:97]")
        a.label("L_kg_n3")
    (stamp(a, 3) if not KGREP else None)
    if OPT_MPF == 2 or (OPT_MPF == 0 and OPT_CPF):
        emit_mpf_kgen(a)
    a("s_setprio 0")
    scout_entry(a, "K0")
    a("v_mul_f32 v14, s9, v14")
    a("v_mul_f32 v10, s9, v10")
    a("v_exp_f32 v14, v14")
    a("v_exp_f32 v10, v10")
    a("s_nop 0")
    a("v_cvt_pk_bf16_f32 v14, v14, v10")
    a("v_and_b32 v10, 0xffff0000, v14")
    a("v_lshlrev_b32 v14, 16, v14")
    a("v_mul_f32 v10, v10, v14")
    a("v_mul_f32 v11, v11, v14")
    a("v_add_f32 v14, v14, v14")
    a("v_mul_f32 v16, v12, v14")
    a("v_mul_f32 v17, v13, v14")
    a("v_mul_f32 v10, s9, v10")
    a("v_sub_f32 v10, 0, v10")
    a("v_mul_f32 v11, s10, v11")
    def cexp(dst, scale):
        t0, t1, t2 = 24, 25, 26
        if scale == 1:
            a(f"v_mov_b32 v{t0}, v10")
            a(f"v_mov_b32 v{t1}, v11")
        else:
            a(f"v_mul_f32 v{t0}, {f32hex(scale)}, v10")
            a(f"v_mul_f32 v{t1}, {f32hex(scale)}, v11")
        a(f"v_rndne_f32 v{t2}, v{t1}")
        a(f"v_exp_f32 v{t0}, v{t0}")
        a(f"v_sub_f32 v{t1}, v{t1}, v{t2}")
        a(f"v_cos_f32 v{t2}, v{t1}")
        a(f"v_sin_f32 v{t1}, v{t1}")
        a("s_nop 0")
        a(f"v_mul_f32 v{dst}, v{t0}, v{t2}")
        a(f"v_mul_f32 v{dst + 1}, v{t0}, v{t1}")
    cexp(18, 1)
    cexp(20, 8)
    cexp(22, 128)
    E1, E8, E128, C2 = 18, 20, 22, 16
    TMP = [24, 26, 28, 30]
    R = [32 + 2 * j for j in range(8)]
    EJ, YB = 48, 50
    CV = [52, 53, 54, 55]
    def wr_row(src, buf, row, negim, cv):
        neg = "-" if negim else ""
        a(f"v_cvt_pk_bf16_f32 v{cv}, v{src}, {neg}v{src + 1}")
        a(f"ds_write_addtid_b32 v{cv} offset:{buf * KG_BUF + row * 288}")

    a("v_mov_b32 v52, 0x3f80")
    a("ds_write_addtid_b32 v52 offset:0")
    wr_row(E8, 0, 1, True, 53)
    a(f"v_mov_b32 v{R[0]}, v{C2}")
    a(f"v_mov_b32 v{R[0] + 1}, v{C2 + 1}")
    ycur = E8
    for b in range(2, 16):
        if b == 3:
            scout(a, "K1")
        if b == 10:
            scout(a, "K2")
        src = ycur
        cmul_y = (YB, src, E8, TMP[0])
        if b - 1 <= 7:
            j = b - 1
            a(f"v_pk_mul_f32 v[{TMP[0]}:{TMP[0] + 1}], v[{src}:{src + 1}], v[{E8}:{E8 + 1}] op_sel:[0,0] op_sel_hi:[0,1]")
            a(f"v_pk_mul_f32 v[{TMP[1]}:{TMP[1] + 1}], v[{R[j - 1]}:{R[j - 1] + 1}], v[{E1}:{E1 + 1}] op_sel:[0,0] op_sel_hi:[0,1]")
            a(f"v_pk_fma_f32 v[{YB}:{YB + 1}], v[{src}:{src + 1}], v[{E8}:{E8 + 1}], v[{TMP[0]}:{TMP[0] + 1}] op_sel:[1,1,0] op_sel_hi:[1,0,1] neg_lo:[0,1,0]")
            a(f"v_pk_fma_f32 v[{R[j]}:{R[j] + 1}], v[{R[j - 1]}:{R[j - 1] + 1}], v[{E1}:{E1 + 1}], v[{TMP[1]}:{TMP[1] + 1}] op_sel:[1,1,0] op_sel_hi:[1,0,1] neg_lo:[0,1,0]")
            wr_row(R[j - 1], 1, j - 1, False, 54)
        else:
            cmul(a, YB, src, E8, TMP[0])
            j = b - 9
            if j == 0:
                wr_row(R[7], 1, 7, False, 54)
            cmul(a, R[j], R[j], E128, TMP[1])
            wr_row(R[j], 1, 8 + j, False, 54)
        wr_row(YB, 0, b, True, 53)
        ycur = YB
    cmul(a, R[7], R[7], E128, TMP[1])
    wr_row(R[7], 1, 15, False, 54)
    scout(a, "K3")
    YOP, XOP, ACC = 64, 80, 96
    a("s_waitcnt lgkmcnt(0)")
    for ks in range(4):
        a(f"ds_read_b128 v[{YOP + 4 * ks}:{YOP + 4 * ks + 3}], v7 offset:{64 * ks}")
    for ks in range(4):
        a(f"ds_read_b128 v[{XOP + 4 * ks}:{XOP + 4 * ks + 3}], v7 offset:{KG_BUF + 64 * ks}")
    for idx, j in enumerate([0, 2, 4, 6]):
        cmul(a, R[j], R[j], E128, TMP[idx % 4])
    a("s_waitcnt lgkmcnt(4)")
    for idx, j in enumerate([0, 2, 4, 6]):
        wr_row(R[j], 0, idx, False, CV[idx])
    for idx, j in enumerate([0, 2, 4, 6]):
        cmul(a, R[j], R[j], E128, TMP[idx % 4])
    a("s_waitcnt lgkmcnt(4)")
    for ks in range(4):
        c = "0" if ks == 0 else f"v[{ACC}:{ACC + 3}]"
        a(f"v_mfma_f32_16x16x32_bf16 v[{ACC}:{ACC + 3}], v[{XOP + 4 * ks}:{XOP + 4 * ks + 3}], v[{YOP + 4 * ks}:{YOP + 4 * ks + 3}], {c}")
    for idx, j in enumerate([0, 2, 4, 6]):
        wr_row(R[j], 0, 4 + idx, False, CV[idx])
    scout(a, "K4")
    for aa in range(4):
        for idx, j in enumerate([0, 4]):
            cmul(a, R[j], R[j], E128, TMP[idx])
        for idx, j in enumerate([0, 4]):
            wr_row(R[j], 0, 8 + 2 * aa + idx, False, CV[(2 * aa + idx) % 4])
    for aa in range(9):
        cmul(a, R[0], R[0], E128, TMP[aa % 2])
        wr_row(R[0], 1, aa, False, CV[aa % 4])
    a("s_waitcnt lgkmcnt(9)")
    for ks in range(4):
        a(f"ds_read_b128 v[{XOP + 4 * ks}:{XOP + 4 * ks + 3}], v7 offset:{64 * ks}")
    a("s_waitcnt lgkmcnt(0)")
    for ks in range(4):
        c = "0" if ks == 0 else f"v[{ACC + 4}:{ACC + 7}]"
        a(f"v_mfma_f32_16x16x32_bf16 v[{ACC + 4}:{ACC + 7}], v[{XOP + 4 * ks}:{XOP + 4 * ks + 3}], v[{YOP + 4 * ks}:{YOP + 4 * ks + 3}], {c}")
    XO2 = 108
    for ks in range(4):
        a(f"ds_read_b128 v[{XO2 + 4 * ks}:{XO2 + 4 * ks + 3}], v7 offset:{KG_BUF + 64 * ks}")
    a("s_waitcnt lgkmcnt(0)")
    for ks in range(4):
        c = "0" if ks == 0 else f"v[{ACC + 8}:{ACC + 11}]"
        a(f"v_mfma_f32_16x16x32_bf16 v[{ACC + 8}:{ACC + 11}], v[{XO2 + 4 * ks}:{XO2 + 4 * ks + 3}], v[{YOP + 4 * ks}:{YOP + 4 * ks + 3}], {c}")
    if KGREP:
        a("s_nop 7")
        a("s_nop 7")
        a("s_sub_u32 s68, s68, 1")
        a("s_cmp_gt_u32 s68, 0")
        a("s_cbranch_scc1 L_kg_again")
        a("s_memrealtime s[98:99]")
    scout(a, None)
    a("s_nop 7")
    a("s_nop 1")
    done = a.newlabel("kg_w0")
    a("s_cmp_eq_u32 s4, 0")
    a(f"s_cbranch_scc1 {done}")
    for t in range(3):
        a(f"ds_write_b128 v9, v[{ACC + 4 * t}:{ACC + 4 * t + 3}] offset:{1024 * t}")
    a("s_lshl_b32 s15, s67, 2")
    a(f"s_add_u32 s15, s15, {KG_CNT}")
    a("v_mov_b32 v10, s15")
    a("v_mov_b32 v11, 1")
    a("s_waitcnt lgkmcnt(0)")
    lds_signal(a, 10, 11)
    if STAMP:
        (stamp(a, 4) if not KGREP else None)
        (stamp(a, 5) if not KGREP else None)
        stamp_flush(a, 8, 0)
    a("s_endpgm")
    a.label(done)
    a("s_lshl_b32 s15, s67, 2")
    a(f"s_add_u32 s15, s15, {KG_CNT}")
    a("v_mov_b32 v10, s15")
    lds_wait_count(a, 10, 11, 14, 2, "kg_spin")
    (stamp(a, 4) if not KGREP else None)
    scout_entry(a, "F0")
    for wv in (1, 2):
        for t in range(3):
            a(f"ds_read_b128 v[{32 + 12 * (wv - 1) + 4 * t}:{35 + 12 * (wv - 1) + 4 * t}], v9 offset:{wv * KG_WAVE + 1024 * t}")
    a("s_waitcnt lgkmcnt(0)")
    for i in range(12):
        a(f"v_add_f32 v{ACC + i}, v{ACC + i}, v{32 + i}")
    for i in range(12):
        a(f"v_add_f32 v{ACC + i}, v{ACC + i}, v{44 + i}")
    a(f"v_add_f32 v{ACC}, v{ACC}, v15")
    for i in range(6):
        a(f"v_cvt_pk_bf16_f32 v{56 + i - 24}, v{ACC + 2 * i}, v{ACC + 2 * i + 1}")
    scout(a, "F1")
    a("ds_write_b16 v56, v32 offset:0")
    a("ds_write_b16_d16_hi v56, v32 offset:2")
    a("ds_write_b16 v56, v33 offset:4")
    a("ds_write_b16_d16_hi v56, v33 offset:6")
    a("ds_write_b16 v57, v34")
    a("ds_write_b16_d16_hi v58, v34")
    a("ds_write_b16 v59, v35")
    a("ds_write_b16_d16_hi v124, v35")
    a("ds_write_b16 v125, v36 offset:0")
    a("ds_write_b16_d16_hi v126, v36 offset:256")
    a("ds_write_b16 v126, v37 offset:512")
    a("ds_write_b16_d16_hi v126, v37 offset:768")
    a("s_waitcnt lgkmcnt(0)")
    SL = [40, 48, 64, 70]
    for s in range(4):
        a(f"ds_read_b128 v[{SL[s]}:{SL[s] + 3}], v9 offset:{1024 * s}")
        a(f"ds_read_b32 v{SL[s] + 4}, v9 offset:{1024 * s + 16}")
    a("s_waitcnt lgkmcnt(0)")
    def perm(d, s0, s1, sel):
        a(f"v_perm_b32 v{d}, v{s0}, v{s1}, {sel}")
    perm(76, 40, 40, "s12"); perm(77, 42, 41, "s13"); perm(78, 42, 42, "s12"); perm(79, 44, 43, "s13")
    for i in range(4):
        a(f"v_cndmask_b32 v{76 + i}, v{76 + i}, v{40 + i}, vcc")
    perm(80, 48, 48, "s12"); perm(81, 50, 48, "s13"); perm(82, 50, 50, "s12"); perm(83, 52, 52, "s12")
    for s_, o in ((2, 84), (3, 88)):
        d0, d4 = SL[s_], SL[s_] + 4
        perm(o, d0, d0, "s12"); perm(o + 1, d0, d0, "s12"); perm(o + 2, d4, d0, "v127"); perm(o + 3, d4, d4, "s12")
    scout(a, None)
    for s_, o in ((0, 76), (1, 80), (2, 84), (3, 88)):
        a(f"buffer_store_dwordx4 v[{o}:{o + 3}], v63, s[72:75], 0 offen offset:{1024 * s_}" + SC1)
    if OPT_WB2:
        nw = a.newlabel("nowb2")
        a("s_cmp_lg_u32 s67, 0")
        a(f"s_cbranch_scc1 {nw}")
        a("s_lshr_b32 s14, s2, 3")
        a(f"s_cmp_lg_u32 s14, {OPT_WB2 - 1}")
        a(f"s_cbranch_scc1 {nw}")
        a("s_waitcnt vmcnt(0)")
        a("buffer_wbl2 sc1")
        a.label(nw)
    dbg_stamp(a, 1, 0, 60, 61)
    if STAMP:
        a("s_waitcnt vmcnt(0)")
        (stamp(a, 5) if not KGREP else None)
        stamp_flush(a, 8, 0)
    a("s_endpgm")


def f32hex(x):
    import struct
    return hex(struct.unpack("<I", struct.pack("<f", float(x)))[0])


def emit_prep(a):
    k = "prep_kernel"
    a.raw(f".globl {k}")
    a.raw(".p2align 8")
    a.raw(f".type {k},@function")
    a.label(k)
    a("s_cmp_ge_u32 s2, 256")
    a("s_cbranch_scc1 L_prep_exit")
    stamp(a, 0)
    load_kernargs(a)
    code_prefetch(a, "L_prep_exit", 120, 121)
    a("v_lshrrev_b32 v1, 6, v0")
    a("v_and_b32 v2, 63, v0")
    a("s_nop 0")
    a("v_readfirstlane_b32 s3, v1")
    a("s_mov_b32 s4, 0x9d7a6b85" if OPT_KFIRST else "s_mov_b32 s4, 0x9b436210")
    a("s_mov_b32 s5, 0x43c210" if OPT_KFIRST else "s_mov_b32 s5, 0xa7cd85")
    a("s_lshl_b32 s3, s3, 2")
    a("s_lshr_b64 s[4:5], s[4:5], s3")
    a("s_and_b32 s3, s4, 15")
    a("s_cmp_lt_u32 s3, 5")
    a("s_cbranch_scc1 L_tile")
    if NOKGEN:
        a("s_endpgm")
    a("s_setprio 3")
    emit_kgen_issue(a)
    a.label("L_tile")
    emit_tilewave(a)
    a.label("L_kgen")
    emit_kgen(a)
    a.label("L_prep_exit")
    a("s_endpgm")


class Lay:
    def __init__(self, name, half, tiles, jobs):
        self.name = name
        self.half = half
        self.tiles = list(tiles)
        self.jobs = jobs
        self.nslot = 8 * jobs
        self.ubytes = 2048 if half else 4096
        self.UP = self.ubytes + 512
        self.PO = self.ubytes + 64
        self.KP = 2 * self.PO
        self.merged = (jobs == 2 and not OPT_QT)
        self.YP = 4672 if self.merged else (2112 if OPT_QT or jobs == 2 else 2624)
        self.YT = 640 if self.YP == 2624 else 512
        self.YR = 40 if self.YP == 2624 else 32
        self.U0 = 0
        self.K0 = self.nslot * self.UP
        self.Y0 = self.K0 + self.nslot * self.KP
        self.end = self.Y0 + (8 if self.merged else self.nslot) * self.YP
        self.nd = self.ubytes // 1024


T1 = Lay("T1", False, range(4, 8), 1)
T2 = Lay("T2", True, range(0, 4), 2)
K2_LDS = max(T1.end, T2.end)
assert T1.K0 % 128 == 0 and T1.KP % 128 == 0 and T1.PO % 128 == 64
assert T2.K0 % 128 == 0 and T2.KP % 128 == 0 and T2.PO % 128 == 64

V_U, V_KB, V_YW, V_TR, V_OUT, V_Q, V_L16, V_T0, V_T1 = 4, 5, 9, 10, 11, 12, 13, 14, 15
V_ACC = 16
V_B = 48
V_QD = 32
V_E = 88
V_K0 = 2


class Stream:
    def __init__(self, a, max_out=14):
        self.a = a
        self.q = []
        self.n = 0
        self.max_out = max_out
        self.done = set()

    def ins(self, txt):
        self.a(txt)
        self.n += 1

    def lds(self, txt, tag):
        if len(self.q) >= self.max_out:
            keep = self.max_out - 1
            self._wait(keep)
        self.ins(txt)
        self.q.append(tag)

    def _wait(self, keep):
        if len(self.q) > keep:
            self.ins(f"s_waitcnt lgkmcnt({keep})")
            for t in self.q[:len(self.q) - keep]:
                self.done.add(t)
            self.q = self.q[len(self.q) - keep:]

    def need(self, tags):
        last = -1
        for i, t in enumerate(self.q):
            if t in tags:
                last = i
        if last >= 0:
            self._wait(len(self.q) - 1 - last)

    def pad_since(self, n0, states):
        k = states - (self.n - n0)
        while k > 0:
            c = min(k, 16)
            self.ins(f"s_nop {c - 1}")
            self.n += c - 1
            k -= c


def emit_conv_body(a, T):
    J = T.jobs
    a("s_lshl_b32 s8, s5, 3")
    a("s_add_u32 s8, s8, s3")
    a("s_mul_i32 s9, s4, 640")
    a("s_add_u32 s9, s9, s8")
    a("s_lshl_b32 s10, s8, 12")
    a("s_lshl_b32 s13, s9, 12")
    if T.half:
        a("s_add_u32 s13, s13, 2048")
    a(f"s_mul_i32 s70, s3, {T.UP}")
    a(f"s_mul_i32 s71, s3, {T.KP}")
    a(f"s_add_u32 s71, s71, {T.K0}")
    a(f"v_lshlrev_b32 v{V_L16}, 4, v1")
    a("v_and_b32 v88, 15, v1")
    a("v_lshrrev_b32 v89, 4, v1")
    a("v_lshlrev_b32 v90, 5, v88")
    a("v_lshlrev_b32 v91, 4, v89")
    a("v_sub_u32 v90, v91, v90")
    a("s_add_u32 s14, s70, 480")
    a(f"v_add_u32 v{V_U}, s14, v90")
    a("v_add_u32 v90, 1, v88")
    a("v_and_b32 v91, 1, v90")
    a("v_lshl_add_u32 v90, v89, 3, v90")
    a("v_lshrrev_b32 v90, 1, v90")
    a("v_lshlrev_b32 v90, 2, v90")
    a(f"v_mul_u32_u24 v91, {T.PO}, v91")
    a("v_add_u32 v90, v90, v91")
    a(f"v_add_u32 v{V_KB}, s71, v90")
    nkb = 2 if T.half else 4
    for kk in range(1, nkb):
        a(f"v_add_u32 v{V_KB + kk}, {1024 * kk}, v{V_KB}")
    if T.half:
        for kk in range(2):
            a(f"v_add_u32 v{V_KB + 2 + kk}, {8 * T.KP + 1024 * kk}, v{V_KB}")
    a(f"s_add_u32 s14, s70, {T.ubytes}")
    a("v_lshl_add_u32 v90, v1, 4, s14")
    a(f"s_sub_u32 s14, s71, {30 * 16}")
    a("v_lshl_add_u32 v91, v1, 4, s14")
    a(f"s_add_u32 s14, s71, {T.PO - 32 * 16}")
    a("v_lshl_add_u32 v92, v1, 4, s14")
    a("v_cmp_gt_u32 vcc, 32, v1")
    a(f"v_mov_b32 v93, {8 * T.KP}")
    a(f"v_mov_b32 v94, {8 * T.UP}")
    a("v_cndmask_b32 v91, v92, v91, vcc")
    a("v_cmp_gt_u32 vcc, 30, v1")
    for r in range(80, 84):
        a(f"v_mov_b32 v{r}, 0")
    a("v_cndmask_b32 v90, v91, v90, vcc")
    a("v_cndmask_b32 v93, v93, v94, vcc")
    a("s_mov_b32 exec_hi, 3")
    for j in range(J):
        a("ds_write_b128 v90, v[80:83]")
        if j + 1 < J:
            a("v_add_u32 v90, v90, v93")
    a("s_mov_b64 exec, -1")
    a(f"s_mul_i32 s14, s3, {T.YP}")
    a(f"s_add_u32 s14, s14, {T.Y0}")
    a("s_lshl_b32 s11, s5, 4")
    if not T.merged:
        a(f"v_mul_u32_u24 v90, {T.YR}, v88")
        a("v_lshl_add_u32 v90, v89, 3, v90")
        a(f"v_add_u32 v{V_YW}, s14, v90")
        if OPT_QT:
            a("v_lshlrev_b32 v90, 5, v88")
            a("v_lshl_add_u32 v90, v89, 3, v90")
        if OPT_QT:
            a(f"v_add_u32 v{V_Q}, s10, v90")
        a("s_and_b32 s12, s3, 3")
        a("v_bfe_u32 v90, v1, 2, 2")
        a(f"v_mul_u32_u24 v90, {T.YP}, v90")
        a("v_and_b32 v91, 3, v1")
        a("v_lshl_add_u32 v90, v91, 3, v90")
        a(f"v_mul_u32_u24 v91, {T.YR}, v89")
        a("v_add_u32 v90, v90, v91")
        a(f"s_mul_i32 s14, s12, {4 * T.YR}")
        a(f"s_add_u32 s14, s14, {T.Y0}")
        a(f"v_add_u32 v{V_TR}, s14, v90")
        a("s_lshl_b32 s14, s12, 6")
        a("v_add_u32 v90, s14, v1")
        if not OPT_QT:
            a(f"v_mul_u32_u24 v{V_Q}, 1280, v90")
            a(f"v_add_u32 v{V_Q}, s11, v{V_Q}")
        a(f"v_mul_u32_u24 v{V_OUT}, 2560, v90")
        a("s_mul_i32 s14, s4, 1280")
        a("s_add_u32 s14, s14, s11")
        a(f"v_add_u32 v{V_OUT}, s14, v{V_OUT}")
    else:
        a("v_mul_u32_u24 v90, 72, v88")
        a("v_lshl_add_u32 v90, v89, 4, v90")
        a(f"v_add_u32 v{V_YW}, s14, v90")
        a("v_bfe_u32 v90, v1, 2, 2")
        a(f"v_mul_u32_u24 v90, {T.YP}, v90")
        a("v_and_b32 v91, 3, v1")
        a("v_lshl_add_u32 v90, v91, 3, v90")
        a("v_lshrrev_b32 v91, 1, v89")
        a("v_mul_u32_u24 v91, 72, v91")
        a("v_add_u32 v90, v90, v91")
        a("v_and_b32 v91, 1, v89")
        a("v_lshl_add_u32 v90, v91, 5, v90")
        a("s_mul_i32 s14, s3, 144")
        a(f"s_add_u32 s14, s14, {T.Y0}")
        a(f"v_add_u32 v{V_TR}, s14, v90")
        a("s_lshl_b32 s14, s3, 5")
        a("v_lshrrev_b32 v90, 1, v1")
        a("v_add_u32 v90, s14, v90")
        a("v_and_b32 v91, 1, v1")
        a("v_lshlrev_b32 v91, 4, v91")
        a("v_add_u32 v91, s11, v91")
        a(f"v_mul_u32_u24 v{V_Q}, 1280, v90")
        a(f"v_add_u32 v{V_Q}, v{V_Q}, v91")
        a(f"v_mul_u32_u24 v{V_OUT}, 2560, v90")
        a(f"v_add_u32 v{V_OUT}, v{V_OUT}, v91")
        a("s_mul_i32 s14, s4, 1280")
        a(f"v_add_u32 v{V_OUT}, s14, v{V_OUT}")
    a(f"v_mov_b32 v{V_T0}, s71")
    a(f"s_mov_b32 s50, {WS_KA}")
    a("s_mov_b32 s51, 0x00020000")
    a(f"s_mov_b32 s54, {640 * 4096}")
    a("s_mov_b32 s55, 0x00020000")
    a("s_waitcnt lgkmcnt(0)")
    stamp(a, 1, True)
    if DBGT:
        nd = a.newlabel("nd")
        a("s_cmp_lg_u32 s2, 0")
        a(f"s_cbranch_scc1 {nd}")
        dbg_stamp(a, 2, 512, 86, 87)
        a.label(nd)
    a(f"s_mov_b32 s48, s{P_WS}")
    a(f"s_and_b32 s49, s{P_WS + 1}, 0xffff")
    a(f"s_add_u32 s6, s{P_WS}, {WS_KA}")
    a(f"s_addc_u32 s7, s{P_WS + 1}, 0")
    a("s_cmp_eq_u32 s4, 1")
    a(f"s_cselect_b32 s6, s{P_SSK}, s6")
    a(f"s_cselect_b32 s7, s{P_SSK + 1}, s7")
    a("s_mov_b32 s52, s6")
    a("s_and_b32 s53, s7, 0xffff")

    def dma_one(job, kind, kk):
        if kind == "U":
            src, srd, dst = f"s_add_u32 s15, s13, {job * 32768}", "s[48:51]", f"s_add_u32 m0, s70, {job * 8 * T.UP}"
        elif kind == "E":
            src, srd, dst = f"s_add_u32 s15, s10, {job * 32768}", "s[52:55]", f"s_add_u32 m0, s71, {job * 8 * T.KP + 32}"
        else:
            src, srd, dst = f"s_add_u32 s15, s10, {job * 32768 + 2}", "s[52:55]", f"s_add_u32 m0, s71, {job * 8 * T.KP + T.PO + 32}"
        return [src, dst, "s_nop 0", f"buffer_load_dwordx4 v{V_L16}, {srd}, s15 offen offset:{1024 * kk} lds"]

    if not T.half:
        order = [("U", 3), ("E", 3), ("O", 3), ("E", 2), ("O", 2), ("E", 1), ("O", 1), ("U", 2), ("E", 0), ("O", 0), ("U", 1), ("U", 0)]
        nfirst = 7
    else:
        order = [("U", 1), ("E", 1), ("O", 1), ("E", 0), ("O", 0), ("U", 0)]
        nfirst = 5
    xs = a.newlabel("xdma")
    a("s_cmp_ge_u32 s3, 4")
    a(f"s_cbranch_scc1 {xs}")
    for kind, kk in order[:nfirst]:
        for ln in dma_one(0, kind, kk):
            a(ln)
    a.label(xs)
    stamp(a, 2, True)
    for j in range(J):
        a(f"s_add_u32 s14, s10, {j * 32768}")
        a(f"s_load_dword s{72 + j}, s[6:7], s14")
    a("s_lshl_b32 s11, s8, 1")
    a("s_and_b32 s11, s11, 0xfffffffc")
    for j in range(J):
        a(f"s_add_u32 s14, s11, {16 * j}")
        a(f"s_load_dword s{76 + j}, s[{P_SSD}:{P_SSD + 1}], s14")
    if OPT_QT:
        a(f"s_add_u32 s56, s{P_WS}, {WS_QT}")
        a(f"s_addc_u32 s57, s{P_WS + 1}, 0")
        a("s_and_b32 s57, s57, 0xffff")
    else:
        a(f"s_mov_b32 s56, s{P_Q}")
        a(f"s_and_b32 s57, s{P_Q + 1}, 0xffff")
    a("s_mov_b32 s59, 0x00020000")
    make_srd(a, 60, P_OUT, L * 2560)
    a("s_cmp_eq_u32 s4, 1")
    a(f"s_cselect_b32 s58, {640 * 4096}, 0")
    if OPT_QT:
        a("s_cselect_b32 s69, 0, 0x3f803f80")
    else:
        a("s_cselect_b32 s69, 0, 0x3f800000")
        a("s_cselect_b32 s67, 0, 0x3f80")
        a("v_mov_b32 v86, 0xffff")
        a("v_mov_b32 v87, 0xffff0000")
    a("s_cmp_ge_u32 s3, 4")
    a(f"s_cbranch_scc1 L_{T.name}_Y")
    emit_conv_stream(a, T, 0, order, nfirst, dma_one)
    a.label(f"L_{T.name}_Y")
    emit_conv_stream(a, T, 1, order, nfirst, dma_one)


def emit_conv_stream(a, T, G, order, nfirst, dma_one):
    J = T.jobs
    st = Stream(a)
    vm = []
    k0_ready = [False]

    def make_k0():
        st.ins("s_waitcnt lgkmcnt(0)")
        for t in st.q:
            st.done.add(t)
        st.q = []
        st.ins("s_and_b32 s14, s8, 1")
        st.ins("s_lshl_b32 s14, s14, 4")
        for j in range(J):
            st.ins(f"s_lshl_b32 s{72 + j}, s{72 + j}, 16")
            st.ins(f"s_lshr_b32 s{76 + j}, s{76 + j}, s14")
            st.ins(f"s_lshl_b32 s{76 + j}, s{76 + j}, 16")
        st.ins("s_cmp_eq_u32 s4, 1")
        for j in range(J):
            st.ins(f"s_cselect_b32 s{76 + j}, s{76 + j}, 0")
        for j in range(J):
            st.ins(f"v_mov_b32 v{V_K0 + j}, s{72 + j}")
            st.ins(f"v_add_f32 v{V_K0 + j}, s{76 + j}, v{V_K0 + j}")
            st.ins(f"v_cvt_pk_bf16_f32 v{V_K0 + j}, v{V_K0 + j}, v{V_K0 + j}")
        k0_ready[0] = True

    def patch(j):
        if not k0_ready[0]:
            make_k0()
        st.lds(f"ds_write_b16 v{V_T0}, v{V_K0 + j} offset:{j * 8 * T.KP + 32}", ("patch", j, 0))
        st.lds(f"ds_write_b16 v{V_T0}, v{V_K0 + j} offset:{j * 8 * T.KP + T.PO + 30}", ("patch", j, 1))

    tiles = T.tiles
    nlo, nhi = tiles[0], tiles[-1]

    def phys(j, cp):
        if not T.half:
            return cp % 5
        return cp if j == 0 else (cp + 1)

    mf = []
    seen = set()
    for j in range(J):
        for m in range(0, nhi + 1):
            ns = list(range(nhi, max(m, nlo) - 1, -1))
            if m == 0 and j == 0 and OPT_NOUT:
                pairs = [(r, n) for n in ns for r in range(8)]
            else:
                pairs = [(r, n) for r in range(8) for n in ns]
            for r, n in pairs:
                cp = n - m
                first = (j, n) not in seen
                seen.add((j, n))
                mf.append(dict(rd=j, m=m, r=r, n=n, cp=cp, c=8 * cp + r, aslot=8 * phys(j, cp) + r, bslot=r,
                               first=first, atag=("A", j, 8 * cp + r), btag=("B", j, m, r)))
    nM = len(mf)
    loads = []
    have = set()
    last_use_a, last_use_b = {}, {}
    prev_last_b = {}
    lastb_by_tag = {}
    for i, x in enumerate(mf):
        lastb_by_tag[x['btag']] = i
    slot_prev_tag = {}
    for i, x in enumerate(mf):
        if x['btag'] not in have:
            have.add(x['btag'])
            pt = slot_prev_tag.get(x['bslot'])
            loads.append(dict(tag=x['btag'], kind='B', need=i, free=(lastb_by_tag[pt] if pt else -1), x=x))
            slot_prev_tag[x['bslot']] = x['btag']
        if x['atag'] not in have:
            have.add(x['atag'])
            loads.append(dict(tag=x['atag'], kind='A', need=i, free=last_use_a.get(x['aslot'], -1), x=x))
        last_use_a[x['aslot']] = i
    first_idx = {}
    for i, x in enumerate(mf):
        first_idx.setdefault(x['rd'], i)

    uoff0 = 1536 if T.half else 3584

    def src_pieces(ld):
        x = ld['x']
        j = x['rd']
        if ld['kind'] == 'B':
            gamma = 8 * x['m'] - x['r']
            lo = uoff0 - 64 * gamma
            hi = lo + 528 + 16
            return {("dma", j, "U", k_) for k_ in range(T.nd) if lo < 1024 * (k_ + 1) and hi > 1024 * k_}
        c = x['c']
        lo = 64 * c - 32
        hi = 64 * c + 96
        out = set()
        for k_ in range(T.nd):
            if lo < 1024 * (k_ + 1) and hi > 1024 * k_:
                out |= {("dma", j, "E", k_), ("dma", j, "O", k_)}
        if c == 0:
            out.add(("patched", j))
        return out

    landed = set()

    def vwait(tags):
        idx = [i for i, t in enumerate(vm) if t in tags and t not in landed]
        if not idx:
            return
        last = max(idx)
        keep = len(vm) - 1 - last
        st.ins(f"s_waitcnt vmcnt({keep})")
        for t in vm[:last + 1]:
            landed.add(t)

    def ensure(ld):
        need = src_pieces(ld)
        j = ld['x']['rd']
        if ("patched", j) in need:
            need.discard(("patched", j))
            if ("patched", j) not in landed:
                vwait({("dma", j, "E", 0)})
                patch(j)
                landed.add(("patched", j))
        for t in need:
            assert t in vm, ("DMA piece not issued before use", t, ld['x'])
        vwait(need)

    def available(ld):
        for t in src_pieces(ld):
            if t[0] != "patched" and t not in vm:
                return False
        return True

    def emit_load(ld):
        x = ld['x']
        j = x['rd']
        ensure(ld)
        if ld['kind'] == 'B':
            gamma = 8 * x['m'] - x['r']
            off = uoff0 - 64 * gamma + j * 8 * T.UP
            d = V_B + 4 * x['bslot']
            st.lds(f"ds_read_b128 v[{d}:{d + 3}], v{V_U} offset:{off}", ld['tag'])
        else:
            c = x['c']
            base = V_KB + (c >> 4) + (2 * j if T.half else 0)
            o = 16 * (c & 15)
            d = 4 * x['aslot']
            st.lds(f"ds_read2_b32 a[{d}:{d + 1}], v{base} offset0:{o} offset1:{o + 1}", (ld['tag'], 0))
            st.lds(f"ds_read2_b32 a[{d + 2}:{d + 3}], v{base} offset0:{o + 2} offset1:{o + 3}", ld['tag'])

    aux = {}

    def add_aux(i, fn):
        aux.setdefault(min(i, nM), []).append(fn)

    last_of_tile = {}
    for i, x in enumerate(mf):
        last_of_tile[(x['rd'], x['n'])] = i
    mf_pos = {}

    def vmem(lines, tag):
        for ln in lines:
            st.ins(ln)
        vm.append(tag)

    fillers = []

    def epi1(j, n, urgent):
        def fn():
            i = last_of_tile[(j, n)]
            ab = V_ACC + 4 * (n - nlo)
            qb = V_QD + 2 * (4 * j + n - nlo)
            u = 84
            pre = [f"v_or_b32 v{qb}, s69, v{qb}", f"v_or_b32 v{qb + 1}, s69, v{qb + 1}",
                   f"v_lshlrev_b32 v{u}, 16, v{qb}", f"v_and_b32 v{u + 1}, 0xffff0000, v{qb}",
                   f"v_lshlrev_b32 v{u + 2}, 16, v{qb + 1}", f"v_and_b32 v{u + 3}, 0xffff0000, v{qb + 1}"]
            post = [f"v_mul_f32 v{u}, v{u}, v{ab}", f"v_mul_f32 v{u + 1}, v{u + 1}, v{ab + 1}",
                    f"v_mul_f32 v{u + 2}, v{u + 2}, v{ab + 2}", f"v_mul_f32 v{u + 3}, v{u + 3}, v{ab + 3}",
                    f"v_cvt_pk_bf16_f32 v{u}, v{u}, v{u + 1}", f"v_cvt_pk_bf16_f32 v{u + 1}, v{u + 2}, v{u + 3}"]
            vwait({("q", j, n)})
            for t_ in pre:
                st.ins(t_)
            st.pad_since(mf_pos[i], 8)
            for t_ in post:
                st.ins(t_)
            st.lds(f"ds_write_b64 v{V_YW}, v[{u}:{u + 1}] offset:{j * 8 * T.YP + 512 * (n - nlo)}", ("Y", j, n))
        return fn

    cur = [0]

    def epi2(j, n):
        def fn():
            while fillers:
                fillers.pop(0)[1]()
            st.need({("Y", j, n)})
            st.ins("s_barrier")
            if ((n - nlo) & 1) != G:
                return
            o = j * 8 * T.YP + 512 * (n - nlo)
            t = V_E
            st.lds(f"ds_read_b64_tr_b16 v[{t}:{t + 1}], v{V_TR} offset:{o}", ("T", j, n, 0))
            st.lds(f"ds_read_b64_tr_b16 v[{t + 2}:{t + 3}], v{V_TR} offset:{o + 4 * T.YP}", ("T", j, n, 1))
            rdy = cur[0] + 4

            def fin():
                st.need({("T", j, n, 0), ("T", j, n, 1)})
                vmem([f"s_mov_b32 s68, {n * 256 * 2560 + j * 16}",
                      f"buffer_store_dwordx4 v[{t}:{t + 3}], v{V_OUT}, s[60:63], s68 offen" + OST], ("st", j, n))
            fillers.append((rdy, fin))
        return fn

    def gate_fillers(rdy, t, qb, waits):
        u = V_E + 4
        fillers.append((rdy, waits))
        seq = []
        for p in range(2):
            i0, i1 = 2 * p, 2 * p + 1
            seq += [f"v_and_or_b32 v{u}, v{qb + i0}, v86, s67",
                    f"v_and_or_b32 v{u + 1}, v{qb + i0}, v87, s69",
                    f"v_and_or_b32 v{u + 2}, v{qb + i1}, v86, s67",
                    f"v_and_or_b32 v{u + 3}, v{qb + i1}, v87, s69",
                    f"v_dot2_f32_bf16 v{u}, v{t + i0}, v{u}, 0",
                    f"v_dot2_f32_bf16 v{u + 1}, v{t + i0}, v{u + 1}, 0",
                    f"v_dot2_f32_bf16 v{u + 2}, v{t + i1}, v{u + 2}, 0",
                    f"v_dot2_f32_bf16 v{u + 3}, v{t + i1}, v{u + 3}, 0",
                    "s_nop 1",
                    f"v_cvt_pk_bf16_f32 v{t + i0}, v{u}, v{u + 1}",
                    f"v_cvt_pk_bf16_f32 v{t + i1}, v{u + 2}, v{u + 3}"]
        for txt in seq:
            fillers.append((rdy, (lambda txt: (lambda: st.ins(txt)))(txt)))

    def epi1_rows(j, n):
        def fn():
            i = last_of_tile[(j, n)]
            st.pad_since(mf_pos[i], 8)
            ab = V_ACC + 4 * (n - nlo)
            st.ins(f"v_cvt_pk_bf16_f32 v84, v{ab}, v{ab + 1}")
            st.ins(f"v_cvt_pk_bf16_f32 v85, v{ab + 2}, v{ab + 3}")
            if not T.merged:
                st.lds(f"ds_write_b64 v{V_YW}, v[84:85] offset:{j * 8 * T.YP + T.YT * (n - nlo)}", ("Y", j, n))
            else:
                o = 1152 * (n - nlo) + 2 * j
                st.lds(f"ds_write_b16 v{V_YW}, v84 offset:{o}", ("Y", j, n, 0))
                st.lds(f"ds_write_b16_d16_hi v{V_YW}, v84 offset:{o + 4}", ("Y", j, n, 1))
                st.lds(f"ds_write_b16 v{V_YW}, v85 offset:{o + 8}", ("Y", j, n, 2))
                st.lds(f"ds_write_b16_d16_hi v{V_YW}, v85 offset:{o + 12}", ("Y", j, n))
        return fn

    def epi2_rows(j, n):
        def fn():
            while fillers:
                fillers.pop(0)[1]()
            st.need({("Y", j, n)})
            st.ins("s_barrier")
            if not T.merged and ((n - nlo) & 1) != G:
                return
            t = V_E
            if not T.merged:
                o = j * 8 * T.YP + T.YT * (n - nlo)
                qtag = ("q", j, (n - nlo) >> 1)
                qb = V_QD + 4 * (2 * j + ((n - nlo) >> 1))
                soff = n * 256 * 2560 + j * 16
            else:
                o = 1152 * (n - nlo)
                qtag = ("q", 0, n - nlo)
                qb = V_QD + 4 * (n - nlo)
                soff = n * 256 * 2560
            st.lds(f"ds_read_b64_tr_b16 v[{t}:{t + 1}], v{V_TR} offset:{o}", ("T", j, n, 0))
            st.lds(f"ds_read_b64_tr_b16 v[{t + 2}:{t + 3}], v{V_TR} offset:{o + 4 * T.YP}", ("T", j, n, 1))
            rdy = cur[0] + 4

            def waits():
                vwait({qtag})
                st.need({("T", j, n, 0), ("T", j, n, 1)})
            gate_fillers(rdy, t, qb, waits)
            fillers.append((rdy, lambda: vmem([f"s_mov_b32 s68, {soff}",
                                               f"buffer_store_dwordx4 v[{t}:{t + 3}], v{V_OUT}, s[60:63], s68 offen" + OST], ("st", j, n))))
        return fn

    for k_, (kind, kk) in enumerate(order[nfirst:]):
        add_aux(1 + 3 * k_, (lambda kind, kk: (lambda: vmem(dma_one(0, kind, kk), ("dma", 0, kind, kk))))(kind, kk))
    rest0 = len(order) - nfirst
    for j in range(1, J):
        start = first_idx[j - 1] + 12
        for k_, (kind, kk) in enumerate(order):
            add_aux(start + 5 * k_, (lambda j, kind, kk: (lambda: vmem(dma_one(j, kind, kk), ("dma", j, kind, kk))))(j, kind, kk))
    if OPT_QT:
        for j in range(J):
            for n in tiles:
                at = first_idx[j] + (2 + 3 * rest0 if j == 0 else -24) + 2 * (n - nlo)

                def mkq(j, n):
                    def fn():
                        r0 = V_QD + 2 * (4 * j + n - nlo)
                        vmem([f"s_mov_b32 s14, {n * 512 + j * 32768}",
                              f"buffer_load_dwordx2 v[{r0}:{r0 + 1}], v{V_Q}, s[56:59], s14 offen"], ("q", j, n))
                    return fn
                add_aux(at, mkq(j, n))

        for j in range(J):
            for n in tiles:
                i = last_of_tile[(j, n)]
                last_in_job = (n == nhi and j + 1 < J)
                add_aux(i + 1 + (0 if last_in_job else 2), epi1(j, n, last_in_job))
                add_aux(i + 1 + 8, epi2(j, n))

    else:
        if T.merged:
            qlist = [(0, k_, nlo + k_, 0) for k_ in range(4)]
        else:
            qlist = [(0, qi, nlo + 2 * qi + G, qi) for qi in range(2)]
        for k_, (tj, ti, tile, ri) in enumerate(qlist):
            at = first_idx[0] + 2 + 3 * rest0 + ((QSTART + QSTEP * k_) if not T.merged else (QSTART_M + QSTEP_M * k_))

            def mkq(tj, ti, tile, k_):
                def fn():
                    r0 = V_QD + 4 * k_
                    vmem([f"s_mov_b32 s14, {tile * 256 * 1280}",
                          f"buffer_load_dwordx4 v[{r0}:{r0 + 3}], v{V_Q}, s[56:59], s14 offen"], ("q", tj, ti))
                return fn
            add_aux(at, mkq(tj, ti, tile, k_))
        for j in range(J):
            for n in tiles:
                i = last_of_tile[(j, n)]
                last_in_job = (n == nhi and j + 1 < J)
                add_aux(i + 1 + (0 if last_in_job else 4), epi1_rows(j, n))
                if T.merged and j == 0:
                    continue
                add_aux(i + 1 + 9, epi2_rows(j, n))

    stamp(a, 4, True)
    qa = [ld for ld in loads if ld['kind'] == 'A']
    qb_ = [ld for ld in loads if ld['kind'] == 'B']
    issued = set()
    issue_at = {}
    for j in range(1, J):
        for k_, (kind, kk) in enumerate(order):
            issue_at[("dma", j, kind, kk)] = first_idx[j - 1] + 12 + 5 * k_
    for k_, (kind, kk) in enumerate(order):
        issue_at[("dma", 0, kind, kk)] = -60 if k_ < nfirst else 1 + 3 * (k_ - nfirst) - 20

    def hint(t, i):
        return t in issue_at and i - issue_at[t] > 40

    def next_free(q, i):
        for ld in q:
            if id(ld) in issued:
                continue
            if ld['free'] < i and available(ld):
                if all((t in landed or t[0] == "patched" or ld['need'] - i < 24 or hint(t, i)) for t in src_pieces(ld)):
                    return ld
        return None

    def issue_loads(i, budget):
        cnt = 0
        while cnt < budget:
            cb_ = next_free(qb_, i) if len(st.q) + 1 <= st.max_out else None
            ca_ = next_free(qa, i) if len(st.q) + 2 <= st.max_out else None
            cand = None
            if cb_ is not None and (ca_ is None or cb_['need'] <= ca_['need']):
                cand = cb_
            elif ca_ is not None:
                cand = ca_
            if cand is None:
                break
            emit_load(cand)
            issued.add(id(cand))
            cnt += 2 if cand['kind'] == 'A' else 1
        return cnt

    if G == 1:
        a("s_barrier")
        for kind, kk in order[:nfirst]:
            for ln in dma_one(0, kind, kk):
                a(ln)
    if G == 1 and OPT_CPF and OPT_PF:
        nocp = a.newlabel("nocp")
        a("s_cmp_lg_u32 s3, 7")
        a(f"s_cbranch_scc1 {nocp}")
        lab = a.newlabel("pc")
        a("s_getpc_b64 s[82:83]")
        a.label(lab)
        a("v_lshlrev_b32 v94, 7, v1")
        a(f"v_min_u32 v94, L_end_{T.name}-{lab}-4, v94")
        a("global_load_dword v95, v94, s[82:83]")
        a.label(nocp)
    for kind, kk in order[:nfirst]:
        vm.append(("dma", 0, kind, kk))
    first = True
    for i, x in enumerate(mf):
        cur[0] = i
        if G == 0 and i == 1:
            st.ins("s_barrier")
        if STAMP and STEPSTAMP < 0 and i == 64:
            stamp(a, 6, True)
        if STAMP and STEPSTAMP >= 0 and x['rd'] == STEPSTAMP and (i == 0 or mf[i - 1]['m'] != x['m'] or mf[i - 1]['rd'] != x['rd']):
            a(f"s_memtime s[{ST0 + 2 * x['m']}:{ST0 + 2 * x['m'] + 1}]")
        for fn in aux.get(i, []):
            fn()
        for q_ in (qb_, qa):
            for ld in q_:
                if ld['need'] <= i and id(ld) not in issued:
                    emit_load(ld)
                    issued.add(id(ld))
        if first:
            stamp(a, 5, True)
            first = False
        nl = issue_loads(i, 4 if x['m'] == 0 else 2)
        nf = 0
        while fillers and fillers[0][0] <= i and nf < (3 if nl < 2 else 2):
            fillers.pop(0)[1]()
            nf += 1
        st.need({x['atag'], x['btag']})
        ab = V_ACC + 4 * (x['n'] - nlo)
        src_c = "0" if x['first'] else f"v[{ab}:{ab + 3}]"
        bs = V_B + 4 * x['bslot']
        st.ins(f"v_mfma_f32_16x16x32_bf16 v[{ab}:{ab + 3}], a[{4 * x['aslot']}:{4 * x['aslot'] + 3}], v[{bs}:{bs + 3}], {src_c}")
        mf_pos[i] = st.n
    stamp(a, 7, True)
    cur[0] = nM
    for fn in aux.get(nM, []):
        fn()
    while fillers:
        fillers.pop(0)[1]()
    dbg_stamp(a, 3, 512, 86, 87)
    if STAMP:
        stamp_flush(a, 8, 1)
    if G == 1:
        a.label(f"L_end_{T.name}")
    a("s_endpgm")


def emit_conv(a):
    k = "conv_kernel"
    a.raw(f".globl {k}")
    a.raw(".p2align 8")
    a.raw(f".type {k},@function")
    a.label(k)
    a("s_cmp_ge_u32 s2, 240")
    a("s_cbranch_scc1 L_conv_exit")
    stamp(a, 0, True)
    load_kernargs(a)
    if not OPT_CPF:
        code_prefetch(a, "L_conv_exit", 94, 95)
    a("v_lshrrev_b32 v2, 6, v0")
    a("v_and_b32 v1, 63, v0")
    a("s_and_b32 s6, s2, 7")
    a("v_readfirstlane_b32 s3, v2")
    a("s_lshr_b32 s7, s2, 3")
    a("s_mul_i32 s5, s6, 10")
    a("s_cmp_ge_u32 s7, 20")
    a("s_cbranch_scc1 L_T2")
    a("s_cmp_ge_u32 s7, 10")
    a("s_cselect_b32 s4, 1, 0")
    a("s_mul_i32 s8, s4, 10")
    a("s_sub_u32 s7, s7, s8")
    a("s_add_u32 s5, s5, s7")
    emit_conv_body(a, T1)
    a.label("L_T2")
    a("s_sub_u32 s7, s7, 20")
    a("s_cmp_ge_u32 s7, 5")
    a("s_cselect_b32 s4, 1, 0")
    a("s_mul_i32 s8, s4, 5")
    a("s_sub_u32 s7, s7, s8")
    a("s_lshl_b32 s7, s7, 1")
    a("s_add_u32 s5, s5, s7")
    emit_conv_body(a, T2)
    a.label("L_conv_exit")
    a("s_endpgm")


def kd(name, vgpr, sgpr, accum):
    return f""".amdhsa_kernel {name}
  .amdhsa_next_free_vgpr {vgpr}
  .amdhsa_next_free_sgpr {sgpr}
  .amdhsa_accum_offset {accum}
  .amdhsa_group_segment_fixed_size 0
  .amdhsa_kernarg_size 128
  .amdhsa_user_sgpr_count 2
  .amdhsa_user_sgpr_kernarg_segment_ptr 1
  .amdhsa_system_sgpr_workgroup_id_x 1
.end_amdhsa_kernel
"""


HEADER = open("cdna_kernels/" + NAME + ".s.ref").read().split("; Override launch geometry")[0]


def build():
    a = Asm()
    a.raw(HEADER.rstrip("\n"))
    a.raw(f"; @launch kernel=prep_kernel grid=(256,1,1) block=(896,1,1) lds={K1_LDS}")
    a.raw(f"; @launch kernel=conv_kernel grid=(240,1,1) block=(512,1,1) lds={K2_LDS}")
    a.raw('.amdgcn_target "amdgcn-amd-amdhsa--gfx950"')
    a.raw(".text")
    emit_prep(a)
    emit_conv(a)
    a.raw('.section .rodata,"a"')
    a.raw(".p2align 6")
    a.raw(kd("prep_kernel", 128, 102 if (STAMP or DBGT) else 80, 128))
    a.raw(".p2align 6")
    a.raw(kd("conv_kernel", 256, 102 if (STAMP or DBGT) else 84, 96))
    return a.text()


if __name__ == "__main__":
    out = sys.argv[1] if len(sys.argv) > 1 else "cdna_kernels/" + NAME + ".s"
    open(out, "w").write(build())
    print("wrote", out)
```

```python
import sys

NAME = "concat_heads__ssm_conv_s4d__ssm_conv_h3__prompt"

L = 2048
D = 640
NM = 192
ROWB = 1280
TENS = L * ROWB

WS_UT = 0
WS_KA = 1280 * 4096
WS_QT = WS_KA + 640 * 4096
WS_END = WS_QT + 640 * 4096

P_U, P_LOGA, P_AIM, P_CR, P_CI, P_LDT, P_DSK, P_Q, P_K, P_V, P_SHK, P_SSK, P_SSD, P_OUT, P_DBG, P_WS = [16 + 2 * i for i in range(16)]


import os
STAMP = bool(int(os.environ.get("STAMP", "0")))
STEPSTAMP = int(os.environ.get("STEPSTAMP", "-1"))
OPT_PRIO = int(os.environ.get("OPT_PRIO", "0"))
OPT_YLATE = int(os.environ.get("OPT_YLATE", "1"))
EPI_T2 = int(os.environ.get("EPI_T2", "60"))
EPI_T2_STEP = int(os.environ.get("EPI_T2_STEP", "10"))
OPT_NOUT = int(os.environ.get("OPT_NOUT", "1"))
DBGT = int(os.environ.get("DBGT", "0"))
OPT_QT = int(os.environ.get("OPT_QT", "0"))
QSTART = int(os.environ.get("QSTART", "4"))
QSTEP = int(os.environ.get("QSTEP", "6"))
QSTART_M = int(os.environ.get("QSTART_M", "44"))
QSTEP_M = int(os.environ.get("QSTEP_M", "8"))
OPT_WB = int(os.environ.get("OPT_WB", "0"))
OPT_KFIRST = int(os.environ.get("OPT_KFIRST", "0"))
OPT_WB2 = int(os.environ.get("OPT_WB2", "0"))
OPT_OST = int(os.environ.get("OPT_OST", "0"))
OPT_NT = int(os.environ.get("OPT_NT", "0"))
OPT_MPF_WHAT = int(os.environ.get("OPT_MPF_WHAT", "3"))
OPT_SC1 = int(os.environ.get("OPT_SC1", "1"))
OPT_SKEW = int(os.environ.get("OPT_SKEW", "1"))
OPT_CPF = int(os.environ.get("OPT_CPF", "1"))
OPT_MPF = int(os.environ.get("OPT_MPF", "0"))
OPT_XMAP = int(os.environ.get("OPT_XMAP", "0"))
OPT_SCOUT = int(os.environ.get("OPT_SCOUT", "0"))
KGREP = int(os.environ.get("KGREP", "0"))
NOKGEN = int(os.environ.get("NOKGEN", "0"))
OPT_PF = int(os.environ.get("OPT_PF", "1"))
OPT_RBM = int(os.environ.get("OPT_RBM", "0"))
OPT_LATE = int(os.environ.get("OPT_LATE", "0"))


def code_prefetch(a, endlabel, vtmp, vdst):
    if not OPT_PF:
        return
    lab = a.newlabel("pc")
    a("s_getpc_b64 s[10:11]")
    a.label(lab)
    a(f"v_lshlrev_b32 v{vtmp}, 7, v0")
    a(f"v_min_u32 v{vtmp}, {endlabel}-{lab}-4, v{vtmp}")
    a(f"global_load_dword v{vdst}, v{vtmp}, s[10:11]")


WS_STAMP = 16 << 20
ST0 = 84


def stamp(a, i, k2=False):
    if STAMP and not (k2 and STEPSTAMP >= 0):
        a(f"s_memrealtime s[{ST0 + 2 * i}:{ST0 + 2 * i + 1}]")


def stamp_flush(a, n, kern):
    if not STAMP:
        return
    a("s_waitcnt lgkmcnt(0)")
    make_srd(a, 76, P_WS, WS_STAMP + (4 << 20))
    a("s_lshl_b32 s80, s2, 4")
    a("s_add_u32 s80, s80, s3")
    a("s_lshl_b32 s80, s80, 5")
    a(f"s_add_u32 s80, s80, {WS_STAMP + kern * (1 << 20)}")
    a("s_mov_b64 exec, 1")
    a("v_mov_b32 v250, s80" if False else "v_mov_b32 v9, s80")
    for i in range(n):
        a(f"v_mov_b32 v8, s{ST0 + 2 * i}")
        a(f"buffer_store_dword v8, v9, s[76:79], 0 offen offset:{4 * i}")
    a("s_mov_b64 exec, -1")


SC1 = {0: "", 1: " sc1", 2: " nt", 3: " sc0", 4: " sc0 sc1", 5: " sc1 nt", 6: " sc1"}[OPT_SC1]
SC1K = "" if OPT_SC1 == 6 else SC1


def dbg_stamp(a, slot, back, vA=60, vB=61):
    if not DBGT:
        return
    a("s_memrealtime s[90:91]")
    a("s_waitcnt lgkmcnt(0)")
    a(f"s_sub_u32 s92, s{P_DBG}, {back}")
    a(f"s_subb_u32 s93, s{P_DBG + 1}, 0")
    a(f"v_mov_b32 v{vA}, {4 * slot}")
    a(f"v_mov_b32 v{vB}, s90")
    a("s_mov_b64 s[94:95], exec")
    a("s_mov_b64 exec, 1")
    a(f"global_atomic_umax v{vA}, v{vB}, s[92:93]")
    a("s_mov_b64 exec, s[94:95]")


OST = {0: "", 1: " sc1", 2: " nt", 3: " sc0 sc1", 4: " sc1 nt"}[OPT_OST]


NT1 = " nt" if OPT_NT & 1 else ""
NT2 = " nt" if OPT_NT & 2 else ""


class Asm:
    def __init__(self):
        self.lines = []
        self.nlab = 0

    def __call__(self, s):
        s = s.replace(" lds nt", " nt lds")
        self.lines.append("    " + s)

    def raw(self, s):
        self.lines.append(s)

    def label(self, s):
        self.lines.append(s + ":")

    def c(self, s):
        self.lines.append("    ; " + s)

    def newlabel(self, base):
        self.nlab += 1
        return f"L_{base}_{self.nlab}"

    def text(self):
        return "\n".join(self.lines) + "\n"


def vr(i, n=1):
    return f"v{i}" if n == 1 else f"v[{i}:{i + n - 1}]"


def ar(i, n=1):
    return f"a{i}" if n == 1 else f"a[{i}:{i + n - 1}]"


def sr(i, n=1):
    return f"s{i}" if n == 1 else f"s[{i}:{i + n - 1}]"


def make_srd(a, dst, ptr, nbytes):
    a(f"s_mov_b32 s{dst}, s{ptr}")
    a(f"s_and_b32 s{dst + 1}, s{ptr + 1}, 0xffff")
    a(f"s_mov_b32 s{dst + 2}, {nbytes}")
    a(f"s_mov_b32 s{dst + 3}, 0x00020000")


def load_kernargs(a):
    a("s_load_dwordx16 s[16:31], s[0:1], 0")
    a("s_load_dwordx16 s[32:47], s[0:1], 64")


TW_RAWK = 0
TW_RAWV = 12288
TW_RAWU = TW_RAWV + 10240
TW_RAWQ = TW_RAWU + 10240
TW_STG = TW_RAWQ + (10240 if OPT_QT else 0)
KG_OFF = TW_STG + 5 * 5120
KG_CNT = KG_OFF + 9 * 9216
K1_LDS = KG_CNT + 64


def lds_signal(a, addr_v, one_v):
    a("s_mov_b64 exec, 1")
    a(f"ds_add_u32 v{addr_v}, v{one_v}")
    a("s_mov_b64 exec, -1")


def lds_wait_count(a, addr_v, tmp_v, tmp_s, count, name):
    spin = a.newlabel(name)
    a.label(spin)
    a(f"ds_read_b32 v{tmp_v}, v{addr_v}")
    a("s_waitcnt lgkmcnt(0)")
    a(f"v_readfirstlane_b32 s{tmp_s}, v{tmp_v}")
    a(f"s_cmp_lt_u32 s{tmp_s}, {count}")
    a(f"s_cbranch_scc1 {spin}")


def emit_mpf(a):
    nopf = a.newlabel("nopf")
    if OPT_QT:
        a("s_cmp_ge_u32 s3, 2")
        a(f"s_cbranch_scc1 {nopf}")
        a(f"s_mov_b32 s68, s{P_SSK}")
        a(f"s_mov_b32 s69, s{P_SSK + 1}")
    else:
        a("s_cmp_ge_u32 s3, 4")
        a(f"s_cbranch_scc1 {nopf}")
        a("s_cmp_ge_u32 s3, 2")
        a(f"s_cselect_b32 s68, s{P_Q}, s{P_SSK}")
        a(f"s_cselect_b32 s69, s{P_Q + 1}, s{P_SSK + 1}")
    a("s_and_b32 s69, s69, 0xffff")
    a(f"s_mov_b32 s70, {TENS}")
    a("s_mov_b32 s71, 0x00020000")
    a("s_mul_i32 s15, s2, 10240")
    a("s_and_b32 s14, s3, 1")
    a("s_lshl_b32 s14, s14, 13")
    a("s_add_u32 s15, s15, s14")
    a("v_lshlrev_b32 v39, 7, v2")
    a("v_add_u32 v39, s15, v39")
    a("s_and_b32 s14, s3, 1")
    a("s_cmp_eq_u32 s14, 1")
    a("s_cselect_b32 exec_lo, 0xffff, -1")
    a("s_cselect_b32 exec_hi, 0, -1")
    a("buffer_load_dword v45, v39, s[68:71], 0 offen")
    a("s_mov_b64 exec, -1")
    a.label(nopf)
    if OPT_CPF:
        nocp = a.newlabel("nocp")
        a("s_cmp_lg_u32 s3, 4")
        a(f"s_cbranch_scc1 {nocp}")
        a("s_cmp_ge_u32 s2, 8")
        a(f"s_cbranch_scc1 {nocp}")
        lab = a.newlabel("pc")
        a("s_getpc_b64 s[68:69]")
        a.label(lab)
        a("v_lshlrev_b32 v39, 7, v2")
        a(f"v_add_u32 v39, conv_kernel-{lab}, v39")
        for k_ in range(3):
            a(f"v_min_u32 v46, L_conv_exit-{lab}, v39")
            a("global_load_dword v45, v46, s[68:69]")
            a("v_add_u32 v39, 8192, v39")
        a.label(nocp)


def emit_mpf_kgen(a):
    nopf = a.newlabel("nopf")
    what = OPT_MPF_WHAT if OPT_MPF == 2 else 0
    if what == 0:
        a(f"s_branch {nopf}")
    a("s_cmp_lg_u32 s4, 1")
    a(f"s_cbranch_scc1 {nopf}")
    if what == 3:
        a("s_cmp_ge_u32 s67, 2")
        a(f"s_cbranch_scc1 {nopf}")
    else:
        a(f"s_cmp_lg_u32 s67, {0 if what == 1 else 1}")
        a(f"s_cbranch_scc1 {nopf}")
    a("s_cmp_eq_u32 s67, 1")
    a(f"s_cselect_b32 s68, s{P_Q}, s{P_SSK}")
    a(f"s_cselect_b32 s69, s{P_Q + 1}, s{P_SSK + 1}")
    a("s_and_b32 s69, s69, 0xffff")
    a(f"s_mov_b32 s70, {TENS}")
    a("s_mov_b32 s71, 0x00020000")
    a("s_mul_i32 s15, s2, 10240")
    a("v_lshlrev_b32 v60, 7, v2")
    a("v_add_u32 v60, s15, v60")
    a("buffer_load_dword v56, v60, s[68:71], 0 offen")
    a("s_mov_b32 exec_lo, 0xffff")
    a("s_mov_b32 exec_hi, 0")
    a("v_add_u32 v60, 8192, v60")
    a("buffer_load_dword v57, v60, s[68:71], 0 offen")
    a("s_mov_b64 exec, -1")
    a.label(nopf)
    if OPT_CPF:
        nocp = a.newlabel("nocp")
        a("s_cmp_lg_u32 s4, 2")
        a(f"s_cbranch_scc1 {nocp}")
        a("s_cmp_lg_u32 s67, 0")
        a(f"s_cbranch_scc1 {nocp}")
        a("s_cmp_ge_u32 s2, 8")
        a(f"s_cbranch_scc1 {nocp}")
        lab = a.newlabel("pc")
        a("s_getpc_b64 s[68:69]")
        a.label(lab)
        a("v_lshlrev_b32 v60, 7, v2")
        a(f"v_add_u32 v60, conv_kernel-{lab}, v60")
        for k_ in range(3):
            a(f"v_min_u32 v61, L_conv_exit-{lab}, v60")
            a(f"global_load_dword v{57 + k_}, v61, s[68:69]")
            a("v_add_u32 v60, 8192, v60")
        a.label(nocp)


def emit_tilewave(a):
    a.c("---- tile waves: workgroup tile = 32 rows x 160 channels of u, k, v ; wave w owns 32 channels ----")
    if OPT_XMAP:
        a("s_lshr_b32 s7, s2, 5")
        a("s_lshl_b32 s7, s7, 3")
        a("s_and_b32 s8, s2, 7")
        a("s_add_u32 s8, s8, s7")
        a("s_bfe_u32 s7, s2, 0x20003")
    else:
        a("s_lshr_b32 s8, s2, 2")
        a("s_and_b32 s7, s2, 3")
    a("s_mul_i32 s9, s8, 40960")
    a("s_mul_i32 s10, s7, 320")
    a("s_add_u32 s9, s9, s10")
    a("s_lshl_b32 s11, s3, 6")
    a("s_add_u32 s10, s10, s11")
    a("s_lshl_b32 s12, s3, 6")
    a("v_add_u32 v3, s12, v2")
    a("v_mul_u32_u24 v4, 52429, v3")
    a("v_lshrrev_b32 v4, 20, v4")
    a("v_mul_u32_u24 v5, 20, v4")
    a("v_sub_u32 v5, v3, v5")
    a("v_mul_u32_u24 v6, 1280, v4")
    a("v_lshl_add_u32 v6, v5, 4, v6")
    a("v_add_u32 v5, s9, v6")
    a("v_add_u32 v6, 20480, v5")
    a("v_subrev_u32 v7, 5120, v5")
    a("s_lshl_b32 s12, s3, 10")
    a("s_waitcnt lgkmcnt(0)")
    stamp(a, 1)
    if DBGT:
        nd = a.newlabel("nd")
        a("s_cmp_lg_u32 s2, 0")
        a(f"s_cbranch_scc1 {nd}")
        dbg_stamp(a, 0, 0, 60, 61)
        a.label(nd)
    make_srd(a, 48, P_U, TENS)
    make_srd(a, 52, P_K, TENS)
    make_srd(a, 56, P_V, TENS)
    make_srd(a, 60, P_SHK, 640 * 8)
    if OPT_QT:
        make_srd(a, 72, P_Q, TENS)
    a("v_bfe_u32 v8, v2, 4, 1")
    a("v_and_b32 v10, 15, v2")
    a("v_lshl_add_u32 v11, v8, 4, v10")
    a("s_lshl_b32 s13, s10, 2")
    a("v_lshl_add_u32 v12, v11, 3, s13")
    a("s_barrier")
    a("buffer_load_dwordx2 v[40:41], v12, s[60:63], 0 offen")
    a(f"s_add_u32 m0, s12, {TW_RAWK + 1280}")
    a("s_nop 0")
    a("buffer_load_dwordx4 v5, s[52:55], 0 offen lds" + NT1)
    a(f"s_add_u32 m0, s12, {TW_RAWK + 1280 + 5120}")
    a("s_nop 0")
    a("buffer_load_dwordx4 v6, s[52:55], 0 offen lds" + NT1)
    nohalo = a.newlabel("nohalo")
    a("s_cmp_gt_u32 s3, 1")
    a(f"s_cbranch_scc1 {nohalo}")
    a("s_cmp_eq_u32 s3, 0")
    a("s_cselect_b32 exec_hi, -1, 0")
    a("s_cselect_b32 exec_lo, -1, 0xffff")
    a(f"s_add_u32 m0, s12, {TW_RAWK}")
    a("s_nop 0")
    a("buffer_load_dwordx4 v7, s[52:55], 0 offen lds" + NT1)
    a("s_mov_b64 exec, -1")
    a.label(nohalo)
    for srd, base in (((56, TW_RAWV), (48, TW_RAWU), (72, TW_RAWQ)) if OPT_QT else ((56, TW_RAWV), (48, TW_RAWU))):
        a(f"s_add_u32 m0, s12, {base}")
        a("s_nop 0")
        a(f"buffer_load_dwordx4 v5, s[{srd}:{srd + 3}], 0 offen lds" + NT1)
        a(f"s_add_u32 m0, s12, {base + 5120}")
        a("s_nop 0")
        a(f"buffer_load_dwordx4 v6, s[{srd}:{srd + 3}], 0 offen lds" + NT1)
    stamp(a, 2)
    a("v_lshrrev_b32 v3, 2, v2")
    a("v_and_b32 v4, 3, v2")
    a("v_bfe_u32 v8, v2, 4, 1")
    a("v_lshrrev_b32 v9, 5, v2")
    a("v_and_b32 v10, 15, v2")
    a("v_lshl_add_u32 v11, v8, 4, v10")
    make_srd(a, 64, P_WS, WS_END)
    a("v_and_b32 v13, 3, v3")
    a("v_sub_u32 v13, 3, v13")
    a("v_lshl_add_u32 v13, v9, 2, v13")
    a("v_mul_u32_u24 v13, 320, v13")
    a("v_lshl_add_u32 v13, v8, 5, v13")
    a("v_lshl_add_u32 v13, v4, 3, v13")
    a("v_add_u32 v13, s11, v13")
    a("s_mul_i32 s12, s3, 5120")
    a(f"s_add_u32 s12, s12, {TW_STG}")
    a("v_mul_u32_u24 v14, 80, v11")
    a("v_lshlrev_b32 v15, 3, v9")
    a("v_sub_u32 v14, v14, v15")
    a("s_add_u32 s13, s12, 8")
    a("v_add_u32 v14, s13, v14")
    a("v_mul_u32_u24 v15, 80, v3")
    a("v_lshl_add_u32 v15, v4, 4, v15")
    a("v_add_u32 v15, s12, v15")
    a("s_lshl_b32 s13, s10, 11")
    a("s_lshl_b32 s14, s8, 6")
    a("s_sub_u32 s13, s13, s14")
    a("s_add_u32 s13, s13, 4032")
    a("v_lshlrev_b32 v16, 12, v3")
    a("v_lshl_add_u32 v16, v4, 4, v16")
    a("v_add_u32 v16, s13, v16")
    a(f"v_mov_b32 v36, {KG_CNT + 12}")
    a("v_mov_b32 v37, 1")
    if OPT_SCOUT:
        a("s_mov_b32 s70, 0")
        a("s_mov_b64 exec, 0")
        for w_, nm in enumerate(("K0", "K1", "K2", "K3", "K4")):
            a(f"s_cmp_eq_u32 s3, {w_}")
            a(f"s_cbranch_scc1 L_sc_{nm}")
        a.label("L_scout_ret")
        a("s_add_u32 s70, s70, 1")
        a("s_cmp_eq_u32 s70, 1")
        a("s_cbranch_scc0 L_scout_p2")
        a("s_cmp_eq_u32 s3, 0")
        a("s_cbranch_scc1 L_sc_F0")
        a("s_cmp_eq_u32 s3, 1")
        a("s_cbranch_scc1 L_sc_F1")
        a("s_add_u32 s70, s70, 1")
        a.label("L_scout_p2")
        a("s_cmp_eq_u32 s70, 2")
        a("s_cbranch_scc1 L_tproc")
        a("s_mov_b64 exec, -1")
    a("s_setprio 2")
    a("s_waitcnt vmcnt(2)" if OPT_QT else "s_waitcnt vmcnt(0)")
    lds_signal(a, 36, 37)
    stamp(a, 3)
    if OPT_MPF == 1:
        emit_mpf(a)
    a("v_alignbit_b32 v42, v41, v40, 16")
    a("v_lshlrev_b32 v43, 16, v40")
    a("v_lshrrev_b32 v44, 16, v41")
    lds_wait_count(a, 36, 38, 14, 5, "tile_spin")
    a.label("L_tproc")
    for j in range(4):
        a(f"ds_read_b64_tr_b16 v[{18 + 2 * j}:{19 + 2 * j}], v13 offset:{TW_RAWK + 1280 + 2560 * j}")
        a(f"ds_read_b64_tr_b16 v[{26 + 2 * j}:{27 + 2 * j}], v13 offset:{TW_RAWK + 2560 * j}")
        a(f"ds_read_b64_tr_b16 v[{46 + 2 * j}:{47 + 2 * j}], v13 offset:{TW_RAWV + 2560 * j}")
    for j in range(3):
        a(f"ds_read_b64_tr_b16 v[{54 + 2 * j}:{55 + 2 * j}], v13 offset:{TW_RAWU + 2560 * j}")
    for j in range(4):
        kc, kp, vv = 18 + 2 * j, 26 + 2 * j, 46 + 2 * j
        t = 64 + 10 * (j & 1)
        a(f"s_waitcnt lgkmcnt({12 - 3 * j})")
        if j == 0:
            a(f"ds_read_b64_tr_b16 v[60:61], v13 offset:{TW_RAWU + 2560 * 3}")
        a(f"v_dot2_f32_bf16 v{t + 0}, v{kc}, v40, 0")
        a(f"v_dot2_f32_bf16 v{t + 1}, v{kc}, v43, 0")
        a(f"v_dot2_f32_bf16 v{t + 2}, v{kc + 1}, v40, 0")
        a(f"v_dot2_f32_bf16 v{t + 3}, v{kc + 1}, v43, 0")
        a(f"v_dot2_f32_bf16 v{t + 0}, v{kc + 1}, v41, v{t + 0}")
        a(f"v_dot2_f32_bf16 v{t + 1}, v{kc + 1}, v42, v{t + 1}")
        a(f"v_dot2_f32_bf16 v{t + 2}, v{kp}, v41, v{t + 2}")
        a(f"v_dot2_f32_bf16 v{t + 3}, v{kp}, v42, v{t + 3}")
        a(f"v_dot2_f32_bf16 v{t + 1}, v{kp}, v44, v{t + 1}")
        a(f"v_dot2_f32_bf16 v{t + 3}, v{kp + 1}, v44, v{t + 3}")
        a(f"v_lshlrev_b32 v{t + 4}, 16, v{vv}")
        a(f"v_and_b32 v{t + 5}, 0xffff0000, v{vv}")
        a(f"v_lshlrev_b32 v{t + 6}, 16, v{vv + 1}")
        a(f"v_and_b32 v{t + 7}, 0xffff0000, v{vv + 1}")
        a(f"v_mul_f32 v{t + 0}, v{t + 0}, v{t + 4}")
        a(f"v_mul_f32 v{t + 1}, v{t + 1}, v{t + 5}")
        a(f"v_mul_f32 v{t + 2}, v{t + 2}, v{t + 6}")
        a(f"v_mul_f32 v{t + 3}, v{t + 3}, v{t + 7}")
        a(f"v_cvt_pk_bf16_f32 v{t + 8}, v{t + 0}, v{t + 1}")
        a(f"v_cvt_pk_bf16_f32 v{t + 9}, v{t + 2}, v{t + 3}")
        a(f"ds_write_b64 v14, v[{t + 8}:{t + 9}] offset:{2560 + 16 * (3 - j)}")
    a("s_waitcnt lgkmcnt(4)")
    for j in range(4):
        a(f"ds_write_b64 v14, v[{54 + 2 * j}:{55 + 2 * j}] offset:{16 * (3 - j)}")
    a("s_waitcnt lgkmcnt(0)")
    for i in range(2):
        a(f"ds_read_b128 v[{18 + 4 * i}:{21 + 4 * i}], v15 offset:{2560 + 1280 * i}")
    for i in range(2):
        a(f"ds_read_b128 v[{26 + 4 * i}:{29 + 4 * i}], v15 offset:{1280 * i}")
    a(f"v_add_u32 v17, {640 * 4096}, v16")
    a("v_add_u32 v34, 65536, v17")
    a("v_add_u32 v35, 65536, v16")
    scout(a, None)
    a("s_waitcnt lgkmcnt(3)")
    a("buffer_store_dwordx4 v[18:21], v17, s[64:67], 0 offen" + SC1)
    a("s_waitcnt lgkmcnt(2)")
    a("buffer_store_dwordx4 v[22:25], v34, s[64:67], 0 offen" + SC1)
    a("s_waitcnt lgkmcnt(1)")
    a("buffer_store_dwordx4 v[26:29], v16, s[64:67], 0 offen" + SC1)
    a("s_waitcnt lgkmcnt(0)")
    a("buffer_store_dwordx4 v[30:33], v35, s[64:67], 0 offen" + SC1)
    if OPT_QT:
        a("s_waitcnt vmcnt(4)")
        a(f"v_mov_b32 v36, {KG_CNT + 16}")
        lds_signal(a, 36, 37)
        lds_wait_count(a, 36, 38, 14, 5, "tileq_spin")
        a("v_and_b32 v46, 3, v3")
        a("v_lshlrev_b32 v47, 1, v46")
        a("v_subrev_u32 v47, 3, v47")
        a("v_mul_i32_i24 v47, 320, v47")
        a("v_add_u32 v47, v13, v47")
        for j in range(4):
            a(f"ds_read_b64_tr_b16 v[{54 + 2 * j}:{55 + 2 * j}], v47 offset:{TW_RAWQ + 2560 * j}")
        a("v_lshlrev_b32 v48, 4, v9")
        a("v_add_u32 v48, v14, v48")
        a("v_subrev_u32 v48, 8, v48")
        a("s_lshl_b32 s14, s8, 7")
        a(f"s_add_u32 s14, s14, {WS_QT - 4032}")
        a("v_add_u32 v49, s14, v16")
        a("v_add_u32 v50, 65536, v49")
        a("s_waitcnt lgkmcnt(0)")
        for j in range(4):
            a(f"ds_write_b64 v48, v[{54 + 2 * j}:{55 + 2 * j}] offset:{16 * j}")
        a("s_waitcnt lgkmcnt(0)")
        for i in range(2):
            a(f"ds_read_b128 v[{64 + 4 * i}:{67 + 4 * i}], v15 offset:{1280 * i}")
        a("s_waitcnt lgkmcnt(1)")
        a("buffer_store_dwordx4 v[64:67], v49, s[64:67], 0 offen" + SC1)
        a("s_waitcnt lgkmcnt(0)")
        a("buffer_store_dwordx4 v[68:71], v50, s[64:67], 0 offen" + SC1)
    if OPT_WB:
        nw = a.newlabel("nowb")
        a("s_cmp_lg_u32 s3, 0")
        a(f"s_cbranch_scc1 {nw}")
        a("s_lshr_b32 s14, s2, 3")
        a(f"s_cmp_lg_u32 s14, {OPT_WB - 1}")
        a(f"s_cbranch_scc1 {nw}")
        a("s_waitcnt vmcnt(0)")
        a("buffer_wbl2 sc1")
        a.label(nw)
    if STAMP:
        stamp(a, 4)
        a("s_waitcnt vmcnt(0)")
        stamp(a, 5)
        stamp_flush(a, 6, 0)
    a("s_endpgm")


LOG2E = 0x3fb8aa3b
INV2PI = 0x3e22f983


def cmul(a, d, x, y, t):
    a(f"v_pk_mul_f32 v[{t}:{t + 1}], v[{x}:{x + 1}], v[{y}:{y + 1}] op_sel:[0,0] op_sel_hi:[0,1]")
    a(f"v_pk_fma_f32 v[{d}:{d + 1}], v[{x}:{x + 1}], v[{y}:{y + 1}], v[{t}:{t + 1}] op_sel:[1,1,0] op_sel_hi:[1,0,1] neg_lo:[0,1,0]")


KG_BUF = 4608
KG_WAVE = 2 * KG_BUF


def scout(a, entry):
    if OPT_SCOUT:
        a("s_cbranch_execz L_scout_ret")
        if entry:
            a.label("L_sc_" + entry)


def scout_entry(a, entry):
    if OPT_SCOUT:
        a.label("L_sc_" + entry)


def emit_kgen_issue(a):
    a.c("---- kgen waves: issue parameter loads as early as possible ----")
    a("s_sub_u32 s6, s3, 5")
    a("s_mul_i32 s7, s6, 43")
    a("s_lshr_b32 s7, s7, 7")
    a("s_mov_b32 s67, s7")
    a("s_mul_i32 s4, s7, 3")
    a("s_sub_u32 s4, s6, s4")
    a("s_lshr_b32 s5, s2, 1")
    a("s_mul_i32 s5, s5, 5")
    a("s_and_b32 s8, s2, 1")
    a("s_mul_i32 s9, s8, 3")
    a("s_add_u32 s5, s5, s9")
    a("s_add_u32 s5, s5, s7")
    a("s_lshr_b32 s9, s7, 1")
    a("s_and_b32 s9, s9, s8")
    a("s_cmp_eq_u32 s9, 1")
    a("s_cbranch_scc1 L_prep_exit")
    a("s_mul_i32 s9, s5, 384")
    a("s_lshl_b32 s7, s4, 7")
    a("s_add_u32 s9, s9, s7")
    a("v_lshl_add_u32 v3, v2, 1, s9")
    for r in range(10, 14):
        a(f"v_mov_b32 v{r}, 0")
    a("s_lshl_b32 s7, s5, 1")
    a("s_and_b32 s7, s7, 0xfffffffc")
    a("s_mov_b32 s50, 245760")
    a("s_mov_b32 s51, 0x00020000")
    a("s_mov_b32 s54, 245760")
    a("s_mov_b32 s55, 0x00020000")
    a("s_mov_b32 s58, 245760")
    a("s_mov_b32 s59, 0x00020000")
    a("s_mov_b32 s62, 245760")
    a("s_mov_b32 s63, 0x00020000")
    a("v_lshlrev_b32 v4, 2, v2")
    a(f"v_add_u32 v4, {KG_CNT}, v4")
    a("v_mov_b32 v5, 0")
    a("s_mov_b64 exec, 31")
    a("ds_write_b32 v4, v5")
    a("s_mov_b64 exec, -1")
    a("s_waitcnt lgkmcnt(0)")
    stamp(a, 1)
    for srd, p, dst in ((48, P_LOGA, 10), (52, P_AIM, 11), (56, P_CR, 12), (60, P_CI, 13)):
        a(f"s_mov_b32 s{srd}, s{p}")
        a(f"s_and_b32 s{srd + 1}, s{p + 1}, 0xffff")
        a(f"buffer_load_short_d16_hi v{dst}, v3, s[{srd}:{srd + 3}], 0 offen" + NT2)
    a("s_barrier")
    a(f"s_load_dword s64, s[{P_LDT}:{P_LDT + 1}], s7")
    a(f"s_load_dword s65, s[{P_DSK}:{P_DSK + 1}], s7")
    if KGREP:
        a(f"s_mov_b32 s68, {KGREP}")
    a("s_branch L_kgen")


def emit_kgen(a):
    a.c("---- S4D kernel generation: 64 modes per wave ----")
    a(f"s_mul_i32 s8, s6, {KG_WAVE}")
    a(f"s_add_u32 s8, s8, {KG_OFF}")
    make_srd(a, 72, P_WS, WS_END)
    a("s_mov_b32 m0, s8")
    a("v_and_b32 v5, 15, v2")
    a("v_lshrrev_b32 v6, 4, v2")
    a("v_mul_u32_u24 v7, 288, v5")
    a("v_lshl_add_u32 v7, v6, 4, v7")
    a("v_add_u32 v7, s8, v7")
    a("v_lshlrev_b32 v8, 4, v2")
    a("v_add_u32 v9, s8, v8")
    a("v_lshlrev_b32 v60, 4, v5")
    a("v_add_u32 v60, s8, v60")
    a("v_and_b32 v61, 1, v6")
    a("v_lshrrev_b32 v62, 1, v6")
    a("v_lshl_add_u32 v56, v61, 3, v60")
    a("v_lshl_add_u32 v56, v62, 8, v56")
    a("v_lshl_add_u32 v57, v6, 8, v60")
    a("v_add_u32 v57, 512, v57")
    a("v_lshl_add_u32 v58, v6, 9, v60")
    a("v_cmp_gt_u32 vcc, 2, v6")
    a("v_mov_b32 v61, 8")
    a("v_mov_b32 v62, 4")
    a("v_cndmask_b32 v57, v58, v57, vcc")
    a("v_cndmask_b32 v61, v61, v62, vcc")
    a("v_add_u32 v58, v57, v61")
    a("v_mov_b32 v61, 256")
    a("v_mov_b32 v62, 8")
    a("v_cndmask_b32 v61, v61, v62, vcc")
    a("v_add_u32 v59, v57, v61")
    a("v_mov_b32 v61, 264")
    a("v_mov_b32 v62, 12")
    a("v_cndmask_b32 v61, v61, v62, vcc")
    a("v_add_u32 v124, v57, v61")
    a("v_lshl_add_u32 v61, v6, 10, v60")
    a("v_add_u32 v61, 2048, v61")
    a("v_lshlrev_b32 v62, 1, v2")
    a("v_add_u32 v62, s8, v62")
    a("v_add_u32 v62, 5120, v62")
    a("v_cndmask_b32 v126, v62, v61, vcc")
    a("v_cmp_gt_u32 vcc, 3, v6")
    a("s_nop 1")
    a("v_cndmask_b32 v125, v62, v61, vcc")
    a("v_and_b32 v60, 1, v2")
    a("v_cmp_eq_u32 vcc, 1, v60")
    a("v_mov_b32 v61, 0x05040100")
    a("v_mov_b32 v62, 0x05040504")
    a("v_cndmask_b32 v127, v61, v62, vcc")
    a("s_mul_i32 s6, s5, 4096")
    a(f"s_add_u32 s6, s6, {WS_KA}")
    a("v_add_u32 v63, s6, v8")
    a("s_mov_b32 s12, 0x01000100")
    a("s_mov_b32 s13, 0x05040100")
    a(f"s_mov_b32 s9, {LOG2E:#x}")
    a(f"s_mov_b32 s10, {INV2PI:#x}")
    (stamp(a, 2) if not KGREP else None)
    a("s_waitcnt lgkmcnt(0)")
    a("s_and_b32 s66, s5, 1")
    a("s_lshl_b32 s66, s66, 4")
    a("s_lshr_b32 s64, s64, s66")
    a("s_lshl_b32 s64, s64, 16")
    a("s_lshr_b32 s65, s65, s66")
    a("s_lshl_b32 s65, s65, 16")
    a("v_mov_b32 v14, s64")
    a("v_mov_b32 v15, s65")
    a("v_cmp_eq_u32 vcc, 0, v2")
    a("s_nop 1")
    a("v_cndmask_b32 v15, 0, v15, vcc")
    a("v_cmp_gt_u32 vcc, 32, v2")
    a("s_waitcnt vmcnt(0)")
    if KGREP:
        a("v_mov_b32 v56, v10")
        a("v_mov_b32 v57, v11")
        a("v_mov_b32 v58, v12")
        a("v_mov_b32 v59, v13")
        a.label("L_kg_again")
        a("v_mov_b32 v10, v56")
        a("v_mov_b32 v11, v57")
        a("v_mov_b32 v12, v58")
        a("v_mov_b32 v13, v59")
        a("v_mov_b32 v14, s64")
        a("s_cmp_eq_u32 s68, %d" % KGREP)
        a("s_cbranch_scc0 L_kg_n1")
        a("s_memrealtime s[86:87]")
        a("s_memtime s[88:89]")
        a.label("L_kg_n1")
        a("s_cmp_eq_u32 s68, %d" % (KGREP - 1))
        a("s_cbranch_scc0 L_kg_n2")
        a("s_memrealtime s[90:91]")
        a("s_memtime s[92:93]")
        a.label("L_kg_n2")
        a("s_cmp_eq_u32 s68, %d" % (KGREP - 2))
        a("s_cbranch_scc0 L_kg_n3")
        a("s_memrealtime s[94:95]")
        a("s_memtime s[96:97]")
        a.label("L_kg_n3")
    (stamp(a, 3) if not KGREP else None)
    if OPT_MPF == 2 or (OPT_MPF == 0 and OPT_CPF):
        emit_mpf_kgen(a)
    a("s_setprio 0")
    scout_entry(a, "K0")
    a("v_mul_f32 v14, s9, v14")
    a("v_mul_f32 v10, s9, v10")
    a("v_exp_f32 v14, v14")
    a("v_exp_f32 v10, v10")
    a("s_nop 0")
    a("v_cvt_pk_bf16_f32 v14, v14, v10")
    a("v_and_b32 v10, 0xffff0000, v14")
    a("v_lshlrev_b32 v14, 16, v14")
    a("v_mul_f32 v10, v10, v14")
    a("v_mul_f32 v11, v11, v14")
    a("v_add_f32 v14, v14, v14")
    a("v_mul_f32 v16, v12, v14")
    a("v_mul_f32 v17, v13, v14")
    a("v_mul_f32 v10, s9, v10")
    a("v_sub_f32 v10, 0, v10")
    a("v_mul_f32 v11, s10, v11")
    def cexp(dst, scale):
        t0, t1, t2 = 24, 25, 26
        if scale == 1:
            a(f"v_mov_b32 v{t0}, v10")
            a(f"v_mov_b32 v{t1}, v11")
        else:
            a(f"v_mul_f32 v{t0}, {f32hex(scale)}, v10")
            a(f"v_mul_f32 v{t1}, {f32hex(scale)}, v11")
        a(f"v_rndne_f32 v{t2}, v{t1}")
        a(f"v_exp_f32 v{t0}, v{t0}")
        a(f"v_sub_f32 v{t1}, v{t1}, v{t2}")
        a(f"v_cos_f32 v{t2}, v{t1}")
        a(f"v_sin_f32 v{t1}, v{t1}")
        a("s_nop 0")
        a(f"v_mul_f32 v{dst}, v{t0}, v{t2}")
        a(f"v_mul_f32 v{dst + 1}, v{t0}, v{t1}")
    cexp(18, 1)
    cexp(20, 8)
    cexp(22, 128)
    E1, E8, E128, C2 = 18, 20, 22, 16
    TMP = [24, 26, 28, 30]
    R = [32 + 2 * j for j in range(8)]
    EJ, YB = 48, 50
    CV = [52, 53, 54, 55]
    def wr_row(src, buf, row, negim, cv):
        neg = "-" if negim else ""
        a(f"v_cvt_pk_bf16_f32 v{cv}, v{src}, {neg}v{src + 1}")
        a(f"ds_write_addtid_b32 v{cv} offset:{buf * KG_BUF + row * 288}")

    a("v_mov_b32 v52, 0x3f80")
    a("ds_write_addtid_b32 v52 offset:0")
    wr_row(E8, 0, 1, True, 53)
    a(f"v_mov_b32 v{R[0]}, v{C2}")
    a(f"v_mov_b32 v{R[0] + 1}, v{C2 + 1}")
    ycur = E8
    for b in range(2, 16):
        if b == 3:
            scout(a, "K1")
        if b == 10:
            scout(a, "K2")
        src = ycur
        cmul_y = (YB, src, E8, TMP[0])
        if b - 1 <= 7:
            j = b - 1
            a(f"v_pk_mul_f32 v[{TMP[0]}:{TMP[0] + 1}], v[{src}:{src + 1}], v[{E8}:{E8 + 1}] op_sel:[0,0] op_sel_hi:[0,1]")
            a(f"v_pk_mul_f32 v[{TMP[1]}:{TMP[1] + 1}], v[{R[j - 1]}:{R[j - 1] + 1}], v[{E1}:{E1 + 1}] op_sel:[0,0] op_sel_hi:[0,1]")
            a(f"v_pk_fma_f32 v[{YB}:{YB + 1}], v[{src}:{src + 1}], v[{E8}:{E8 + 1}], v[{TMP[0]}:{TMP[0] + 1}] op_sel:[1,1,0] op_sel_hi:[1,0,1] neg_lo:[0,1,0]")
            a(f"v_pk_fma_f32 v[{R[j]}:{R[j] + 1}], v[{R[j - 1]}:{R[j - 1] + 1}], v[{E1}:{E1 + 1}], v[{TMP[1]}:{TMP[1] + 1}] op_sel:[1,1,0] op_sel_hi:[1,0,1] neg_lo:[0,1,0]")
            wr_row(R[j - 1], 1, j - 1, False, 54)
        else:
            cmul(a, YB, src, E8, TMP[0])
            j = b - 9
            if j == 0:
                wr_row(R[7], 1, 7, False, 54)
            cmul(a, R[j], R[j], E128, TMP[1])
            wr_row(R[j], 1, 8 + j, False, 54)
        wr_row(YB, 0, b, True, 53)
        ycur = YB
    cmul(a, R[7], R[7], E128, TMP[1])
    wr_row(R[7], 1, 15, False, 54)
    scout(a, "K3")
    YOP, XOP, ACC = 64, 80, 96
    a("s_waitcnt lgkmcnt(0)")
    for ks in range(4):
        a(f"ds_read_b128 v[{YOP + 4 * ks}:{YOP + 4 * ks + 3}], v7 offset:{64 * ks}")
    for ks in range(4):
        a(f"ds_read_b128 v[{XOP + 4 * ks}:{XOP + 4 * ks + 3}], v7 offset:{KG_BUF + 64 * ks}")
    for idx, j in enumerate([0, 2, 4, 6]):
        cmul(a, R[j], R[j], E128, TMP[idx % 4])
    a("s_waitcnt lgkmcnt(4)")
    for idx, j in enumerate([0, 2, 4, 6]):
        wr_row(R[j], 0, idx, False, CV[idx])
    for idx, j in enumerate([0, 2, 4, 6]):
        cmul(a, R[j], R[j], E128, TMP[idx % 4])
    a("s_waitcnt lgkmcnt(4)")
    for ks in range(4):
        c = "0" if ks == 0 else f"v[{ACC}:{ACC + 3}]"
        a(f"v_mfma_f32_16x16x32_bf16 v[{ACC}:{ACC + 3}], v[{XOP + 4 * ks}:{XOP + 4 * ks + 3}], v[{YOP + 4 * ks}:{YOP + 4 * ks + 3}], {c}")
    for idx, j in enumerate([0, 2, 4, 6]):
        wr_row(R[j], 0, 4 + idx, False, CV[idx])
    scout(a, "K4")
    for aa in range(4):
        for idx, j in enumerate([0, 4]):
            cmul(a, R[j], R[j], E128, TMP[idx])
        for idx, j in enumerate([0, 4]):
            wr_row(R[j], 0, 8 + 2 * aa + idx, False, CV[(2 * aa + idx) % 4])
    for aa in range(9):
        cmul(a, R[0], R[0], E128, TMP[aa % 2])
        wr_row(R[0], 1, aa, False, CV[aa % 4])
    a("s_waitcnt lgkmcnt(9)")
    for ks in range(4):
        a(f"ds_read_b128 v[{XOP + 4 * ks}:{XOP + 4 * ks + 3}], v7 offset:{64 * ks}")
    a("s_waitcnt lgkmcnt(0)")
    for ks in range(4):
        c = "0" if ks == 0 else f"v[{ACC + 4}:{ACC + 7}]"
        a(f"v_mfma_f32_16x16x32_bf16 v[{ACC + 4}:{ACC + 7}], v[{XOP + 4 * ks}:{XOP + 4 * ks + 3}], v[{YOP + 4 * ks}:{YOP + 4 * ks + 3}], {c}")
    XO2 = 108
    for ks in range(4):
        a(f"ds_read_b128 v[{XO2 + 4 * ks}:{XO2 + 4 * ks + 3}], v7 offset:{KG_BUF + 64 * ks}")
    a("s_waitcnt lgkmcnt(0)")
    for ks in range(4):
        c = "0" if ks == 0 else f"v[{ACC + 8}:{ACC + 11}]"
        a(f"v_mfma_f32_16x16x32_bf16 v[{ACC + 8}:{ACC + 11}], v[{XO2 + 4 * ks}:{XO2 + 4 * ks + 3}], v[{YOP + 4 * ks}:{YOP + 4 * ks + 3}], {c}")
    if KGREP:
        a("s_nop 7")
        a("s_nop 7")
        a("s_sub_u32 s68, s68, 1")
        a("s_cmp_gt_u32 s68, 0")
        a("s_cbranch_scc1 L_kg_again")
        a("s_memrealtime s[98:99]")
    scout(a, None)
    a("s_nop 7")
    a("s_nop 1")
    done = a.newlabel("kg_w0")
    a("s_cmp_eq_u32 s4, 0")
    a(f"s_cbranch_scc1 {done}")
    for t in range(3):
        a(f"ds_write_b128 v9, v[{ACC + 4 * t}:{ACC + 4 * t + 3}] offset:{1024 * t}")
    a("s_lshl_b32 s15, s67, 2")
    a(f"s_add_u32 s15, s15, {KG_CNT}")
    a("v_mov_b32 v10, s15")
    a("v_mov_b32 v11, 1")
    a("s_waitcnt lgkmcnt(0)")
    lds_signal(a, 10, 11)
    if STAMP:
        (stamp(a, 4) if not KGREP else None)
        (stamp(a, 5) if not KGREP else None)
        stamp_flush(a, 8, 0)
    a("s_endpgm")
    a.label(done)
    a("s_lshl_b32 s15, s67, 2")
    a(f"s_add_u32 s15, s15, {KG_CNT}")
    a("v_mov_b32 v10, s15")
    lds_wait_count(a, 10, 11, 14, 2, "kg_spin")
    (stamp(a, 4) if not KGREP else None)
    scout_entry(a, "F0")
    for wv in (1, 2):
        for t in range(3):
            a(f"ds_read_b128 v[{32 + 12 * (wv - 1) + 4 * t}:{35 + 12 * (wv - 1) + 4 * t}], v9 offset:{wv * KG_WAVE + 1024 * t}")
    a("s_waitcnt lgkmcnt(0)")
    for i in range(12):
        a(f"v_add_f32 v{ACC + i}, v{ACC + i}, v{32 + i}")
    for i in range(12):
        a(f"v_add_f32 v{ACC + i}, v{ACC + i}, v{44 + i}")
    a(f"v_add_f32 v{ACC}, v{ACC}, v15")
    for i in range(6):
        a(f"v_cvt_pk_bf16_f32 v{56 + i - 24}, v{ACC + 2 * i}, v{ACC + 2 * i + 1}")
    scout(a, "F1")
    a("ds_write_b16 v56, v32 offset:0")
    a("ds_write_b16_d16_hi v56, v32 offset:2")
    a("ds_write_b16 v56, v33 offset:4")
    a("ds_write_b16_d16_hi v56, v33 offset:6")
    a("ds_write_b16 v57, v34")
    a("ds_write_b16_d16_hi v58, v34")
    a("ds_write_b16 v59, v35")
    a("ds_write_b16_d16_hi v124, v35")
    a("ds_write_b16 v125, v36 offset:0")
    a("ds_write_b16_d16_hi v126, v36 offset:256")
    a("ds_write_b16 v126, v37 offset:512")
    a("ds_write_b16_d16_hi v126, v37 offset:768")
    a("s_waitcnt lgkmcnt(0)")
    SL = [40, 48, 64, 70]
    for s in range(4):
        a(f"ds_read_b128 v[{SL[s]}:{SL[s] + 3}], v9 offset:{1024 * s}")
        a(f"ds_read_b32 v{SL[s] + 4}, v9 offset:{1024 * s + 16}")
    a("s_waitcnt lgkmcnt(0)")
    def perm(d, s0, s1, sel):
        a(f"v_perm_b32 v{d}, v{s0}, v{s1}, {sel}")
    perm(76, 40, 40, "s12"); perm(77, 42, 41, "s13"); perm(78, 42, 42, "s12"); perm(79, 44, 43, "s13")
    for i in range(4):
        a(f"v_cndmask_b32 v{76 + i}, v{76 + i}, v{40 + i}, vcc")
    perm(80, 48, 48, "s12"); perm(81, 50, 48, "s13"); perm(82, 50, 50, "s12"); perm(83, 52, 52, "s12")
    for s_, o in ((2, 84), (3, 88)):
        d0, d4 = SL[s_], SL[s_] + 4
        perm(o, d0, d0, "s12"); perm(o + 1, d0, d0, "s12"); perm(o + 2, d4, d0, "v127"); perm(o + 3, d4, d4, "s12")
    scout(a, None)
    for s_, o in ((0, 76), (1, 80), (2, 84), (3, 88)):
        a(f"buffer_store_dwordx4 v[{o}:{o + 3}], v63, s[72:75], 0 offen offset:{1024 * s_}" + SC1K)
    if OPT_WB2:
        nw = a.newlabel("nowb2")
        a("s_cmp_lg_u32 s67, 0")
        a(f"s_cbranch_scc1 {nw}")
        a("s_lshr_b32 s14, s2, 3")
        a(f"s_cmp_lg_u32 s14, {OPT_WB2 - 1}")
        a(f"s_cbranch_scc1 {nw}")
        a("s_waitcnt vmcnt(0)")
        a("buffer_wbl2 sc1")
        a.label(nw)
    dbg_stamp(a, 1, 0, 60, 61)
    if STAMP:
        a("s_waitcnt vmcnt(0)")
        (stamp(a, 5) if not KGREP else None)
        stamp_flush(a, 8, 0)
    a("s_endpgm")


def f32hex(x):
    import struct
    return hex(struct.unpack("<I", struct.pack("<f", float(x)))[0])


def emit_prep(a):
    k = "prep_kernel"
    a.raw(f".globl {k}")
    a.raw(".p2align 8")
    a.raw(f".type {k},@function")
    a.label(k)
    a("s_cmp_ge_u32 s2, 256")
    a("s_cbranch_scc1 L_prep_exit")
    stamp(a, 0)
    load_kernargs(a)
    code_prefetch(a, "L_prep_exit", 120, 121)
    a("v_lshrrev_b32 v1, 6, v0")
    a("v_and_b32 v2, 63, v0")
    a("s_nop 0")
    a("v_readfirstlane_b32 s3, v1")
    a("s_mov_b32 s4, 0x9d7a6b85" if OPT_KFIRST else "s_mov_b32 s4, 0x9b436210")
    a("s_mov_b32 s5, 0x43c210" if OPT_KFIRST else "s_mov_b32 s5, 0xa7cd85")
    a("s_lshl_b32 s3, s3, 2")
    a("s_lshr_b64 s[4:5], s[4:5], s3")
    a("s_and_b32 s3, s4, 15")
    a("s_cmp_lt_u32 s3, 5")
    a("s_cbranch_scc1 L_tile")
    if NOKGEN:
        a("s_endpgm")
    a("s_setprio 3")
    emit_kgen_issue(a)
    a.label("L_tile")
    emit_tilewave(a)
    a.label("L_kgen")
    emit_kgen(a)
    a.label("L_prep_exit")
    a("s_endpgm")


class Lay:
    def __init__(self, name, half, tiles, jobs):
        self.name = name
        self.half = half
        self.tiles = list(tiles)
        self.jobs = jobs
        self.nslot = 8 * jobs
        self.ubytes = 2048 if half else 4096
        self.UP = self.ubytes + 512
        self.PO = self.ubytes + 64
        self.KP = 2 * self.PO
        self.merged = (jobs == 2 and not OPT_QT)
        self.YP = 4672 if self.merged else (2112 if OPT_QT or jobs == 2 else 2624)
        self.YT = 640 if self.YP == 2624 else 512
        self.YR = 40 if self.YP == 2624 else 32
        self.U0 = 0
        self.K0 = self.nslot * self.UP
        self.Y0 = self.K0 + self.nslot * self.KP
        self.end = self.Y0 + (8 if self.merged else self.nslot) * self.YP
        self.nd = self.ubytes // 1024


T1 = Lay("T1", False, range(4, 8), 1)
T2 = Lay("T2", True, range(0, 4), 2)
K2_LDS = max(T1.end, T2.end)
assert T1.K0 % 128 == 0 and T1.KP % 128 == 0 and T1.PO % 128 == 64
assert T2.K0 % 128 == 0 and T2.KP % 128 == 0 and T2.PO % 128 == 64

V_U, V_KB, V_YW, V_TR, V_OUT, V_Q, V_L16, V_T0, V_T1 = 4, 5, 9, 10, 11, 12, 13, 14, 15
V_ACC = 16
V_B = 48
V_QD = 32
V_E = 88
V_K0 = 2


class Stream:
    def __init__(self, a, max_out=14):
        self.a = a
        self.q = []
        self.n = 0
        self.max_out = max_out
        self.done = set()

    def ins(self, txt):
        self.a(txt)
        self.n += 1

    def lds(self, txt, tag):
        if len(self.q) >= self.max_out:
            keep = self.max_out - 1
            self._wait(keep)
        self.ins(txt)
        self.q.append(tag)

    def _wait(self, keep):
        if len(self.q) > keep:
            self.ins(f"s_waitcnt lgkmcnt({keep})")
            for t in self.q[:len(self.q) - keep]:
                self.done.add(t)
            self.q = self.q[len(self.q) - keep:]

    def need(self, tags):
        last = -1
        for i, t in enumerate(self.q):
            if t in tags:
                last = i
        if last >= 0:
            self._wait(len(self.q) - 1 - last)

    def pad_since(self, n0, states):
        k = states - (self.n - n0)
        while k > 0:
            c = min(k, 16)
            self.ins(f"s_nop {c - 1}")
            self.n += c - 1
            k -= c


def emit_conv_body(a, T):
    J = T.jobs
    a("s_lshl_b32 s8, s5, 3")
    a("s_add_u32 s8, s8, s3")
    a("s_mul_i32 s9, s4, 640")
    a("s_add_u32 s9, s9, s8")
    a("s_lshl_b32 s10, s8, 12")
    a("s_lshl_b32 s13, s9, 12")
    if T.half:
        a("s_add_u32 s13, s13, 2048")
    a(f"s_mul_i32 s70, s3, {T.UP}")
    a(f"s_mul_i32 s71, s3, {T.KP}")
    a(f"s_add_u32 s71, s71, {T.K0}")
    a(f"v_lshlrev_b32 v{V_L16}, 4, v1")
    a("v_and_b32 v88, 15, v1")
    a("v_lshrrev_b32 v89, 4, v1")
    a("v_lshlrev_b32 v90, 5, v88")
    a("v_lshlrev_b32 v91, 4, v89")
    a("v_sub_u32 v90, v91, v90")
    a("s_add_u32 s14, s70, 480")
    a(f"v_add_u32 v{V_U}, s14, v90")
    a("v_add_u32 v90, 1, v88")
    a("v_and_b32 v91, 1, v90")
    a("v_lshl_add_u32 v90, v89, 3, v90")
    a("v_lshrrev_b32 v90, 1, v90")
    a("v_lshlrev_b32 v90, 2, v90")
    a(f"v_mul_u32_u24 v91, {T.PO}, v91")
    a("v_add_u32 v90, v90, v91")
    a(f"v_add_u32 v{V_KB}, s71, v90")
    nkb = 2 if T.half else 4
    for kk in range(1, nkb):
        a(f"v_add_u32 v{V_KB + kk}, {1024 * kk}, v{V_KB}")
    if T.half:
        for kk in range(2):
            a(f"v_add_u32 v{V_KB + 2 + kk}, {8 * T.KP + 1024 * kk}, v{V_KB}")
    a(f"s_add_u32 s14, s70, {T.ubytes}")
    a("v_lshl_add_u32 v90, v1, 4, s14")
    a(f"s_sub_u32 s14, s71, {30 * 16}")
    a("v_lshl_add_u32 v91, v1, 4, s14")
    a(f"s_add_u32 s14, s71, {T.PO - 32 * 16}")
    a("v_lshl_add_u32 v92, v1, 4, s14")
    a("v_cmp_gt_u32 vcc, 32, v1")
    a(f"v_mov_b32 v93, {8 * T.KP}")
    a(f"v_mov_b32 v94, {8 * T.UP}")
    a("v_cndmask_b32 v91, v92, v91, vcc")
    a("v_cmp_gt_u32 vcc, 30, v1")
    for r in range(80, 84):
        a(f"v_mov_b32 v{r}, 0")
    a("v_cndmask_b32 v90, v91, v90, vcc")
    a("v_cndmask_b32 v93, v93, v94, vcc")
    a("s_mov_b32 exec_hi, 3")
    for j in range(J):
        a("ds_write_b128 v90, v[80:83]")
        if j + 1 < J:
            a("v_add_u32 v90, v90, v93")
    a("s_mov_b64 exec, -1")
    a(f"s_mul_i32 s14, s3, {T.YP}")
    a(f"s_add_u32 s14, s14, {T.Y0}")
    a("s_lshl_b32 s11, s5, 4")
    if not T.merged:
        a(f"v_mul_u32_u24 v90, {T.YR}, v88")
        a("v_lshl_add_u32 v90, v89, 3, v90")
        a(f"v_add_u32 v{V_YW}, s14, v90")
        if OPT_QT:
            a("v_lshlrev_b32 v90, 5, v88")
            a("v_lshl_add_u32 v90, v89, 3, v90")
        if OPT_QT:
            a(f"v_add_u32 v{V_Q}, s10, v90")
        a("s_and_b32 s12, s3, 3")
        a("v_bfe_u32 v90, v1, 2, 2")
        a(f"v_mul_u32_u24 v90, {T.YP}, v90")
        a("v_and_b32 v91, 3, v1")
        a("v_lshl_add_u32 v90, v91, 3, v90")
        a(f"v_mul_u32_u24 v91, {T.YR}, v89")
        a("v_add_u32 v90, v90, v91")
        a(f"s_mul_i32 s14, s12, {4 * T.YR}")
        a(f"s_add_u32 s14, s14, {T.Y0}")
        a(f"v_add_u32 v{V_TR}, s14, v90")
        a("s_lshl_b32 s14, s12, 6")
        a("v_add_u32 v90, s14, v1")
        if not OPT_QT:
            a(f"v_mul_u32_u24 v{V_Q}, 1280, v90")
            a(f"v_add_u32 v{V_Q}, s11, v{V_Q}")
        a(f"v_mul_u32_u24 v{V_OUT}, 2560, v90")
        a("s_mul_i32 s14, s4, 1280")
        a("s_add_u32 s14, s14, s11")
        a(f"v_add_u32 v{V_OUT}, s14, v{V_OUT}")
    else:
        a("v_mul_u32_u24 v90, 72, v88")
        a("v_lshl_add_u32 v90, v89, 4, v90")
        a(f"v_add_u32 v{V_YW}, s14, v90")
        a("v_bfe_u32 v90, v1, 2, 2")
        a(f"v_mul_u32_u24 v90, {T.YP}, v90")
        a("v_and_b32 v91, 3, v1")
        a("v_lshl_add_u32 v90, v91, 3, v90")
        a("v_lshrrev_b32 v91, 1, v89")
        a("v_mul_u32_u24 v91, 72, v91")
        a("v_add_u32 v90, v90, v91")
        a("v_and_b32 v91, 1, v89")
        a("v_lshl_add_u32 v90, v91, 5, v90")
        a("s_mul_i32 s14, s3, 144")
        a(f"s_add_u32 s14, s14, {T.Y0}")
        a(f"v_add_u32 v{V_TR}, s14, v90")
        a("s_lshl_b32 s14, s3, 5")
        a("v_lshrrev_b32 v90, 1, v1")
        a("v_add_u32 v90, s14, v90")
        a("v_and_b32 v91, 1, v1")
        a("v_lshlrev_b32 v91, 4, v91")
        a("v_add_u32 v91, s11, v91")
        a(f"v_mul_u32_u24 v{V_Q}, 1280, v90")
        a(f"v_add_u32 v{V_Q}, v{V_Q}, v91")
        a(f"v_mul_u32_u24 v{V_OUT}, 2560, v90")
        a(f"v_add_u32 v{V_OUT}, v{V_OUT}, v91")
        a("s_mul_i32 s14, s4, 1280")
        a(f"v_add_u32 v{V_OUT}, s14, v{V_OUT}")
    a(f"v_mov_b32 v{V_T0}, s71")
    a(f"s_mov_b32 s50, {WS_KA}")
    a("s_mov_b32 s51, 0x00020000")
    a(f"s_mov_b32 s54, {640 * 4096}")
    a("s_mov_b32 s55, 0x00020000")
    a("s_waitcnt lgkmcnt(0)")
    stamp(a, 1, True)
    if DBGT:
        nd = a.newlabel("nd")
        a("s_cmp_lg_u32 s2, 0")
        a(f"s_cbranch_scc1 {nd}")
        dbg_stamp(a, 2, 512, 86, 87)
        a.label(nd)
    a(f"s_mov_b32 s48, s{P_WS}")
    a(f"s_and_b32 s49, s{P_WS + 1}, 0xffff")
    a(f"s_add_u32 s6, s{P_WS}, {WS_KA}")
    a(f"s_addc_u32 s7, s{P_WS + 1}, 0")
    a("s_cmp_eq_u32 s4, 1")
    a(f"s_cselect_b32 s6, s{P_SSK}, s6")
    a(f"s_cselect_b32 s7, s{P_SSK + 1}, s7")
    a("s_mov_b32 s52, s6")
    a("s_and_b32 s53, s7, 0xffff")

    def dma_one(job, kind, kk):
        if kind == "U":
            src, srd, dst = f"s_add_u32 s15, s13, {job * 32768}", "s[48:51]", f"s_add_u32 m0, s70, {job * 8 * T.UP}"
        elif kind == "E":
            src, srd, dst = f"s_add_u32 s15, s10, {job * 32768}", "s[52:55]", f"s_add_u32 m0, s71, {job * 8 * T.KP + 32}"
        else:
            src, srd, dst = f"s_add_u32 s15, s10, {job * 32768 + 2}", "s[52:55]", f"s_add_u32 m0, s71, {job * 8 * T.KP + T.PO + 32}"
        return [src, dst, "s_nop 0", f"buffer_load_dwordx4 v{V_L16}, {srd}, s15 offen offset:{1024 * kk} lds"]

    if not T.half:
        order = [("U", 3), ("E", 3), ("O", 3), ("E", 2), ("O", 2), ("E", 1), ("O", 1), ("U", 2), ("E", 0), ("O", 0), ("U", 1), ("U", 0)]
        nfirst = 7
    else:
        order = [("U", 1), ("E", 1), ("O", 1), ("E", 0), ("O", 0), ("U", 0)]
        nfirst = 5
    xs = a.newlabel("xdma")
    a("s_cmp_ge_u32 s3, 4")
    a(f"s_cbranch_scc1 {xs}")
    for kind, kk in order[:nfirst]:
        for ln in dma_one(0, kind, kk):
            a(ln)
    a.label(xs)
    stamp(a, 2, True)
    for j in range(J):
        a(f"s_add_u32 s14, s10, {j * 32768}")
        a(f"s_load_dword s{72 + j}, s[6:7], s14")
    a("s_lshl_b32 s11, s8, 1")
    a("s_and_b32 s11, s11, 0xfffffffc")
    for j in range(J):
        a(f"s_add_u32 s14, s11, {16 * j}")
        a(f"s_load_dword s{76 + j}, s[{P_SSD}:{P_SSD + 1}], s14")
    if OPT_QT:
        a(f"s_add_u32 s56, s{P_WS}, {WS_QT}")
        a(f"s_addc_u32 s57, s{P_WS + 1}, 0")
        a("s_and_b32 s57, s57, 0xffff")
    else:
        a(f"s_mov_b32 s56, s{P_Q}")
        a(f"s_and_b32 s57, s{P_Q + 1}, 0xffff")
    a("s_mov_b32 s59, 0x00020000")
    make_srd(a, 60, P_OUT, L * 2560)
    a("s_cmp_eq_u32 s4, 1")
    a(f"s_cselect_b32 s58, {640 * 4096}, 0")
    if OPT_QT:
        a("s_cselect_b32 s69, 0, 0x3f803f80")
    else:
        a("s_cselect_b32 s69, 0, 0x3f800000")
        a("s_cselect_b32 s67, 0, 0x3f80")
        a("v_mov_b32 v86, 0xffff")
        a("v_mov_b32 v87, 0xffff0000")
    a("s_cmp_ge_u32 s3, 4")
    a(f"s_cbranch_scc1 L_{T.name}_Y")
    emit_conv_stream(a, T, 0, order, nfirst, dma_one)
    a.label(f"L_{T.name}_Y")
    emit_conv_stream(a, T, 1, order, nfirst, dma_one)


def emit_conv_stream(a, T, G, order, nfirst, dma_one):
    J = T.jobs
    st = Stream(a)
    vm = []
    k0_ready = [False]

    def make_k0():
        st.ins("s_waitcnt lgkmcnt(0)")
        for t in st.q:
            st.done.add(t)
        st.q = []
        st.ins("s_and_b32 s14, s8, 1")
        st.ins("s_lshl_b32 s14, s14, 4")
        for j in range(J):
            st.ins(f"s_lshl_b32 s{72 + j}, s{72 + j}, 16")
            st.ins(f"s_lshr_b32 s{76 + j}, s{76 + j}, s14")
            st.ins(f"s_lshl_b32 s{76 + j}, s{76 + j}, 16")
        st.ins("s_cmp_eq_u32 s4, 1")
        for j in range(J):
            st.ins(f"s_cselect_b32 s{76 + j}, s{76 + j}, 0")
        for j in range(J):
            st.ins(f"v_mov_b32 v{V_K0 + j}, s{72 + j}")
            st.ins(f"v_add_f32 v{V_K0 + j}, s{76 + j}, v{V_K0 + j}")
            st.ins(f"v_cvt_pk_bf16_f32 v{V_K0 + j}, v{V_K0 + j}, v{V_K0 + j}")
        k0_ready[0] = True

    def patch(j):
        if not k0_ready[0]:
            make_k0()
        st.lds(f"ds_write_b16 v{V_T0}, v{V_K0 + j} offset:{j * 8 * T.KP + 32}", ("patch", j, 0))
        st.lds(f"ds_write_b16 v{V_T0}, v{V_K0 + j} offset:{j * 8 * T.KP + T.PO + 30}", ("patch", j, 1))

    tiles = T.tiles
    nlo, nhi = tiles[0], tiles[-1]

    def phys(j, cp):
        if not T.half:
            return cp % 5
        return cp if j == 0 else (cp + 1)

    mf = []
    seen = set()
    for j in range(J):
        for m in range(0, nhi + 1):
            ns = list(range(nhi, max(m, nlo) - 1, -1))
            if m == 0 and j == 0 and OPT_NOUT:
                pairs = [(r, n) for n in ns for r in range(8)]
            else:
                pairs = [(r, n) for r in range(8) for n in ns]
            for r, n in pairs:
                cp = n - m
                first = (j, n) not in seen
                seen.add((j, n))
                mf.append(dict(rd=j, m=m, r=r, n=n, cp=cp, c=8 * cp + r, aslot=8 * phys(j, cp) + r, bslot=r,
                               first=first, atag=("A", j, 8 * cp + r), btag=("B", j, m, r)))
    nM = len(mf)
    loads = []
    have = set()
    last_use_a, last_use_b = {}, {}
    prev_last_b = {}
    lastb_by_tag = {}
    for i, x in enumerate(mf):
        lastb_by_tag[x['btag']] = i
    slot_prev_tag = {}
    for i, x in enumerate(mf):
        if x['btag'] not in have:
            have.add(x['btag'])
            pt = slot_prev_tag.get(x['bslot'])
            loads.append(dict(tag=x['btag'], kind='B', need=i, free=(lastb_by_tag[pt] if pt else -1), x=x))
            slot_prev_tag[x['bslot']] = x['btag']
        if x['atag'] not in have:
            have.add(x['atag'])
            loads.append(dict(tag=x['atag'], kind='A', need=i, free=last_use_a.get(x['aslot'], -1), x=x))
        last_use_a[x['aslot']] = i
    first_idx = {}
    for i, x in enumerate(mf):
        first_idx.setdefault(x['rd'], i)

    uoff0 = 1536 if T.half else 3584

    def src_pieces(ld):
        x = ld['x']
        j = x['rd']
        if ld['kind'] == 'B':
            gamma = 8 * x['m'] - x['r']
            lo = uoff0 - 64 * gamma
            hi = lo + 528 + 16
            return {("dma", j, "U", k_) for k_ in range(T.nd) if lo < 1024 * (k_ + 1) and hi > 1024 * k_}
        c = x['c']
        lo = 64 * c - 32
        hi = 64 * c + 96
        out = set()
        for k_ in range(T.nd):
            if lo < 1024 * (k_ + 1) and hi > 1024 * k_:
                out |= {("dma", j, "E", k_), ("dma", j, "O", k_)}
        if c == 0:
            out.add(("patched", j))
        return out

    landed = set()

    def vwait(tags):
        idx = [i for i, t in enumerate(vm) if t in tags and t not in landed]
        if not idx:
            return
        last = max(idx)
        keep = len(vm) - 1 - last
        st.ins(f"s_waitcnt vmcnt({keep})")
        for t in vm[:last + 1]:
            landed.add(t)

    def ensure(ld):
        need = src_pieces(ld)
        j = ld['x']['rd']
        if ("patched", j) in need:
            need.discard(("patched", j))
            if ("patched", j) not in landed:
                vwait({("dma", j, "E", 0)})
                patch(j)
                landed.add(("patched", j))
        for t in need:
            assert t in vm, ("DMA piece not issued before use", t, ld['x'])
        vwait(need)

    def available(ld):
        for t in src_pieces(ld):
            if t[0] != "patched" and t not in vm:
                return False
        return True

    def emit_load(ld):
        x = ld['x']
        j = x['rd']
        ensure(ld)
        if ld['kind'] == 'B':
            gamma = 8 * x['m'] - x['r']
            off = uoff0 - 64 * gamma + j * 8 * T.UP
            d = V_B + 4 * x['bslot']
            st.lds(f"ds_read_b128 v[{d}:{d + 3}], v{V_U} offset:{off}", ld['tag'])
        else:
            c = x['c']
            base = V_KB + (c >> 4) + (2 * j if T.half else 0)
            o = 16 * (c & 15)
            d = 4 * x['aslot']
            st.lds(f"ds_read2_b32 a[{d}:{d + 1}], v{base} offset0:{o} offset1:{o + 1}", (ld['tag'], 0))
            st.lds(f"ds_read2_b32 a[{d + 2}:{d + 3}], v{base} offset0:{o + 2} offset1:{o + 3}", ld['tag'])

    aux = {}

    def add_aux(i, fn):
        aux.setdefault(min(i, nM), []).append(fn)

    last_of_tile = {}
    for i, x in enumerate(mf):
        last_of_tile[(x['rd'], x['n'])] = i
    mf_pos = {}

    def vmem(lines, tag):
        for ln in lines:
            st.ins(ln)
        vm.append(tag)

    fillers = []

    def epi1(j, n, urgent):
        def fn():
            i = last_of_tile[(j, n)]
            ab = V_ACC + 4 * (n - nlo)
            qb = V_QD + 2 * (4 * j + n - nlo)
            u = 84
            pre = [f"v_or_b32 v{qb}, s69, v{qb}", f"v_or_b32 v{qb + 1}, s69, v{qb + 1}",
                   f"v_lshlrev_b32 v{u}, 16, v{qb}", f"v_and_b32 v{u + 1}, 0xffff0000, v{qb}",
                   f"v_lshlrev_b32 v{u + 2}, 16, v{qb + 1}", f"v_and_b32 v{u + 3}, 0xffff0000, v{qb + 1}"]
            post = [f"v_mul_f32 v{u}, v{u}, v{ab}", f"v_mul_f32 v{u + 1}, v{u + 1}, v{ab + 1}",
                    f"v_mul_f32 v{u + 2}, v{u + 2}, v{ab + 2}", f"v_mul_f32 v{u + 3}, v{u + 3}, v{ab + 3}",
                    f"v_cvt_pk_bf16_f32 v{u}, v{u}, v{u + 1}", f"v_cvt_pk_bf16_f32 v{u + 1}, v{u + 2}, v{u + 3}"]
            vwait({("q", j, n)})
            for t_ in pre:
                st.ins(t_)
            st.pad_since(mf_pos[i], 8)
            for t_ in post:
                st.ins(t_)
            st.lds(f"ds_write_b64 v{V_YW}, v[{u}:{u + 1}] offset:{j * 8 * T.YP + 512 * (n - nlo)}", ("Y", j, n))
        return fn

    cur = [0]

    def epi2(j, n):
        def fn():
            while fillers:
                fillers.pop(0)[1]()
            st.need({("Y", j, n)})
            st.ins("s_barrier")
            if ((n - nlo) & 1) != G:
                return
            o = j * 8 * T.YP + 512 * (n - nlo)
            t = V_E
            st.lds(f"ds_read_b64_tr_b16 v[{t}:{t + 1}], v{V_TR} offset:{o}", ("T", j, n, 0))
            st.lds(f"ds_read_b64_tr_b16 v[{t + 2}:{t + 3}], v{V_TR} offset:{o + 4 * T.YP}", ("T", j, n, 1))
            rdy = cur[0] + 4

            def fin():
                st.need({("T", j, n, 0), ("T", j, n, 1)})
                vmem([f"s_mov_b32 s68, {n * 256 * 2560 + j * 16}",
                      f"buffer_store_dwordx4 v[{t}:{t + 3}], v{V_OUT}, s[60:63], s68 offen" + OST], ("st", j, n))
            fillers.append((rdy, fin))
        return fn

    def gate_fillers(rdy, t, qb, waits):
        u = V_E + 4
        fillers.append((rdy, waits))
        seq = []
        for p in range(2):
            i0, i1 = 2 * p, 2 * p + 1
            seq += [f"v_and_or_b32 v{u}, v{qb + i0}, v86, s67",
                    f"v_and_or_b32 v{u + 1}, v{qb + i0}, v87, s69",
                    f"v_and_or_b32 v{u + 2}, v{qb + i1}, v86, s67",
                    f"v_and_or_b32 v{u + 3}, v{qb + i1}, v87, s69",
                    f"v_dot2_f32_bf16 v{u}, v{t + i0}, v{u}, 0",
                    f"v_dot2_f32_bf16 v{u + 1}, v{t + i0}, v{u + 1}, 0",
                    f"v_dot2_f32_bf16 v{u + 2}, v{t + i1}, v{u + 2}, 0",
                    f"v_dot2_f32_bf16 v{u + 3}, v{t + i1}, v{u + 3}, 0",
                    "s_nop 1",
                    f"v_cvt_pk_bf16_f32 v{t + i0}, v{u}, v{u + 1}",
                    f"v_cvt_pk_bf16_f32 v{t + i1}, v{u + 2}, v{u + 3}"]
        for txt in seq:
            fillers.append((rdy, (lambda txt: (lambda: st.ins(txt)))(txt)))

    def epi1_rows(j, n):
        def fn():
            i = last_of_tile[(j, n)]
            st.pad_since(mf_pos[i], 8)
            ab = V_ACC + 4 * (n - nlo)
            st.ins(f"v_cvt_pk_bf16_f32 v84, v{ab}, v{ab + 1}")
            st.ins(f"v_cvt_pk_bf16_f32 v85, v{ab + 2}, v{ab + 3}")
            if not T.merged:
                st.lds(f"ds_write_b64 v{V_YW}, v[84:85] offset:{j * 8 * T.YP + T.YT * (n - nlo)}", ("Y", j, n))
            else:
                o = 1152 * (n - nlo) + 2 * j
                st.lds(f"ds_write_b16 v{V_YW}, v84 offset:{o}", ("Y", j, n, 0))
                st.lds(f"ds_write_b16_d16_hi v{V_YW}, v84 offset:{o + 4}", ("Y", j, n, 1))
                st.lds(f"ds_write_b16 v{V_YW}, v85 offset:{o + 8}", ("Y", j, n, 2))
                st.lds(f"ds_write_b16_d16_hi v{V_YW}, v85 offset:{o + 12}", ("Y", j, n))
        return fn

    def epi2_rows(j, n):
        def fn():
            while fillers:
                fillers.pop(0)[1]()
            st.need({("Y", j, n)})
            st.ins("s_barrier")
            if not T.merged and ((n - nlo) & 1) != G:
                return
            t = V_E
            if not T.merged:
                o = j * 8 * T.YP + T.YT * (n - nlo)
                qtag = ("q", j, (n - nlo) >> 1)
                qb = V_QD + 4 * (2 * j + ((n - nlo) >> 1))
                soff = n * 256 * 2560 + j * 16
            else:
                o = 1152 * (n - nlo)
                qtag = ("q", 0, n - nlo)
                qb = V_QD + 4 * (n - nlo)
                soff = n * 256 * 2560
            st.lds(f"ds_read_b64_tr_b16 v[{t}:{t + 1}], v{V_TR} offset:{o}", ("T", j, n, 0))
            st.lds(f"ds_read_b64_tr_b16 v[{t + 2}:{t + 3}], v{V_TR} offset:{o + 4 * T.YP}", ("T", j, n, 1))
            rdy = cur[0] + 4

            def waits():
                vwait({qtag})
                st.need({("T", j, n, 0), ("T", j, n, 1)})
            gate_fillers(rdy, t, qb, waits)
            fillers.append((rdy, lambda: vmem([f"s_mov_b32 s68, {soff}",
                                               f"buffer_store_dwordx4 v[{t}:{t + 3}], v{V_OUT}, s[60:63], s68 offen" + OST], ("st", j, n))))
        return fn

    for k_, (kind, kk) in enumerate(order[nfirst:]):
        add_aux(1 + 3 * k_, (lambda kind, kk: (lambda: vmem(dma_one(0, kind, kk), ("dma", 0, kind, kk))))(kind, kk))
    rest0 = len(order) - nfirst
    for j in range(1, J):
        start = first_idx[j - 1] + 12
        for k_, (kind, kk) in enumerate(order):
            add_aux(start + 5 * k_, (lambda j, kind, kk: (lambda: vmem(dma_one(j, kind, kk), ("dma", j, kind, kk))))(j, kind, kk))
    if OPT_QT:
        for j in range(J):
            for n in tiles:
                at = first_idx[j] + (2 + 3 * rest0 if j == 0 else -24) + 2 * (n - nlo)

                def mkq(j, n):
                    def fn():
                        r0 = V_QD + 2 * (4 * j + n - nlo)
                        vmem([f"s_mov_b32 s14, {n * 512 + j * 32768}",
                              f"buffer_load_dwordx2 v[{r0}:{r0 + 1}], v{V_Q}, s[56:59], s14 offen"], ("q", j, n))
                    return fn
                add_aux(at, mkq(j, n))

        for j in range(J):
            for n in tiles:
                i = last_of_tile[(j, n)]
                last_in_job = (n == nhi and j + 1 < J)
                add_aux(i + 1 + (0 if last_in_job else 2), epi1(j, n, last_in_job))
                add_aux(i + 1 + 8, epi2(j, n))

    else:
        if T.merged:
            qlist = [(0, k_, nlo + k_, 0) for k_ in range(4)]
        else:
            qlist = [(0, qi, nlo + 2 * qi + G, qi) for qi in range(2)]
        for k_, (tj, ti, tile, ri) in enumerate(qlist):
            at = first_idx[0] + 2 + 3 * rest0 + ((QSTART + QSTEP * k_) if not T.merged else (QSTART_M + QSTEP_M * k_))

            def mkq(tj, ti, tile, k_):
                def fn():
                    r0 = V_QD + 4 * k_
                    vmem([f"s_mov_b32 s14, {tile * 256 * 1280}",
                          f"buffer_load_dwordx4 v[{r0}:{r0 + 3}], v{V_Q}, s[56:59], s14 offen"], ("q", tj, ti))
                return fn
            add_aux(at, mkq(tj, ti, tile, k_))
        for j in range(J):
            for n in tiles:
                i = last_of_tile[(j, n)]
                last_in_job = (n == nhi and j + 1 < J)
                add_aux(i + 1 + (0 if last_in_job else 4), epi1_rows(j, n))
                if T.merged and j == 0:
                    continue
                add_aux(i + 1 + 9, epi2_rows(j, n))

    stamp(a, 4, True)
    qa = [ld for ld in loads if ld['kind'] == 'A']
    qb_ = [ld for ld in loads if ld['kind'] == 'B']
    issued = set()
    issue_at = {}
    for j in range(1, J):
        for k_, (kind, kk) in enumerate(order):
            issue_at[("dma", j, kind, kk)] = first_idx[j - 1] + 12 + 5 * k_
    for k_, (kind, kk) in enumerate(order):
        issue_at[("dma", 0, kind, kk)] = -60 if k_ < nfirst else 1 + 3 * (k_ - nfirst) - 20

    def hint(t, i):
        return t in issue_at and i - issue_at[t] > 40

    def next_free(q, i):
        for ld in q:
            if id(ld) in issued:
                continue
            if ld['free'] < i and available(ld):
                if all((t in landed or t[0] == "patched" or ld['need'] - i < 24 or hint(t, i)) for t in src_pieces(ld)):
                    return ld
        return None

    def issue_loads(i, budget):
        cnt = 0
        while cnt < budget:
            cb_ = next_free(qb_, i) if len(st.q) + 1 <= st.max_out else None
            ca_ = next_free(qa, i) if len(st.q) + 2 <= st.max_out else None
            cand = None
            if cb_ is not None and (ca_ is None or cb_['need'] <= ca_['need']):
                cand = cb_
            elif ca_ is not None:
                cand = ca_
            if cand is None:
                break
            emit_load(cand)
            issued.add(id(cand))
            cnt += 2 if cand['kind'] == 'A' else 1
        return cnt

    if G == 1:
        a("s_barrier")
        for kind, kk in order[:nfirst]:
            for ln in dma_one(0, kind, kk):
                a(ln)
    if G == 1 and OPT_CPF and OPT_PF:
        nocp = a.newlabel("nocp")
        a("s_cmp_lg_u32 s3, 7")
        a(f"s_cbranch_scc1 {nocp}")
        lab = a.newlabel("pc")
        a("s_getpc_b64 s[82:83]")
        a.label(lab)
        a("v_lshlrev_b32 v94, 7, v1")
        a(f"v_min_u32 v94, L_end_{T.name}-{lab}-4, v94")
        a("global_load_dword v95, v94, s[82:83]")
        a.label(nocp)
    for kind, kk in order[:nfirst]:
        vm.append(("dma", 0, kind, kk))
    first = True
    for i, x in enumerate(mf):
        cur[0] = i
        if G == 0 and i == 1:
            st.ins("s_barrier")
        if STAMP and STEPSTAMP < 0 and i == 64:
            stamp(a, 6, True)
        if STAMP and STEPSTAMP >= 0 and x['rd'] == STEPSTAMP and (i == 0 or mf[i - 1]['m'] != x['m'] or mf[i - 1]['rd'] != x['rd']):
            a(f"s_memtime s[{ST0 + 2 * x['m']}:{ST0 + 2 * x['m'] + 1}]")
        for fn in aux.get(i, []):
            fn()
        for q_ in (qb_, qa):
            for ld in q_:
                if ld['need'] <= i and id(ld) not in issued:
                    emit_load(ld)
                    issued.add(id(ld))
        if first:
            stamp(a, 5, True)
            first = False
        nl = issue_loads(i, 4 if x['m'] == 0 else 2)
        nf = 0
        while fillers and fillers[0][0] <= i and nf < (3 if nl < 2 else 2):
            fillers.pop(0)[1]()
            nf += 1
        st.need({x['atag'], x['btag']})
        ab = V_ACC + 4 * (x['n'] - nlo)
        src_c = "0" if x['first'] else f"v[{ab}:{ab + 3}]"
        bs = V_B + 4 * x['bslot']
        st.ins(f"v_mfma_f32_16x16x32_bf16 v[{ab}:{ab + 3}], a[{4 * x['aslot']}:{4 * x['aslot'] + 3}], v[{bs}:{bs + 3}], {src_c}")
        mf_pos[i] = st.n
    stamp(a, 7, True)
    cur[0] = nM
    for fn in aux.get(nM, []):
        fn()
    while fillers:
        fillers.pop(0)[1]()
    dbg_stamp(a, 3, 512, 86, 87)
    if STAMP:
        stamp_flush(a, 8, 1)
    if G == 1:
        a.label(f"L_end_{T.name}")
    a("s_endpgm")


def emit_conv(a):
    k = "conv_kernel"
    a.raw(f".globl {k}")
    a.raw(".p2align 8")
    a.raw(f".type {k},@function")
    a.label(k)
    a("s_cmp_ge_u32 s2, 240")
    a("s_cbranch_scc1 L_conv_exit")
    stamp(a, 0, True)
    load_kernargs(a)
    if not OPT_CPF:
        code_prefetch(a, "L_conv_exit", 94, 95)
    a("v_lshrrev_b32 v2, 6, v0")
    a("v_and_b32 v1, 63, v0")
    a("s_and_b32 s6, s2, 7")
    a("v_readfirstlane_b32 s3, v2")
    a("s_lshr_b32 s7, s2, 3")
    a("s_mul_i32 s5, s6, 10")
    a("s_cmp_ge_u32 s7, 20")
    a("s_cbranch_scc1 L_T2")
    a("s_cmp_ge_u32 s7, 10")
    a("s_cselect_b32 s4, 1, 0")
    a("s_mul_i32 s8, s4, 10")
    a("s_sub_u32 s7, s7, s8")
    a("s_add_u32 s5, s5, s7")
    emit_conv_body(a, T1)
    a.label("L_T2")
    a("s_sub_u32 s7, s7, 20")
    a("s_cmp_ge_u32 s7, 5")
    a("s_cselect_b32 s4, 1, 0")
    a("s_mul_i32 s8, s4, 5")
    a("s_sub_u32 s7, s7, s8")
    a("s_lshl_b32 s7, s7, 1")
    a("s_add_u32 s5, s5, s7")
    emit_conv_body(a, T2)
    a.label("L_conv_exit")
    a("s_endpgm")


def kd(name, vgpr, sgpr, accum):
    return f""".amdhsa_kernel {name}
  .amdhsa_next_free_vgpr {vgpr}
  .amdhsa_next_free_sgpr {sgpr}
  .amdhsa_accum_offset {accum}
  .amdhsa_group_segment_fixed_size 0
  .amdhsa_kernarg_size 128
  .amdhsa_user_sgpr_count 2
  .amdhsa_user_sgpr_kernarg_segment_ptr 1
  .amdhsa_system_sgpr_workgroup_id_x 1
.end_amdhsa_kernel
"""


HEADER = open("cdna_kernels/" + NAME + ".s.ref").read().split("; Override launch geometry")[0]


def build():
    a = Asm()
    a.raw(HEADER.rstrip("\n"))
    a.raw(f"; @launch kernel=prep_kernel grid=(256,1,1) block=(896,1,1) lds={K1_LDS}")
    a.raw(f"; @launch kernel=conv_kernel grid=(240,1,1) block=(512,1,1) lds={K2_LDS}")
    a.raw('.amdgcn_target "amdgcn-amd-amdhsa--gfx950"')
    a.raw(".text")
    emit_prep(a)
    emit_conv(a)
    a.raw('.section .rodata,"a"')
    a.raw(".p2align 6")
    a.raw(kd("prep_kernel", 128, 102 if (STAMP or DBGT) else 80, 128))
    a.raw(".p2align 6")
    a.raw(kd("conv_kernel", 256, 102 if (STAMP or DBGT) else 84, 96))
    return a.text()


if __name__ == "__main__":
    out = sys.argv[1] if len(sys.argv) > 1 else "cdna_kernels/" + NAME + ".s"
    open(out, "w").write(build())
    print("wrote", out)
```

```python
import sys

NAME = "concat_heads__ssm_conv_s4d__ssm_conv_h3__prompt"

L = 2048
D = 640
NM = 192
ROWB = 1280
TENS = L * ROWB

WS_UT = 0
WS_KA = 1280 * 4096
WS_QT = WS_KA + 640 * 4096
WS_END = WS_QT + 640 * 4096

P_U, P_LOGA, P_AIM, P_CR, P_CI, P_LDT, P_DSK, P_Q, P_K, P_V, P_SHK, P_SSK, P_SSD, P_OUT, P_DBG, P_WS = [16 + 2 * i for i in range(16)]


import os
STAMP = bool(int(os.environ.get("STAMP", "0")))
STEPSTAMP = int(os.environ.get("STEPSTAMP", "-1"))
OPT_PRIO = int(os.environ.get("OPT_PRIO", "0"))
OPT_YLATE = int(os.environ.get("OPT_YLATE", "1"))
EPI_T2 = int(os.environ.get("EPI_T2", "60"))
EPI_T2_STEP = int(os.environ.get("EPI_T2_STEP", "10"))
OPT_NOUT = int(os.environ.get("OPT_NOUT", "1"))
DBGT = int(os.environ.get("DBGT", "0"))
OPT_QT = int(os.environ.get("OPT_QT", "0"))
QSTART = int(os.environ.get("QSTART", "4"))
QSTEP = int(os.environ.get("QSTEP", "6"))
QSTART_M = int(os.environ.get("QSTART_M", "44"))
QSTEP_M = int(os.environ.get("QSTEP_M", "8"))
OPT_WB = int(os.environ.get("OPT_WB", "0"))
OPT_KFIRST = int(os.environ.get("OPT_KFIRST", "0"))
OPT_WB2 = int(os.environ.get("OPT_WB2", "0"))
OPT_OST = int(os.environ.get("OPT_OST", "0"))
OPT_NT = int(os.environ.get("OPT_NT", "0"))
OPT_MPF_WHAT = int(os.environ.get("OPT_MPF_WHAT", "3"))
OPT_REV = int(os.environ.get("OPT_REV", "0"))
NFR = int(os.environ.get("NFR", "6"))
OPT_WB3 = int(os.environ.get("OPT_WB3", "0"))
LB = int(os.environ.get("LB", "2"))
LB0 = int(os.environ.get("LB0", "4"))
MAXOUT = int(os.environ.get("MAXOUT", "14"))
HINT = int(os.environ.get("HINT", "40"))
NOPO = int(os.environ.get("NOPO", "0"))
HALFA = int(os.environ.get("HALFA", "0"))
FINE = int(os.environ.get("FINE", "0"))
OPT_SPLIT = int(os.environ.get("OPT_SPLIT", "3"))
OPT_T2F = int(os.environ.get("OPT_T2F", "1"))
OPT_TRIM = int(os.environ.get("OPT_TRIM", "1"))
OPT_SC1 = int(os.environ.get("OPT_SC1", "1"))
OPT_SKEW = int(os.environ.get("OPT_SKEW", "1"))
OPT_CPF = int(os.environ.get("OPT_CPF", "1"))
OPT_MPF = int(os.environ.get("OPT_MPF", "0"))
OPT_XMAP = int(os.environ.get("OPT_XMAP", "0"))
OPT_SCOUT = int(os.environ.get("OPT_SCOUT", "0"))
KGREP = int(os.environ.get("KGREP", "0"))
NOKGEN = int(os.environ.get("NOKGEN", "0"))
OPT_PF = int(os.environ.get("OPT_PF", "1"))
OPT_RBM = int(os.environ.get("OPT_RBM", "0"))
OPT_LATE = int(os.environ.get("OPT_LATE", "0"))


def code_prefetch(a, endlabel, vtmp, vdst):
    if not OPT_PF:
        return
    lab = a.newlabel("pc")
    a("s_getpc_b64 s[10:11]")
    a.label(lab)
    a(f"v_lshlrev_b32 v{vtmp}, 7, v0")
    a(f"v_min_u32 v{vtmp}, {endlabel}-{lab}-4, v{vtmp}")
    a(f"global_load_dword v{vdst}, v{vtmp}, s[10:11]")


WS_STAMP = 16 << 20
ST0 = 84


def stamp(a, i, k2=False):
    if STAMP and not (k2 and STEPSTAMP >= 0) and not (k2 and FINE and i > 0):
        a(f"s_memrealtime s[{ST0 + 2 * i}:{ST0 + 2 * i + 1}]")


def stamp_flush(a, n, kern):
    if not STAMP:
        return
    a("s_waitcnt lgkmcnt(0)")
    make_srd(a, 76, P_WS, WS_STAMP + (4 << 20))
    a("s_lshl_b32 s80, s2, 4")
    a("s_add_u32 s80, s80, s3")
    a("s_lshl_b32 s80, s80, 5")
    a(f"s_add_u32 s80, s80, {WS_STAMP + kern * (1 << 20)}")
    a("s_mov_b64 exec, 1")
    a("v_mov_b32 v250, s80" if False else "v_mov_b32 v9, s80")
    for i in range(n):
        a(f"v_mov_b32 v8, s{ST0 + 2 * i}")
        a(f"buffer_store_dword v8, v9, s[76:79], 0 offen offset:{4 * i}")
    a("s_mov_b64 exec, -1")


SC1 = {0: "", 1: " sc1", 2: " nt", 3: " sc0", 4: " sc0 sc1", 5: " sc1 nt", 6: " sc1"}[OPT_SC1]
SC1K = "" if OPT_SC1 == 6 else SC1


def dbg_stamp(a, slot, back, vA=60, vB=61):
    if not DBGT:
        return
    a("s_memrealtime s[90:91]")
    a("s_waitcnt lgkmcnt(0)")
    a(f"s_sub_u32 s92, s{P_DBG}, {back}")
    a(f"s_subb_u32 s93, s{P_DBG + 1}, 0")
    a(f"v_mov_b32 v{vA}, {4 * slot}")
    a(f"v_mov_b32 v{vB}, s90")
    a("s_mov_b64 s[94:95], exec")
    a("s_mov_b64 exec, 1")
    a(f"global_atomic_umax v{vA}, v{vB}, s[92:93]")
    a("s_mov_b64 exec, s[94:95]")


OST = {0: "", 1: " sc1", 2: " nt", 3: " sc0 sc1", 4: " sc1 nt"}[OPT_OST]


NT1 = " nt" if OPT_NT & 1 else ""
NT2 = " nt" if OPT_NT & 2 else ""


class Asm:
    def __init__(self):
        self.lines = []
        self.nlab = 0

    def __call__(self, s):
        s = s.replace(" lds nt", " nt lds")
        self.lines.append("    " + s)

    def raw(self, s):
        self.lines.append(s)

    def label(self, s):
        self.lines.append(s + ":")

    def c(self, s):
        self.lines.append("    ; " + s)

    def newlabel(self, base):
        self.nlab += 1
        return f"L_{base}_{self.nlab}"

    def text(self):
        return "\n".join(self.lines) + "\n"


def vr(i, n=1):
    return f"v{i}" if n == 1 else f"v[{i}:{i + n - 1}]"


def ar(i, n=1):
    return f"a{i}" if n == 1 else f"a[{i}:{i + n - 1}]"


def sr(i, n=1):
    return f"s{i}" if n == 1 else f"s[{i}:{i + n - 1}]"


def make_srd(a, dst, ptr, nbytes):
    a(f"s_mov_b32 s{dst}, s{ptr}")
    a(f"s_and_b32 s{dst + 1}, s{ptr + 1}, 0xffff")
    a(f"s_mov_b32 s{dst + 2}, {nbytes}")
    a(f"s_mov_b32 s{dst + 3}, 0x00020000")


def load_kernargs(a):
    a("s_load_dwordx16 s[16:31], s[0:1], 0")
    a("s_load_dwordx16 s[32:47], s[0:1], 64")


TW_RAWK = 0
TW_RAWV = 12288
TW_RAWU = TW_RAWV + 10240
TW_RAWQ = TW_RAWU + 10240
TW_STG = TW_RAWQ + (10240 if OPT_QT else 0)
KG_OFF = TW_STG + 5 * 5120
KG_CNT = KG_OFF + 9 * 9216
K1_LDS = KG_CNT + 64


def lds_signal(a, addr_v, one_v):
    a("s_mov_b64 exec, 1")
    a(f"ds_add_u32 v{addr_v}, v{one_v}")
    a("s_mov_b64 exec, -1")


def lds_wait_count(a, addr_v, tmp_v, tmp_s, count, name):
    spin = a.newlabel(name)
    a.label(spin)
    a(f"ds_read_b32 v{tmp_v}, v{addr_v}")
    a("s_waitcnt lgkmcnt(0)")
    a(f"v_readfirstlane_b32 s{tmp_s}, v{tmp_v}")
    a(f"s_cmp_lt_u32 s{tmp_s}, {count}")
    a(f"s_cbranch_scc1 {spin}")


def emit_mpf(a):
    nopf = a.newlabel("nopf")
    if OPT_QT:
        a("s_cmp_ge_u32 s3, 2")
        a(f"s_cbranch_scc1 {nopf}")
        a(f"s_mov_b32 s68, s{P_SSK}")
        a(f"s_mov_b32 s69, s{P_SSK + 1}")
    else:
        a("s_cmp_ge_u32 s3, 4")
        a(f"s_cbranch_scc1 {nopf}")
        a("s_cmp_ge_u32 s3, 2")
        a(f"s_cselect_b32 s68, s{P_Q}, s{P_SSK}")
        a(f"s_cselect_b32 s69, s{P_Q + 1}, s{P_SSK + 1}")
    a("s_and_b32 s69, s69, 0xffff")
    a(f"s_mov_b32 s70, {TENS}")
    a("s_mov_b32 s71, 0x00020000")
    a("s_mul_i32 s15, s2, 10240")
    a("s_and_b32 s14, s3, 1")
    a("s_lshl_b32 s14, s14, 13")
    a("s_add_u32 s15, s15, s14")
    a("v_lshlrev_b32 v39, 7, v2")
    a("v_add_u32 v39, s15, v39")
    a("s_and_b32 s14, s3, 1")
    a("s_cmp_eq_u32 s14, 1")
    a("s_cselect_b32 exec_lo, 0xffff, -1")
    a("s_cselect_b32 exec_hi, 0, -1")
    a("buffer_load_dword v45, v39, s[68:71], 0 offen")
    a("s_mov_b64 exec, -1")
    a.label(nopf)
    if OPT_CPF:
        nocp = a.newlabel("nocp")
        a("s_cmp_lg_u32 s3, 4")
        a(f"s_cbranch_scc1 {nocp}")
        a("s_cmp_ge_u32 s2, 8")
        a(f"s_cbranch_scc1 {nocp}")
        lab = a.newlabel("pc")
        a("s_getpc_b64 s[68:69]")
        a.label(lab)
        a("v_lshlrev_b32 v39, 7, v2")
        a(f"v_add_u32 v39, conv_kernel-{lab}, v39")
        for k_ in range(3):
            a(f"v_min_u32 v46, L_conv_exit-{lab}, v39")
            a("global_load_dword v45, v46, s[68:69]")
            a("v_add_u32 v39, 8192, v39")
        a.label(nocp)


def emit_mpf_kgen(a):
    nopf = a.newlabel("nopf")
    what = OPT_MPF_WHAT if OPT_MPF == 2 else 0
    if what == 0:
        a(f"s_branch {nopf}")
    a("s_cmp_lg_u32 s4, 1")
    a(f"s_cbranch_scc1 {nopf}")
    if what == 3:
        a("s_cmp_ge_u32 s67, 2")
        a(f"s_cbranch_scc1 {nopf}")
    else:
        a(f"s_cmp_lg_u32 s67, {0 if what == 1 else 1}")
        a(f"s_cbranch_scc1 {nopf}")
    a("s_cmp_eq_u32 s67, 1")
    a(f"s_cselect_b32 s68, s{P_Q}, s{P_SSK}")
    a(f"s_cselect_b32 s69, s{P_Q + 1}, s{P_SSK + 1}")
    a("s_and_b32 s69, s69, 0xffff")
    a(f"s_mov_b32 s70, {TENS}")
    a("s_mov_b32 s71, 0x00020000")
    a("s_mul_i32 s15, s2, 10240")
    a("v_lshlrev_b32 v60, 7, v2")
    a("v_add_u32 v60, s15, v60")
    a("buffer_load_dword v56, v60, s[68:71], 0 offen")
    a("s_mov_b32 exec_lo, 0xffff")
    a("s_mov_b32 exec_hi, 0")
    a("v_add_u32 v60, 8192, v60")
    a("buffer_load_dword v57, v60, s[68:71], 0 offen")
    a("s_mov_b64 exec, -1")
    a.label(nopf)
    if OPT_CPF:
        nocp = a.newlabel("nocp")
        a("s_cmp_lg_u32 s4, 2")
        a(f"s_cbranch_scc1 {nocp}")
        a("s_cmp_lg_u32 s67, 0")
        a(f"s_cbranch_scc1 {nocp}")
        a("s_cmp_ge_u32 s2, 8")
        a(f"s_cbranch_scc1 {nocp}")
        lab = a.newlabel("pc")
        a("s_getpc_b64 s[68:69]")
        a.label(lab)
        a("v_lshlrev_b32 v60, 7, v2")
        a(f"v_add_u32 v60, conv_kernel-{lab}, v60")
        for k_ in range(3):
            a(f"v_min_u32 v61, L_conv_exit-{lab}, v60")
            a(f"global_load_dword v{57 + k_}, v61, s[68:69]")
            a("v_add_u32 v60, 8192, v60")
        a.label(nocp)


def emit_tilewave(a):
    a.c("---- tile waves: workgroup tile = 32 rows x 160 channels of u, k, v ; wave w owns 32 channels ----")
    if OPT_XMAP:
        a("s_lshr_b32 s7, s2, 5")
        a("s_lshl_b32 s7, s7, 3")
        a("s_and_b32 s8, s2, 7")
        a("s_add_u32 s8, s8, s7")
        a("s_bfe_u32 s7, s2, 0x20003")
    else:
        a("s_lshr_b32 s8, s2, 2")
        a("s_and_b32 s7, s2, 3")
    a("s_mul_i32 s9, s8, 40960")
    a("s_mul_i32 s10, s7, 320")
    a("s_add_u32 s9, s9, s10")
    a("s_lshl_b32 s11, s3, 6")
    a("s_add_u32 s10, s10, s11")
    a("s_lshl_b32 s12, s3, 6")
    a("v_add_u32 v3, s12, v2")
    a("v_mul_u32_u24 v4, 52429, v3")
    a("v_lshrrev_b32 v4, 20, v4")
    a("v_mul_u32_u24 v5, 20, v4")
    a("v_sub_u32 v5, v3, v5")
    a("v_mul_u32_u24 v6, 1280, v4")
    a("v_lshl_add_u32 v6, v5, 4, v6")
    a("v_add_u32 v5, s9, v6")
    a("v_add_u32 v6, 20480, v5")
    a("v_subrev_u32 v7, 5120, v5")
    a("s_lshl_b32 s12, s3, 10")
    a("s_waitcnt lgkmcnt(0)")
    stamp(a, 1)
    if DBGT:
        nd = a.newlabel("nd")
        a("s_cmp_lg_u32 s2, 0")
        a(f"s_cbranch_scc1 {nd}")
        dbg_stamp(a, 0, 0, 60, 61)
        a.label(nd)
    make_srd(a, 48, P_U, TENS)
    make_srd(a, 52, P_K, TENS)
    make_srd(a, 56, P_V, TENS)
    make_srd(a, 60, P_SHK, 640 * 8)
    if OPT_QT:
        make_srd(a, 72, P_Q, TENS)
    a("v_bfe_u32 v8, v2, 4, 1")
    a("v_and_b32 v10, 15, v2")
    a("v_lshl_add_u32 v11, v8, 4, v10")
    a("s_lshl_b32 s13, s10, 2")
    a("v_lshl_add_u32 v12, v11, 3, s13")
    a("s_barrier")
    a("buffer_load_dwordx2 v[40:41], v12, s[60:63], 0 offen")
    a(f"s_add_u32 m0, s12, {TW_RAWK + 1280}")
    a("s_nop 0")
    a("buffer_load_dwordx4 v5, s[52:55], 0 offen lds" + NT1)
    a(f"s_add_u32 m0, s12, {TW_RAWK + 1280 + 5120}")
    a("s_nop 0")
    a("buffer_load_dwordx4 v6, s[52:55], 0 offen lds" + NT1)
    nohalo = a.newlabel("nohalo")
    a("s_cmp_gt_u32 s3, 1")
    a(f"s_cbranch_scc1 {nohalo}")
    a("s_cmp_eq_u32 s3, 0")
    a("s_cselect_b32 exec_hi, -1, 0")
    a("s_cselect_b32 exec_lo, -1, 0xffff")
    a(f"s_add_u32 m0, s12, {TW_RAWK}")
    a("s_nop 0")
    a("buffer_load_dwordx4 v7, s[52:55], 0 offen lds" + NT1)
    a("s_mov_b64 exec, -1")
    a.label(nohalo)
    for srd, base in (((56, TW_RAWV), (48, TW_RAWU), (72, TW_RAWQ)) if OPT_QT else ((56, TW_RAWV), (48, TW_RAWU))):
        a(f"s_add_u32 m0, s12, {base}")
        a("s_nop 0")
        a(f"buffer_load_dwordx4 v5, s[{srd}:{srd + 3}], 0 offen lds" + NT1)
        a(f"s_add_u32 m0, s12, {base + 5120}")
        a("s_nop 0")
        a(f"buffer_load_dwordx4 v6, s[{srd}:{srd + 3}], 0 offen lds" + NT1)
    stamp(a, 2)
    a("v_lshrrev_b32 v3, 2, v2")
    a("v_and_b32 v4, 3, v2")
    a("v_bfe_u32 v8, v2, 4, 1")
    a("v_lshrrev_b32 v9, 5, v2")
    a("v_and_b32 v10, 15, v2")
    a("v_lshl_add_u32 v11, v8, 4, v10")
    make_srd(a, 64, P_WS, WS_END)
    a("v_and_b32 v13, 3, v3")
    a("v_sub_u32 v13, 3, v13")
    a("v_lshl_add_u32 v13, v9, 2, v13")
    a("v_mul_u32_u24 v13, 320, v13")
    a("v_lshl_add_u32 v13, v8, 5, v13")
    a("v_lshl_add_u32 v13, v4, 3, v13")
    a("v_add_u32 v13, s11, v13")
    a("s_mul_i32 s12, s3, 5120")
    a(f"s_add_u32 s12, s12, {TW_STG}")
    a("v_mul_u32_u24 v14, 80, v11")
    a("v_lshlrev_b32 v15, 3, v9")
    a("v_sub_u32 v14, v14, v15")
    a("s_add_u32 s13, s12, 8")
    a("v_add_u32 v14, s13, v14")
    a("v_mul_u32_u24 v15, 80, v3")
    a("v_lshl_add_u32 v15, v4, 4, v15")
    a("v_add_u32 v15, s12, v15")
    a("s_lshl_b32 s13, s10, 11")
    a("s_lshl_b32 s14, s8, 6")
    a("s_sub_u32 s13, s13, s14")
    a("s_add_u32 s13, s13, 4032")
    a("v_lshlrev_b32 v16, 12, v3")
    a("v_lshl_add_u32 v16, v4, 4, v16")
    a("v_add_u32 v16, s13, v16")
    a(f"v_mov_b32 v36, {KG_CNT + 12}")
    a("v_mov_b32 v37, 1")
    if OPT_SCOUT:
        a("s_mov_b32 s70, 0")
        a("s_mov_b64 exec, 0")
        for w_, nm in enumerate(("K0", "K1", "K2", "K3", "K4")):
            a(f"s_cmp_eq_u32 s3, {w_}")
            a(f"s_cbranch_scc1 L_sc_{nm}")
        a.label("L_scout_ret")
        a("s_add_u32 s70, s70, 1")
        a("s_cmp_eq_u32 s70, 1")
        a("s_cbranch_scc0 L_scout_p2")
        a("s_cmp_eq_u32 s3, 0")
        a("s_cbranch_scc1 L_sc_F0")
        a("s_cmp_eq_u32 s3, 1")
        a("s_cbranch_scc1 L_sc_F1")
        a("s_add_u32 s70, s70, 1")
        a.label("L_scout_p2")
        a("s_cmp_eq_u32 s70, 2")
        a("s_cbranch_scc1 L_tproc")
        a("s_mov_b64 exec, -1")
    a("s_setprio 2")
    a("s_waitcnt vmcnt(2)" if OPT_QT else "s_waitcnt vmcnt(0)")
    lds_signal(a, 36, 37)
    stamp(a, 3)
    if OPT_MPF == 1:
        emit_mpf(a)
    a("v_alignbit_b32 v42, v41, v40, 16")
    a("v_lshlrev_b32 v43, 16, v40")
    a("v_lshrrev_b32 v44, 16, v41")
    lds_wait_count(a, 36, 38, 14, 5, "tile_spin")
    a.label("L_tproc")
    for j in range(4):
        a(f"ds_read_b64_tr_b16 v[{18 + 2 * j}:{19 + 2 * j}], v13 offset:{TW_RAWK + 1280 + 2560 * j}")
        a(f"ds_read_b64_tr_b16 v[{26 + 2 * j}:{27 + 2 * j}], v13 offset:{TW_RAWK + 2560 * j}")
        a(f"ds_read_b64_tr_b16 v[{46 + 2 * j}:{47 + 2 * j}], v13 offset:{TW_RAWV + 2560 * j}")
    for j in range(3):
        a(f"ds_read_b64_tr_b16 v[{54 + 2 * j}:{55 + 2 * j}], v13 offset:{TW_RAWU + 2560 * j}")
    for j in range(4):
        kc, kp, vv = 18 + 2 * j, 26 + 2 * j, 46 + 2 * j
        t = 64 + 10 * (j & 1)
        a(f"s_waitcnt lgkmcnt({12 - 3 * j})")
        if j == 0:
            a(f"ds_read_b64_tr_b16 v[60:61], v13 offset:{TW_RAWU + 2560 * 3}")
        a(f"v_dot2_f32_bf16 v{t + 0}, v{kc}, v40, 0")
        a(f"v_dot2_f32_bf16 v{t + 1}, v{kc}, v43, 0")
        a(f"v_dot2_f32_bf16 v{t + 2}, v{kc + 1}, v40, 0")
        a(f"v_dot2_f32_bf16 v{t + 3}, v{kc + 1}, v43, 0")
        a(f"v_dot2_f32_bf16 v{t + 0}, v{kc + 1}, v41, v{t + 0}")
        a(f"v_dot2_f32_bf16 v{t + 1}, v{kc + 1}, v42, v{t + 1}")
        a(f"v_dot2_f32_bf16 v{t + 2}, v{kp}, v41, v{t + 2}")
        a(f"v_dot2_f32_bf16 v{t + 3}, v{kp}, v42, v{t + 3}")
        a(f"v_dot2_f32_bf16 v{t + 1}, v{kp}, v44, v{t + 1}")
        a(f"v_dot2_f32_bf16 v{t + 3}, v{kp + 1}, v44, v{t + 3}")
        a(f"v_lshlrev_b32 v{t + 4}, 16, v{vv}")
        a(f"v_and_b32 v{t + 5}, 0xffff0000, v{vv}")
        a(f"v_lshlrev_b32 v{t + 6}, 16, v{vv + 1}")
        a(f"v_and_b32 v{t + 7}, 0xffff0000, v{vv + 1}")
        a(f"v_mul_f32 v{t + 0}, v{t + 0}, v{t + 4}")
        a(f"v_mul_f32 v{t + 1}, v{t + 1}, v{t + 5}")
        a(f"v_mul_f32 v{t + 2}, v{t + 2}, v{t + 6}")
        a(f"v_mul_f32 v{t + 3}, v{t + 3}, v{t + 7}")
        a(f"v_cvt_pk_bf16_f32 v{t + 8}, v{t + 0}, v{t + 1}")
        a(f"v_cvt_pk_bf16_f32 v{t + 9}, v{t + 2}, v{t + 3}")
        a(f"ds_write_b64 v14, v[{t + 8}:{t + 9}] offset:{2560 + 16 * (3 - j)}")
    a("s_waitcnt lgkmcnt(4)")
    for j in range(4):
        a(f"ds_write_b64 v14, v[{54 + 2 * j}:{55 + 2 * j}] offset:{16 * (3 - j)}")
    a("s_waitcnt lgkmcnt(0)")
    for i in range(2):
        a(f"ds_read_b128 v[{18 + 4 * i}:{21 + 4 * i}], v15 offset:{2560 + 1280 * i}")
    for i in range(2):
        a(f"ds_read_b128 v[{26 + 4 * i}:{29 + 4 * i}], v15 offset:{1280 * i}")
    a(f"v_add_u32 v17, {640 * 4096}, v16")
    a("v_add_u32 v34, 65536, v17")
    a("v_add_u32 v35, 65536, v16")
    scout(a, None)
    a("s_waitcnt lgkmcnt(3)")
    a("buffer_store_dwordx4 v[18:21], v17, s[64:67], 0 offen" + SC1)
    a("s_waitcnt lgkmcnt(2)")
    a("buffer_store_dwordx4 v[22:25], v34, s[64:67], 0 offen" + SC1)
    a("s_waitcnt lgkmcnt(1)")
    a("buffer_store_dwordx4 v[26:29], v16, s[64:67], 0 offen" + SC1)
    a("s_waitcnt lgkmcnt(0)")
    a("buffer_store_dwordx4 v[30:33], v35, s[64:67], 0 offen" + SC1)
    if OPT_QT:
        a("s_waitcnt vmcnt(4)")
        a(f"v_mov_b32 v36, {KG_CNT + 16}")
        lds_signal(a, 36, 37)
        lds_wait_count(a, 36, 38, 14, 5, "tileq_spin")
        a("v_and_b32 v46, 3, v3")
        a("v_lshlrev_b32 v47, 1, v46")
        a("v_subrev_u32 v47, 3, v47")
        a("v_mul_i32_i24 v47, 320, v47")
        a("v_add_u32 v47, v13, v47")
        for j in range(4):
            a(f"ds_read_b64_tr_b16 v[{54 + 2 * j}:{55 + 2 * j}], v47 offset:{TW_RAWQ + 2560 * j}")
        a("v_lshlrev_b32 v48, 4, v9")
        a("v_add_u32 v48, v14, v48")
        a("v_subrev_u32 v48, 8, v48")
        a("s_lshl_b32 s14, s8, 7")
        a(f"s_add_u32 s14, s14, {WS_QT - 4032}")
        a("v_add_u32 v49, s14, v16")
        a("v_add_u32 v50, 65536, v49")
        a("s_waitcnt lgkmcnt(0)")
        for j in range(4):
            a(f"ds_write_b64 v48, v[{54 + 2 * j}:{55 + 2 * j}] offset:{16 * j}")
        a("s_waitcnt lgkmcnt(0)")
        for i in range(2):
            a(f"ds_read_b128 v[{64 + 4 * i}:{67 + 4 * i}], v15 offset:{1280 * i}")
        a("s_waitcnt lgkmcnt(1)")
        a("buffer_store_dwordx4 v[64:67], v49, s[64:67], 0 offen" + SC1)
        a("s_waitcnt lgkmcnt(0)")
        a("buffer_store_dwordx4 v[68:71], v50, s[64:67], 0 offen" + SC1)
    if OPT_WB:
        nw = a.newlabel("nowb")
        a("s_cmp_lg_u32 s3, 0")
        a(f"s_cbranch_scc1 {nw}")
        a("s_lshr_b32 s14, s2, 3")
        a(f"s_cmp_lg_u32 s14, {OPT_WB - 1}")
        a(f"s_cbranch_scc1 {nw}")
        a("s_waitcnt vmcnt(0)")
        a("buffer_wbl2 sc1")
        a.label(nw)
    if STAMP:
        stamp(a, 4)
        a("s_waitcnt vmcnt(0)")
        stamp(a, 5)
        stamp_flush(a, 6, 0)
    a("s_endpgm")


LOG2E = 0x3fb8aa3b
INV2PI = 0x3e22f983


def cmul(a, d, x, y, t):
    a(f"v_pk_mul_f32 v[{t}:{t + 1}], v[{x}:{x + 1}], v[{y}:{y + 1}] op_sel:[0,0] op_sel_hi:[0,1]")
    a(f"v_pk_fma_f32 v[{d}:{d + 1}], v[{x}:{x + 1}], v[{y}:{y + 1}], v[{t}:{t + 1}] op_sel:[1,1,0] op_sel_hi:[1,0,1] neg_lo:[0,1,0]")


KG_BUF = 4608
KG_WAVE = 2 * KG_BUF


def scout(a, entry):
    if OPT_SCOUT:
        a("s_cbranch_execz L_scout_ret")
        if entry:
            a.label("L_sc_" + entry)


def scout_entry(a, entry):
    if OPT_SCOUT:
        a.label("L_sc_" + entry)


def emit_kgen_issue(a):
    a.c("---- kgen waves: issue parameter loads as early as possible ----")
    a("s_sub_u32 s6, s3, 5")
    a("s_mul_i32 s7, s6, 43")
    a("s_lshr_b32 s7, s7, 7")
    a("s_mov_b32 s67, s7")
    a("s_mul_i32 s4, s7, 3")
    a("s_sub_u32 s4, s6, s4")
    a("s_lshr_b32 s5, s2, 1")
    a("s_mul_i32 s5, s5, 5")
    a("s_and_b32 s8, s2, 1")
    a("s_mul_i32 s9, s8, 3")
    a("s_add_u32 s5, s5, s9")
    a("s_add_u32 s5, s5, s7")
    a("s_lshr_b32 s9, s7, 1")
    a("s_and_b32 s9, s9, s8")
    a("s_cmp_eq_u32 s9, 1")
    a("s_cbranch_scc1 L_prep_exit")
    a("s_mul_i32 s9, s5, 384")
    a("s_lshl_b32 s7, s4, 7")
    a("s_add_u32 s9, s9, s7")
    a("v_lshl_add_u32 v3, v2, 1, s9")
    for r in range(10, 14):
        a(f"v_mov_b32 v{r}, 0")
    a("s_lshl_b32 s7, s5, 1")
    a("s_and_b32 s7, s7, 0xfffffffc")
    a("s_mov_b32 s50, 245760")
    a("s_mov_b32 s51, 0x00020000")
    a("s_mov_b32 s54, 245760")
    a("s_mov_b32 s55, 0x00020000")
    a("s_mov_b32 s58, 245760")
    a("s_mov_b32 s59, 0x00020000")
    a("s_mov_b32 s62, 245760")
    a("s_mov_b32 s63, 0x00020000")
    a("v_lshlrev_b32 v4, 2, v2")
    a(f"v_add_u32 v4, {KG_CNT}, v4")
    a("v_mov_b32 v5, 0")
    a("s_mov_b64 exec, 31")
    a("ds_write_b32 v4, v5")
    a("s_mov_b64 exec, -1")
    a("s_waitcnt lgkmcnt(0)")
    stamp(a, 1)
    for srd, p, dst in ((48, P_LOGA, 10), (52, P_AIM, 11), (56, P_CR, 12), (60, P_CI, 13)):
        a(f"s_mov_b32 s{srd}, s{p}")
        a(f"s_and_b32 s{srd + 1}, s{p + 1}, 0xffff")
        a(f"buffer_load_short_d16_hi v{dst}, v3, s[{srd}:{srd + 3}], 0 offen" + NT2)
    a("s_barrier")
    a(f"s_load_dword s64, s[{P_LDT}:{P_LDT + 1}], s7")
    a(f"s_load_dword s65, s[{P_DSK}:{P_DSK + 1}], s7")
    if KGREP:
        a(f"s_mov_b32 s68, {KGREP}")
    a("s_branch L_kgen")


def emit_kgen(a):
    a.c("---- S4D kernel generation: 64 modes per wave ----")
    a(f"s_mul_i32 s8, s6, {KG_WAVE}")
    a(f"s_add_u32 s8, s8, {KG_OFF}")
    make_srd(a, 72, P_WS, WS_END)
    a("s_mov_b32 m0, s8")
    a("v_and_b32 v5, 15, v2")
    a("v_lshrrev_b32 v6, 4, v2")
    a("v_mul_u32_u24 v7, 288, v5")
    a("v_lshl_add_u32 v7, v6, 4, v7")
    a("v_add_u32 v7, s8, v7")
    a("v_lshlrev_b32 v8, 4, v2")
    a("v_add_u32 v9, s8, v8")
    a("v_lshlrev_b32 v60, 4, v5")
    a("v_add_u32 v60, s8, v60")
    a("v_and_b32 v61, 1, v6")
    a("v_lshrrev_b32 v62, 1, v6")
    a("v_lshl_add_u32 v56, v61, 3, v60")
    a("v_lshl_add_u32 v56, v62, 8, v56")
    a("v_lshl_add_u32 v57, v6, 8, v60")
    a("v_add_u32 v57, 512, v57")
    a("v_lshl_add_u32 v58, v6, 9, v60")
    a("v_cmp_gt_u32 vcc, 2, v6")
    a("v_mov_b32 v61, 8")
    a("v_mov_b32 v62, 4")
    a("v_cndmask_b32 v57, v58, v57, vcc")
    a("v_cndmask_b32 v61, v61, v62, vcc")
    a("v_add_u32 v58, v57, v61")
    a("v_mov_b32 v61, 256")
    a("v_mov_b32 v62, 8")
    a("v_cndmask_b32 v61, v61, v62, vcc")
    a("v_add_u32 v59, v57, v61")
    a("v_mov_b32 v61, 264")
    a("v_mov_b32 v62, 12")
    a("v_cndmask_b32 v61, v61, v62, vcc")
    a("v_add_u32 v124, v57, v61")
    a("v_lshl_add_u32 v61, v6, 10, v60")
    a("v_add_u32 v61, 2048, v61")
    a("v_lshlrev_b32 v62, 1, v2")
    a("v_add_u32 v62, s8, v62")
    a("v_add_u32 v62, 5120, v62")
    a("v_cndmask_b32 v126, v62, v61, vcc")
    a("v_cmp_gt_u32 vcc, 3, v6")
    a("s_nop 1")
    a("v_cndmask_b32 v125, v62, v61, vcc")
    a("v_and_b32 v60, 1, v2")
    a("v_cmp_eq_u32 vcc, 1, v60")
    a("v_mov_b32 v61, 0x05040100")
    a("v_mov_b32 v62, 0x05040504")
    a("v_cndmask_b32 v127, v61, v62, vcc")
    a("s_mul_i32 s6, s5, 4096")
    a(f"s_add_u32 s6, s6, {WS_KA}")
    a("v_add_u32 v63, s6, v8")
    a("s_mov_b32 s12, 0x01000100")
    a("s_mov_b32 s13, 0x05040100")
    a(f"s_mov_b32 s9, {LOG2E:#x}")
    a(f"s_mov_b32 s10, {INV2PI:#x}")
    (stamp(a, 2) if not KGREP else None)
    a("s_waitcnt lgkmcnt(0)")
    a("s_and_b32 s66, s5, 1")
    a("s_lshl_b32 s66, s66, 4")
    a("s_lshr_b32 s64, s64, s66")
    a("s_lshl_b32 s64, s64, 16")
    a("s_lshr_b32 s65, s65, s66")
    a("s_lshl_b32 s65, s65, 16")
    a("v_mov_b32 v14, s64")
    a("v_mov_b32 v15, s65")
    a("v_cmp_eq_u32 vcc, 0, v2")
    a("s_nop 1")
    a("v_cndmask_b32 v15, 0, v15, vcc")
    a("v_cmp_gt_u32 vcc, 32, v2")
    a("s_waitcnt vmcnt(0)")
    if KGREP:
        a("v_mov_b32 v56, v10")
        a("v_mov_b32 v57, v11")
        a("v_mov_b32 v58, v12")
        a("v_mov_b32 v59, v13")
        a.label("L_kg_again")
        a("v_mov_b32 v10, v56")
        a("v_mov_b32 v11, v57")
        a("v_mov_b32 v12, v58")
        a("v_mov_b32 v13, v59")
        a("v_mov_b32 v14, s64")
        a("s_cmp_eq_u32 s68, %d" % KGREP)
        a("s_cbranch_scc0 L_kg_n1")
        a("s_memrealtime s[86:87]")
        a("s_memtime s[88:89]")
        a.label("L_kg_n1")
        a("s_cmp_eq_u32 s68, %d" % (KGREP - 1))
        a("s_cbranch_scc0 L_kg_n2")
        a("s_memrealtime s[90:91]")
        a("s_memtime s[92:93]")
        a.label("L_kg_n2")
        a("s_cmp_eq_u32 s68, %d" % (KGREP - 2))
        a("s_cbranch_scc0 L_kg_n3")
        a("s_memrealtime s[94:95]")
        a("s_memtime s[96:97]")
        a.label("L_kg_n3")
    (stamp(a, 3) if not KGREP else None)
    if OPT_MPF == 2 or (OPT_MPF == 0 and OPT_CPF):
        emit_mpf_kgen(a)
    a("s_setprio 0")
    scout_entry(a, "K0")
    a("v_mul_f32 v14, s9, v14")
    a("v_mul_f32 v10, s9, v10")
    a("v_exp_f32 v14, v14")
    a("v_exp_f32 v10, v10")
    a("s_nop 0")
    a("v_cvt_pk_bf16_f32 v14, v14, v10")
    a("v_and_b32 v10, 0xffff0000, v14")
    a("v_lshlrev_b32 v14, 16, v14")
    a("v_mul_f32 v10, v10, v14")
    a("v_mul_f32 v11, v11, v14")
    a("v_add_f32 v14, v14, v14")
    if OPT_TRIM:
        a("v_mul_f32 v32, v12, v14")
        a("v_mul_f32 v33, v13, v14")
    else:
        a("v_mul_f32 v16, v12, v14")
        a("v_mul_f32 v17, v13, v14")
    a("v_mul_f32 v10, s9, v10")
    a("v_sub_f32 v10, 0, v10")
    a("v_mul_f32 v11, s10, v11")
    def cexp(dst, scale):
        t0, t1, t2 = 24, 25, 26
        if scale == 1 and OPT_TRIM:
            a(f"v_rndne_f32 v{t2}, v11")
            a(f"v_exp_f32 v{t0}, v10")
            a(f"v_sub_f32 v{t1}, v11, v{t2}")
        else:
            if scale == 1:
                a(f"v_mov_b32 v{t0}, v10")
                a(f"v_mov_b32 v{t1}, v11")
            else:
                a(f"v_mul_f32 v{t0}, {f32hex(scale)}, v10")
                a(f"v_mul_f32 v{t1}, {f32hex(scale)}, v11")
            a(f"v_rndne_f32 v{t2}, v{t1}")
            a(f"v_exp_f32 v{t0}, v{t0}")
            a(f"v_sub_f32 v{t1}, v{t1}, v{t2}")
        a(f"v_cos_f32 v{t2}, v{t1}")
        a(f"v_sin_f32 v{t1}, v{t1}")
        a("s_nop 0")
        a(f"v_mul_f32 v{dst}, v{t0}, v{t2}")
        a(f"v_mul_f32 v{dst + 1}, v{t0}, v{t1}")
    cexp(18, 1)
    cexp(20, 8)
    cexp(22, 128)
    E1, E8, E128, C2 = 18, 20, 22, 16
    TMP = [24, 26, 28, 30]
    R = [32 + 2 * j for j in range(8)]
    EJ, YB = 48, 50
    CV = [52, 53, 54, 55]
    def wr_row(src, buf, row, negim, cv):
        neg = "-" if negim else ""
        a(f"v_cvt_pk_bf16_f32 v{cv}, v{src}, {neg}v{src + 1}")
        a(f"ds_write_addtid_b32 v{cv} offset:{buf * KG_BUF + row * 288}")

    a("v_mov_b32 v52, 0x3f80")
    a("ds_write_addtid_b32 v52 offset:0")
    wr_row(E8, 0, 1, True, 53)
    if not OPT_TRIM:
        a(f"v_mov_b32 v{R[0]}, v{C2}")
        a(f"v_mov_b32 v{R[0] + 1}, v{C2 + 1}")
    ycur = E8
    for b in range(2, 16):
        if b == 3:
            scout(a, "K1")
        if b == 10:
            scout(a, "K2")
        src = ycur
        cmul_y = (YB, src, E8, TMP[0])
        if b - 1 <= 7:
            j = b - 1
            a(f"v_pk_mul_f32 v[{TMP[0]}:{TMP[0] + 1}], v[{src}:{src + 1}], v[{E8}:{E8 + 1}] op_sel:[0,0] op_sel_hi:[0,1]")
            a(f"v_pk_mul_f32 v[{TMP[1]}:{TMP[1] + 1}], v[{R[j - 1]}:{R[j - 1] + 1}], v[{E1}:{E1 + 1}] op_sel:[0,0] op_sel_hi:[0,1]")
            a(f"v_pk_fma_f32 v[{YB}:{YB + 1}], v[{src}:{src + 1}], v[{E8}:{E8 + 1}], v[{TMP[0]}:{TMP[0] + 1}] op_sel:[1,1,0] op_sel_hi:[1,0,1] neg_lo:[0,1,0]")
            a(f"v_pk_fma_f32 v[{R[j]}:{R[j] + 1}], v[{R[j - 1]}:{R[j - 1] + 1}], v[{E1}:{E1 + 1}], v[{TMP[1]}:{TMP[1] + 1}] op_sel:[1,1,0] op_sel_hi:[1,0,1] neg_lo:[0,1,0]")
            wr_row(R[j - 1], 1, j - 1, False, 54)
        else:
            cmul(a, YB, src, E8, TMP[0])
            j = b - 9
            if j == 0:
                wr_row(R[7], 1, 7, False, 54)
            cmul(a, R[j], R[j], E128, TMP[1])
            wr_row(R[j], 1, 8 + j, False, 54)
        wr_row(YB, 0, b, True, 53)
        ycur = YB
    cmul(a, R[7], R[7], E128, TMP[1])
    wr_row(R[7], 1, 15, False, 54)
    scout(a, "K3")
    YOP, XOP, ACC = 64, 80, 96
    a("s_waitcnt lgkmcnt(0)")
    for ks in range(4):
        a(f"ds_read_b128 v[{YOP + 4 * ks}:{YOP + 4 * ks + 3}], v7 offset:{64 * ks}")
    for ks in range(4):
        a(f"ds_read_b128 v[{XOP + 4 * ks}:{XOP + 4 * ks + 3}], v7 offset:{KG_BUF + 64 * ks}")
    for idx, j in enumerate([0, 2, 4, 6]):
        cmul(a, R[j], R[j], E128, TMP[idx % 4])
    a("s_waitcnt lgkmcnt(4)")
    for idx, j in enumerate([0, 2, 4, 6]):
        wr_row(R[j], 0, idx, False, CV[idx])
    for idx, j in enumerate([0, 2, 4, 6]):
        cmul(a, R[j], R[j], E128, TMP[idx % 4])
    a("s_waitcnt lgkmcnt(4)")
    for ks in range(4):
        c = "0" if ks == 0 else f"v[{ACC}:{ACC + 3}]"
        a(f"v_mfma_f32_16x16x32_bf16 v[{ACC}:{ACC + 3}], v[{XOP + 4 * ks}:{XOP + 4 * ks + 3}], v[{YOP + 4 * ks}:{YOP + 4 * ks + 3}], {c}")
    for idx, j in enumerate([0, 2, 4, 6]):
        wr_row(R[j], 0, 4 + idx, False, CV[idx])
    scout(a, "K4")
    for aa in range(4):
        for idx, j in enumerate([0, 4]):
            cmul(a, R[j], R[j], E128, TMP[idx])
        for idx, j in enumerate([0, 4]):
            wr_row(R[j], 0, 8 + 2 * aa + idx, False, CV[(2 * aa + idx) % 4])
    for aa in range(9):
        cmul(a, R[0], R[0], E128, TMP[aa % 2])
        wr_row(R[0], 1, aa, False, CV[aa % 4])
    a("s_waitcnt lgkmcnt(9)")
    for ks in range(4):
        a(f"ds_read_b128 v[{XOP + 4 * ks}:{XOP + 4 * ks + 3}], v7 offset:{64 * ks}")
    a("s_waitcnt lgkmcnt(0)")
    for ks in range(4):
        c = "0" if ks == 0 else f"v[{ACC + 4}:{ACC + 7}]"
        a(f"v_mfma_f32_16x16x32_bf16 v[{ACC + 4}:{ACC + 7}], v[{XOP + 4 * ks}:{XOP + 4 * ks + 3}], v[{YOP + 4 * ks}:{YOP + 4 * ks + 3}], {c}")
    XO2 = 108
    for ks in range(4):
        a(f"ds_read_b128 v[{XO2 + 4 * ks}:{XO2 + 4 * ks + 3}], v7 offset:{KG_BUF + 64 * ks}")
    a("s_waitcnt lgkmcnt(0)")
    for ks in range(4):
        c = "0" if ks == 0 else f"v[{ACC + 8}:{ACC + 11}]"
        a(f"v_mfma_f32_16x16x32_bf16 v[{ACC + 8}:{ACC + 11}], v[{XO2 + 4 * ks}:{XO2 + 4 * ks + 3}], v[{YOP + 4 * ks}:{YOP + 4 * ks + 3}], {c}")
    if KGREP:
        a("s_nop 7")
        a("s_nop 7")
        a("s_sub_u32 s68, s68, 1")
        a("s_cmp_gt_u32 s68, 0")
        a("s_cbranch_scc1 L_kg_again")
        a("s_memrealtime s[98:99]")
    scout(a, None)
    a("s_nop 7")
    a("s_nop 1")
    done = a.newlabel("kg_w0")
    a("s_cmp_eq_u32 s4, 0")
    a(f"s_cbranch_scc1 {done}")
    for t in range(3):
        a(f"ds_write_b128 v9, v[{ACC + 4 * t}:{ACC + 4 * t + 3}] offset:{1024 * t}")
    a("s_lshl_b32 s15, s67, 2")
    a(f"s_add_u32 s15, s15, {KG_CNT}")
    a("v_mov_b32 v10, s15")
    a("v_mov_b32 v11, 1")
    a("s_waitcnt lgkmcnt(0)")
    lds_signal(a, 10, 11)
    if STAMP:
        (stamp(a, 4) if not KGREP else None)
        (stamp(a, 5) if not KGREP else None)
        stamp_flush(a, 8, 0)
    a("s_endpgm")
    a.label(done)
    a("s_lshl_b32 s15, s67, 2")
    a(f"s_add_u32 s15, s15, {KG_CNT}")
    a("v_mov_b32 v10, s15")
    lds_wait_count(a, 10, 11, 14, 2, "kg_spin")
    if OPT_TRIM:
        a("s_setprio 3")
    (stamp(a, 4) if not KGREP else None)
    scout_entry(a, "F0")
    for wv in (1, 2):
        for t in range(3):
            a(f"ds_read_b128 v[{32 + 12 * (wv - 1) + 4 * t}:{35 + 12 * (wv - 1) + 4 * t}], v9 offset:{wv * KG_WAVE + 1024 * t}")
    a("s_waitcnt lgkmcnt(0)")
    for i in range(12):
        a(f"v_add_f32 v{ACC + i}, v{ACC + i}, v{32 + i}")
    for i in range(12):
        a(f"v_add_f32 v{ACC + i}, v{ACC + i}, v{44 + i}")
    a(f"v_add_f32 v{ACC}, v{ACC}, v15")
    for i in range(6):
        a(f"v_cvt_pk_bf16_f32 v{56 + i - 24}, v{ACC + 2 * i}, v{ACC + 2 * i + 1}")
    scout(a, "F1")
    a("ds_write_b16 v56, v32 offset:0")
    a("ds_write_b16_d16_hi v56, v32 offset:2")
    a("ds_write_b16 v56, v33 offset:4")
    a("ds_write_b16_d16_hi v56, v33 offset:6")
    a("ds_write_b16 v57, v34")
    a("ds_write_b16_d16_hi v58, v34")
    a("ds_write_b16 v59, v35")
    a("ds_write_b16_d16_hi v124, v35")
    a("ds_write_b16 v125, v36 offset:0")
    a("ds_write_b16_d16_hi v126, v36 offset:256")
    a("ds_write_b16 v126, v37 offset:512")
    a("ds_write_b16_d16_hi v126, v37 offset:768")
    a("s_waitcnt lgkmcnt(0)")
    SL = [40, 48, 64, 70]
    for s in range(4):
        a(f"ds_read_b128 v[{SL[s]}:{SL[s] + 3}], v9 offset:{1024 * s}")
        a(f"ds_read_b32 v{SL[s] + 4}, v9 offset:{1024 * s + 16}")
    a("s_waitcnt lgkmcnt(0)")
    def perm(d, s0, s1, sel):
        a(f"v_perm_b32 v{d}, v{s0}, v{s1}, {sel}")
    perm(76, 40, 40, "s12"); perm(77, 42, 41, "s13"); perm(78, 42, 42, "s12"); perm(79, 44, 43, "s13")
    for i in range(4):
        a(f"v_cndmask_b32 v{76 + i}, v{76 + i}, v{40 + i}, vcc")
    perm(80, 48, 48, "s12"); perm(81, 50, 48, "s13"); perm(82, 50, 50, "s12"); perm(83, 52, 52, "s12")
    for s_, o in ((2, 84), (3, 88)):
        d0, d4 = SL[s_], SL[s_] + 4
        perm(o, d0, d0, "s12"); perm(o + 1, d0, d0, "s12"); perm(o + 2, d4, d0, "v127"); perm(o + 3, d4, d4, "s12")
    scout(a, None)
    for s_, o in ((0, 76), (1, 80), (2, 84), (3, 88)):
        a(f"buffer_store_dwordx4 v[{o}:{o + 3}], v63, s[72:75], 0 offen offset:{1024 * s_}" + SC1K)
    if OPT_WB2:
        nw = a.newlabel("nowb2")
        a("s_cmp_lg_u32 s67, 0")
        a(f"s_cbranch_scc1 {nw}")
        a("s_lshr_b32 s14, s2, 3")
        a(f"s_cmp_lg_u32 s14, {OPT_WB2 - 1}")
        a(f"s_cbranch_scc1 {nw}")
        a("s_waitcnt vmcnt(0)")
        a("buffer_wbl2 sc1")
        a.label(nw)
    dbg_stamp(a, 1, 0, 60, 61)
    if STAMP:
        a("s_waitcnt vmcnt(0)")
        (stamp(a, 5) if not KGREP else None)
        stamp_flush(a, 8, 0)
    a("s_endpgm")


def f32hex(x):
    import struct
    return hex(struct.unpack("<I", struct.pack("<f", float(x)))[0])


def emit_prep(a):
    k = "prep_kernel"
    a.raw(f".globl {k}")
    a.raw(".p2align 8")
    a.raw(f".type {k},@function")
    a.label(k)
    a("s_cmp_ge_u32 s2, 256")
    a("s_cbranch_scc1 L_prep_exit")
    stamp(a, 0)
    load_kernargs(a)
    code_prefetch(a, "L_prep_exit", 120, 121)
    a("v_lshrrev_b32 v1, 6, v0")
    a("v_and_b32 v2, 63, v0")
    a("s_nop 0")
    a("v_readfirstlane_b32 s3, v1")
    a("s_mov_b32 s4, 0x9d7a6b85" if OPT_KFIRST else "s_mov_b32 s4, 0x9b436210")
    a("s_mov_b32 s5, 0x43c210" if OPT_KFIRST else "s_mov_b32 s5, 0xa7cd85")
    a("s_lshl_b32 s3, s3, 2")
    a("s_lshr_b64 s[4:5], s[4:5], s3")
    a("s_and_b32 s3, s4, 15")
    a("s_cmp_lt_u32 s3, 5")
    a("s_cbranch_scc1 L_tile")
    if NOKGEN:
        a("s_endpgm")
    a("s_setprio 3")
    emit_kgen_issue(a)
    a.label("L_tile")
    emit_tilewave(a)
    a.label("L_kgen")
    emit_kgen(a)
    a.label("L_prep_exit")
    a("s_endpgm")


class Lay:
    def __init__(self, name, half, tiles, jobs):
        self.name = name
        self.half = half
        self.tiles = list(tiles)
        self.jobs = jobs
        self.nslot = 8 * jobs
        self.ubytes = 2048 if half else 4096
        self.UP = self.ubytes + 512
        self.PO = self.ubytes + 64
        self.KP = 2 * self.PO
        self.merged = (jobs == 2 and not OPT_QT)
        self.YP = 4672 if self.merged else (2112 if OPT_QT or jobs == 2 else 2624)
        self.YT = 640 if self.YP == 2624 else 512
        self.YR = 40 if self.YP == 2624 else 32
        self.U0 = 0
        self.K0 = self.nslot * self.UP
        self.Y0 = self.K0 + self.nslot * self.KP
        self.end = self.Y0 + (8 if self.merged else self.nslot) * self.YP
        self.nd = self.ubytes // 1024


T1 = Lay("T1", False, range(4, 8), 1)
T2 = Lay("T2", True, range(0, 4), 2)
K2_LDS = max(T1.end, T2.end)
assert T1.K0 % 128 == 0 and T1.KP % 128 == 0 and T1.PO % 128 == 64
assert T2.K0 % 128 == 0 and T2.KP % 128 == 0 and T2.PO % 128 == 64

V_U, V_KB, V_YW, V_TR, V_OUT, V_Q, V_L16, V_T0, V_T1 = 4, 5, 9, 10, 11, 12, 13, 14, 15
V_ACC = 16
V_B = 48
V_QD = 32
V_E = 88
V_K0 = 2


class Stream:
    def __init__(self, a, max_out=MAXOUT):
        self.a = a
        self.q = []
        self.n = 0
        self.max_out = max_out
        self.done = set()

    def ins(self, txt):
        self.a(txt)
        self.n += 1

    def lds(self, txt, tag):
        if len(self.q) >= self.max_out:
            keep = self.max_out - 1
            self._wait(keep)
        self.ins(txt)
        self.q.append(tag)

    def _wait(self, keep):
        if len(self.q) > keep:
            self.ins(f"s_waitcnt lgkmcnt({keep})")
            for t in self.q[:len(self.q) - keep]:
                self.done.add(t)
            self.q = self.q[len(self.q) - keep:]

    def need(self, tags):
        last = -1
        for i, t in enumerate(self.q):
            if t in tags:
                last = i
        if last >= 0:
            self._wait(len(self.q) - 1 - last)

    def pad_since(self, n0, states):
        k = states - (self.n - n0)
        while k > 0:
            c = min(k, 16)
            self.ins(f"s_nop {c - 1}")
            self.n += c - 1
            k -= c


def emit_conv_body(a, T):
    J = T.jobs
    a("s_lshl_b32 s8, s5, 3")
    a("s_add_u32 s8, s8, s3")
    a("s_mul_i32 s9, s4, 640")
    a("s_add_u32 s9, s9, s8")
    a("s_lshl_b32 s10, s8, 12")
    a("s_lshl_b32 s13, s9, 12")
    if T.half:
        a("s_add_u32 s13, s13, 2048")
    a(f"s_mul_i32 s70, s3, {T.UP}")
    a(f"s_mul_i32 s71, s3, {T.KP}")
    a(f"s_add_u32 s71, s71, {T.K0}")
    a(f"v_lshlrev_b32 v{V_L16}, 4, v1")
    if HALFA == 2:
        a("v_lshlrev_b32 v15, 3, v1")
    a("v_and_b32 v88, 15, v1")
    a("v_lshrrev_b32 v89, 4, v1")
    a("v_lshlrev_b32 v90, 5, v88")
    a("v_lshlrev_b32 v91, 4, v89")
    a("v_sub_u32 v90, v91, v90")
    a("s_add_u32 s14, s70, 480")
    a(f"v_add_u32 v{V_U}, s14, v90")
    a("v_add_u32 v90, 1, v88")
    a("v_and_b32 v91, 1, v90")
    a("v_lshl_add_u32 v90, v89, 3, v90")
    a("v_lshrrev_b32 v90, 1, v90")
    a("v_lshlrev_b32 v90, 2, v90")
    a(f"v_mul_u32_u24 v91, {T.PO}, v91")
    a("v_add_u32 v90, v90, v91")
    a(f"v_add_u32 v{V_KB}, s71, v90")
    nkb = 2 if T.half else 4
    for kk in range(1, nkb):
        a(f"v_add_u32 v{V_KB + kk}, {1024 * kk}, v{V_KB}")
    if T.half:
        for kk in range(2):
            a(f"v_add_u32 v{V_KB + 2 + kk}, {8 * T.KP + 1024 * kk}, v{V_KB}")
    a(f"s_add_u32 s14, s70, {T.ubytes}")
    a("v_lshl_add_u32 v90, v1, 4, s14")
    a(f"s_sub_u32 s14, s71, {30 * 16}")
    a("v_lshl_add_u32 v91, v1, 4, s14")
    a(f"s_add_u32 s14, s71, {T.PO - 32 * 16}")
    a("v_lshl_add_u32 v92, v1, 4, s14")
    a("v_cmp_gt_u32 vcc, 32, v1")
    a(f"v_mov_b32 v93, {8 * T.KP}")
    a(f"v_mov_b32 v94, {8 * T.UP}")
    a("v_cndmask_b32 v91, v92, v91, vcc")
    a("v_cmp_gt_u32 vcc, 30, v1")
    for r in range(80, 84):
        a(f"v_mov_b32 v{r}, 0")
    a("v_cndmask_b32 v90, v91, v90, vcc")
    a("v_cndmask_b32 v93, v93, v94, vcc")
    a("s_mov_b32 exec_hi, 3")
    for j in range(J):
        a("ds_write_b128 v90, v[80:83]")
        if j + 1 < J:
            a("v_add_u32 v90, v90, v93")
    a("s_mov_b64 exec, -1")
    def late_setup():
        a(f"s_mul_i32 s14, s3, {T.YP}")
        a(f"s_add_u32 s14, s14, {T.Y0}")
        a("s_lshl_b32 s11, s5, 4")
        if not T.merged:
            a(f"v_mul_u32_u24 v90, {T.YR}, v88")
            a("v_lshl_add_u32 v90, v89, 3, v90")
            a(f"v_add_u32 v{V_YW}, s14, v90")
            if OPT_QT:
                a("v_lshlrev_b32 v90, 5, v88")
                a("v_lshl_add_u32 v90, v89, 3, v90")
            if OPT_QT:
                a(f"v_add_u32 v{V_Q}, s10, v90")
            a("s_and_b32 s12, s3, 3")
            a("v_bfe_u32 v90, v1, 2, 2")
            a(f"v_mul_u32_u24 v90, {T.YP}, v90")
            a("v_and_b32 v91, 3, v1")
            a("v_lshl_add_u32 v90, v91, 3, v90")
            a(f"v_mul_u32_u24 v91, {T.YR}, v89")
            a("v_add_u32 v90, v90, v91")
            a(f"s_mul_i32 s14, s12, {4 * T.YR}")
            a(f"s_add_u32 s14, s14, {T.Y0}")
            a(f"v_add_u32 v{V_TR}, s14, v90")
            a("s_lshl_b32 s14, s12, 6")
            a("v_add_u32 v90, s14, v1")
            if not OPT_QT:
                a(f"v_mul_u32_u24 v{V_Q}, 1280, v90")
                a(f"v_add_u32 v{V_Q}, s11, v{V_Q}")
            a(f"v_mul_u32_u24 v{V_OUT}, 2560, v90")
            a("s_mul_i32 s14, s4, 1280")
            a("s_add_u32 s14, s14, s11")
            a(f"v_add_u32 v{V_OUT}, s14, v{V_OUT}")
        else:
            a("v_mul_u32_u24 v90, 72, v88")
            a("v_lshl_add_u32 v90, v89, 4, v90")
            a(f"v_add_u32 v{V_YW}, s14, v90")
            a("v_bfe_u32 v90, v1, 2, 2")
            a(f"v_mul_u32_u24 v90, {T.YP}, v90")
            a("v_and_b32 v91, 3, v1")
            a("v_lshl_add_u32 v90, v91, 3, v90")
            a("v_lshrrev_b32 v91, 1, v89")
            a("v_mul_u32_u24 v91, 72, v91")
            a("v_add_u32 v90, v90, v91")
            a("v_and_b32 v91, 1, v89")
            a("v_lshl_add_u32 v90, v91, 5, v90")
            a("s_mul_i32 s14, s3, 144")
            a(f"s_add_u32 s14, s14, {T.Y0}")
            a(f"v_add_u32 v{V_TR}, s14, v90")
            a("s_lshl_b32 s14, s3, 5")
            a("v_lshrrev_b32 v90, 1, v1")
            a("v_add_u32 v90, s14, v90")
            a("v_and_b32 v91, 1, v1")
            a("v_lshlrev_b32 v91, 4, v91")
            a("v_add_u32 v91, s11, v91")
            a(f"v_mul_u32_u24 v{V_Q}, 1280, v90")
            a(f"v_add_u32 v{V_Q}, v{V_Q}, v91")
            a(f"v_mul_u32_u24 v{V_OUT}, 2560, v90")
            a(f"v_add_u32 v{V_OUT}, v{V_OUT}, v91")
            a("s_mul_i32 s14, s4, 1280")
            a(f"v_add_u32 v{V_OUT}, s14, v{V_OUT}")

    if not OPT_SPLIT:
        late_setup()
    a(f"v_mov_b32 v{V_T0}, s71")
    a(f"s_mov_b32 s50, {WS_KA}")
    a("s_mov_b32 s51, 0x00020000")
    a(f"s_mov_b32 s54, {640 * 4096}")
    a("s_mov_b32 s55, 0x00020000")
    a("s_waitcnt lgkmcnt(0)")
    stamp(a, 1, True)
    if DBGT:
        nd = a.newlabel("nd")
        a("s_cmp_lg_u32 s2, 0")
        a(f"s_cbranch_scc1 {nd}")
        dbg_stamp(a, 2, 512, 86, 87)
        a.label(nd)
    a(f"s_mov_b32 s48, s{P_WS}")
    a(f"s_and_b32 s49, s{P_WS + 1}, 0xffff")
    a(f"s_add_u32 s6, s{P_WS}, {WS_KA}")
    a(f"s_addc_u32 s7, s{P_WS + 1}, 0")
    a("s_cmp_eq_u32 s4, 1")
    a(f"s_cselect_b32 s6, s{P_SSK}, s6")
    a(f"s_cselect_b32 s7, s{P_SSK + 1}, s7")
    a("s_mov_b32 s52, s6")
    a("s_and_b32 s53, s7, 0xffff")

    def dma_one(job, kind, kk):
        if kind == "U":
            src, srd, dst = f"s_add_u32 s15, s13, {job * 32768}", "s[48:51]", f"s_add_u32 m0, s70, {job * 8 * T.UP}"
        elif kind == "E":
            src, srd, dst = f"s_add_u32 s15, s10, {job * 32768}", "s[52:55]", f"s_add_u32 m0, s71, {job * 8 * T.KP + 32}"
        else:
            src, srd, dst = f"s_add_u32 s15, s10, {job * 32768 + 2}", "s[52:55]", f"s_add_u32 m0, s71, {job * 8 * T.KP + T.PO + 32}"
        if NOPO and kind == "O":
            return ["s_nop 0"]
        return [src, dst, "s_nop 0", f"buffer_load_dwordx4 v{V_L16}, {srd}, s15 offen offset:{1024 * kk} lds"]

    if not T.half:
        order = [("U", 3), ("E", 3), ("O", 3), ("E", 2), ("O", 2), ("E", 1), ("O", 1), ("U", 2), ("E", 0), ("O", 0), ("U", 1), ("U", 0)]
        nfirst = 7
        order_r = [("E", 0), ("O", 0), ("U", 0), ("E", 1), ("O", 1), ("U", 1), ("E", 2), ("O", 2), ("U", 2), ("E", 3), ("O", 3), ("U", 3)]
        nfirst_r = NFR
    else:
        order = [("U", 1), ("E", 1), ("O", 1), ("E", 0), ("O", 0), ("U", 0)]
        nfirst = 5
        order_r = [("E", 0), ("O", 0), ("U", 0), ("E", 1), ("O", 1), ("U", 1)]
        nfirst_r = min(NFR, 5)
    order_x, nfirst_x = (order_r, nfirst_r) if OPT_REV else (order, nfirst)
    xs = a.newlabel("xdma")
    a("s_cmp_ge_u32 s3, 4")
    a(f"s_cbranch_scc1 {xs}")
    for kind, kk in order_x[:(OPT_SPLIT or nfirst_x)]:
        for ln in dma_one(0, kind, kk):
            a(ln)
    a.label(xs)
    if OPT_SPLIT:
        late_setup()
        xs2 = a.newlabel("xdma2")
        a("s_cmp_ge_u32 s3, 4")
        a(f"s_cbranch_scc1 {xs2}")
        for kind, kk in order_x[OPT_SPLIT:nfirst_x]:
            for ln in dma_one(0, kind, kk):
                a(ln)
        a.label(xs2)
    stamp(a, 2, True)
    for j in range(J):
        a(f"s_add_u32 s14, s10, {j * 32768}")
        a(f"s_load_dword s{72 + j}, s[6:7], s14")
    a("s_lshl_b32 s11, s8, 1")
    a("s_and_b32 s11, s11, 0xfffffffc")
    for j in range(J):
        a(f"s_add_u32 s14, s11, {16 * j}")
        a(f"s_load_dword s{76 + j}, s[{P_SSD}:{P_SSD + 1}], s14")
    if OPT_QT:
        a(f"s_add_u32 s56, s{P_WS}, {WS_QT}")
        a(f"s_addc_u32 s57, s{P_WS + 1}, 0")
        a("s_and_b32 s57, s57, 0xffff")
    else:
        a(f"s_mov_b32 s56, s{P_Q}")
        a(f"s_and_b32 s57, s{P_Q + 1}, 0xffff")
    a("s_mov_b32 s59, 0x00020000")
    make_srd(a, 60, P_OUT, L * 2560)
    a("s_cmp_eq_u32 s4, 1")
    a(f"s_cselect_b32 s58, {640 * 4096}, 0")
    if OPT_QT:
        a("s_cselect_b32 s69, 0, 0x3f803f80")
    else:
        a("s_cselect_b32 s69, 0, 0x3f800000")
        a("s_cselect_b32 s67, 0, 0x3f80")
        a("v_mov_b32 v86, 0xffff")
        a("v_mov_b32 v87, 0xffff0000")
    a("s_cmp_ge_u32 s3, 4")
    a(f"s_cbranch_scc1 L_{T.name}_Y")
    emit_conv_stream(a, T, 0, order_x, nfirst_x, dma_one)
    a.label(f"L_{T.name}_Y")
    emit_conv_stream(a, T, 1, order, nfirst, dma_one)


def emit_conv_stream(a, T, G, order, nfirst, dma_one):
    J = T.jobs
    st = Stream(a)
    vm = []
    k0_ready = [False]

    def make_k0():
        st.ins("s_waitcnt lgkmcnt(0)")
        for t in st.q:
            st.done.add(t)
        st.q = []
        st.ins("s_and_b32 s14, s8, 1")
        st.ins("s_lshl_b32 s14, s14, 4")
        for j in range(J):
            st.ins(f"s_lshl_b32 s{72 + j}, s{72 + j}, 16")
            st.ins(f"s_lshr_b32 s{76 + j}, s{76 + j}, s14")
            st.ins(f"s_lshl_b32 s{76 + j}, s{76 + j}, 16")
        st.ins("s_cmp_eq_u32 s4, 1")
        for j in range(J):
            st.ins(f"s_cselect_b32 s{76 + j}, s{76 + j}, 0")
        for j in range(J):
            st.ins(f"v_mov_b32 v{V_K0 + j}, s{72 + j}")
            st.ins(f"v_add_f32 v{V_K0 + j}, s{76 + j}, v{V_K0 + j}")
            st.ins(f"v_cvt_pk_bf16_f32 v{V_K0 + j}, v{V_K0 + j}, v{V_K0 + j}")
        k0_ready[0] = True

    def patch(j):
        if not k0_ready[0]:
            make_k0()
        st.lds(f"ds_write_b16 v{V_T0}, v{V_K0 + j} offset:{j * 8 * T.KP + 32}", ("patch", j, 0))
        st.lds(f"ds_write_b16 v{V_T0}, v{V_K0 + j} offset:{j * 8 * T.KP + T.PO + 30}", ("patch", j, 1))

    tiles = T.tiles
    nlo, nhi = tiles[0], tiles[-1]

    rev = bool(OPT_REV) and G == 0

    def phys(j, cp):
        if not T.half:
            return cp % 5
        if rev:
            return cp if j == 0 else (cp + 4) % 5
        return cp if j == 0 else (cp + 1)

    mf = []
    seen = set()
    for j in range(J):
        for m in (range(nhi, -1, -1) if rev else range(0, nhi + 1)):
            ns = list(range(nhi, max(m, nlo) - 1, -1))
            if rev and m == nhi:
                pairs = [(r, n) for r in range(7, -1, -1) for n in ns]
            elif not rev and m == 0 and j == 0 and OPT_NOUT:
                pairs = [(r, n) for n in ns for r in range(8)]
            else:
                pairs = [(r, n) for r in range(8) for n in ns]
            for r, n in pairs:
                cp = n - m
                first = (j, n) not in seen
                seen.add((j, n))
                mf.append(dict(rd=j, m=m, r=r, n=n, cp=cp, c=8 * cp + r, aslot=8 * phys(j, cp) + r, bslot=r,
                               first=first, atag=("A", j, 8 * cp + r), btag=("B", j, m, r)))
    nM = len(mf)
    loads = []
    have = set()
    last_use_a, last_use_b = {}, {}
    prev_last_b = {}
    lastb_by_tag = {}
    for i, x in enumerate(mf):
        lastb_by_tag[x['btag']] = i
    slot_prev_tag = {}
    for i, x in enumerate(mf):
        if x['btag'] not in have:
            have.add(x['btag'])
            pt = slot_prev_tag.get(x['bslot'])
            loads.append(dict(tag=x['btag'], kind='B', need=i, free=(lastb_by_tag[pt] if pt else -1), x=x))
            slot_prev_tag[x['bslot']] = x['btag']
        if x['atag'] not in have:
            have.add(x['atag'])
            loads.append(dict(tag=x['atag'], kind='A', need=i, free=last_use_a.get(x['aslot'], -1), x=x))
        last_use_a[x['aslot']] = i
    first_idx = {}
    for i, x in enumerate(mf):
        first_idx.setdefault(x['rd'], i)

    uoff0 = 1536 if T.half else 3584

    def src_pieces(ld):
        x = ld['x']
        j = x['rd']
        if ld['kind'] == 'B':
            gamma = 8 * x['m'] - x['r']
            lo = uoff0 - 64 * gamma
            hi = lo + 528 + 16
            return {("dma", j, "U", k_) for k_ in range(T.nd) if lo < 1024 * (k_ + 1) and hi > 1024 * k_}
        c = x['c']
        lo = 64 * c - 32
        hi = 64 * c + 96
        out = set()
        for k_ in range(T.nd):
            if lo < 1024 * (k_ + 1) and hi > 1024 * k_:
                out |= {("dma", j, "E", k_), ("dma", j, "O", k_)}
        if c == 0:
            out.add(("patched", j))
        return out

    landed = set()
    vm_absent = set()

    def vwait(tags):
        idx = [i for i, t in enumerate(vm) if t in tags and t not in landed]
        if not idx:
            return
        last = max(idx)
        keep = len(vm) - 1 - last
        st.ins(f"s_waitcnt vmcnt({keep})")
        for t in vm[:last + 1]:
            landed.add(t)

    def ensure(ld):
        need = src_pieces(ld)
        j = ld['x']['rd']
        if ("patched", j) in need:
            need.discard(("patched", j))
            if ("patched", j) not in landed:
                vwait({("dma", j, "E", 0)})
                patch(j)
                landed.add(("patched", j))
        for t in need:
            assert t in vm or t in vm_absent, ("DMA piece not issued before use", t, ld['x'])
        vwait(need)

    def available(ld):
        for t in src_pieces(ld):
            if t[0] != "patched" and t not in vm and t not in vm_absent:
                return False
        return True

    def emit_load(ld):
        x = ld['x']
        j = x['rd']
        ensure(ld)
        if ld['kind'] == 'B':
            gamma = 8 * x['m'] - x['r']
            off = uoff0 - 64 * gamma + j * 8 * T.UP
            d = V_B + 4 * x['bslot']
            st.lds(f"ds_read_b128 v[{d}:{d + 3}], v{V_U} offset:{off}", ld['tag'])
        else:
            c = x['c']
            base = V_KB + (c >> 4) + (2 * j if T.half else 0)
            o = 16 * (c & 15)
            d = 4 * x['aslot']
            if HALFA == 1:
                st.lds(f"ds_read2_b32 a[{d + 2}:{d + 3}], v{base} offset0:{o + 2} offset1:{o + 3}", ld['tag'])
            elif HALFA == 2:
                st.lds(f"ds_read_b64 a[{d}:{d + 1}], v15 offset:{(c & 31) * 1024}", (ld['tag'], 0))
                st.lds(f"ds_read_b64 a[{d + 2}:{d + 3}], v15 offset:{(c & 31) * 1024 + 512}", ld['tag'])
            else:
                st.lds(f"ds_read2_b32 a[{d}:{d + 1}], v{base} offset0:{o} offset1:{o + 1}", (ld['tag'], 0))
                st.lds(f"ds_read2_b32 a[{d + 2}:{d + 3}], v{base} offset0:{o + 2} offset1:{o + 3}", ld['tag'])

    aux = {}

    def add_aux(i, fn):
        aux.setdefault(min(i, nM), []).append(fn)

    last_of_tile = {}
    for i, x in enumerate(mf):
        last_of_tile[(x['rd'], x['n'])] = i
    mf_pos = {}

    def vmem(lines, tag):
        for ln in lines:
            st.ins(ln)
        if NOPO and tag[0] == "dma" and tag[2] == "O":
            landed.add(tag)
            vm_absent.add(tag)
            return
        vm.append(tag)

    fillers = []

    def epi1(j, n, urgent):
        def fn():
            i = last_of_tile[(j, n)]
            ab = V_ACC + 4 * (n - nlo)
            qb = V_QD + 2 * (4 * j + n - nlo)
            u = 84
            pre = [f"v_or_b32 v{qb}, s69, v{qb}", f"v_or_b32 v{qb + 1}, s69, v{qb + 1}",
                   f"v_lshlrev_b32 v{u}, 16, v{qb}", f"v_and_b32 v{u + 1}, 0xffff0000, v{qb}",
                   f"v_lshlrev_b32 v{u + 2}, 16, v{qb + 1}", f"v_and_b32 v{u + 3}, 0xffff0000, v{qb + 1}"]
            post = [f"v_mul_f32 v{u}, v{u}, v{ab}", f"v_mul_f32 v{u + 1}, v{u + 1}, v{ab + 1}",
                    f"v_mul_f32 v{u + 2}, v{u + 2}, v{ab + 2}", f"v_mul_f32 v{u + 3}, v{u + 3}, v{ab + 3}",
                    f"v_cvt_pk_bf16_f32 v{u}, v{u}, v{u + 1}", f"v_cvt_pk_bf16_f32 v{u + 1}, v{u + 2}, v{u + 3}"]
            vwait({("q", j, n)})
            for t_ in pre:
                st.ins(t_)
            st.pad_since(mf_pos[i], 8)
            for t_ in post:
                st.ins(t_)
            st.lds(f"ds_write_b64 v{V_YW}, v[{u}:{u + 1}] offset:{j * 8 * T.YP + 512 * (n - nlo)}", ("Y", j, n))
        return fn

    cur = [0]

    def epi2(j, n):
        def fn():
            while fillers:
                fillers.pop(0)[1]()
            st.need({("Y", j, n)})
            st.ins("s_barrier")
            if ((n - nlo) & 1) != G:
                return
            o = j * 8 * T.YP + 512 * (n - nlo)
            t = V_E
            st.lds(f"ds_read_b64_tr_b16 v[{t}:{t + 1}], v{V_TR} offset:{o}", ("T", j, n, 0))
            st.lds(f"ds_read_b64_tr_b16 v[{t + 2}:{t + 3}], v{V_TR} offset:{o + 4 * T.YP}", ("T", j, n, 1))
            rdy = cur[0] + 4

            def fin():
                st.need({("T", j, n, 0), ("T", j, n, 1)})
                vmem([f"s_mov_b32 s68, {n * 256 * 2560 + j * 16}",
                      f"buffer_store_dwordx4 v[{t}:{t + 3}], v{V_OUT}, s[60:63], s68 offen" + OST], ("st", j, n))
            fillers.append((rdy, fin))
        return fn

    def gate_fillers(rdy, t, qb, waits):
        u = V_E + 4
        fillers.append((rdy, waits))
        seq = []
        for p in range(2):
            i0, i1 = 2 * p, 2 * p + 1
            seq += [f"v_and_or_b32 v{u}, v{qb + i0}, v86, s67",
                    f"v_and_or_b32 v{u + 1}, v{qb + i0}, v87, s69",
                    f"v_and_or_b32 v{u + 2}, v{qb + i1}, v86, s67",
                    f"v_and_or_b32 v{u + 3}, v{qb + i1}, v87, s69",
                    f"v_dot2_f32_bf16 v{u}, v{t + i0}, v{u}, 0",
                    f"v_dot2_f32_bf16 v{u + 1}, v{t + i0}, v{u + 1}, 0",
                    f"v_dot2_f32_bf16 v{u + 2}, v{t + i1}, v{u + 2}, 0",
                    f"v_dot2_f32_bf16 v{u + 3}, v{t + i1}, v{u + 3}, 0",
                    "s_nop 1",
                    f"v_cvt_pk_bf16_f32 v{t + i0}, v{u}, v{u + 1}",
                    f"v_cvt_pk_bf16_f32 v{t + i1}, v{u + 2}, v{u + 3}"]
        for txt in seq:
            fillers.append((rdy, (lambda txt: (lambda: st.ins(txt)))(txt)))

    def epi1_rows(j, n):
        def fn():
            i = last_of_tile[(j, n)]
            st.pad_since(mf_pos[i], 8)
            ab = V_ACC + 4 * (n - nlo)
            st.ins(f"v_cvt_pk_bf16_f32 v84, v{ab}, v{ab + 1}")
            st.ins(f"v_cvt_pk_bf16_f32 v85, v{ab + 2}, v{ab + 3}")
            if not T.merged:
                st.lds(f"ds_write_b64 v{V_YW}, v[84:85] offset:{j * 8 * T.YP + T.YT * (n - nlo)}", ("Y", j, n))
            else:
                o = 1152 * (n - nlo) + 2 * j
                st.lds(f"ds_write_b16 v{V_YW}, v84 offset:{o}", ("Y", j, n, 0))
                st.lds(f"ds_write_b16_d16_hi v{V_YW}, v84 offset:{o + 4}", ("Y", j, n, 1))
                st.lds(f"ds_write_b16 v{V_YW}, v85 offset:{o + 8}", ("Y", j, n, 2))
                st.lds(f"ds_write_b16_d16_hi v{V_YW}, v85 offset:{o + 12}", ("Y", j, n))
        return fn

    def epi2_rows(j, n):
        def fn():
            while fillers:
                fillers.pop(0)[1]()
            st.need({("Y", j, n)})
            st.ins("s_barrier")
            if not T.merged and ((n - nlo) & 1) != G:
                return
            t = V_E
            if not T.merged:
                o = j * 8 * T.YP + T.YT * (n - nlo)
                qtag = ("q", j, (n - nlo) >> 1)
                qb = V_QD + 4 * (2 * j + ((n - nlo) >> 1))
                soff = n * 256 * 2560 + j * 16
            else:
                o = 1152 * (n - nlo)
                qtag = ("q", 0, n - nlo)
                qb = V_QD + 4 * (n - nlo)
                soff = n * 256 * 2560
            st.lds(f"ds_read_b64_tr_b16 v[{t}:{t + 1}], v{V_TR} offset:{o}", ("T", j, n, 0))
            st.lds(f"ds_read_b64_tr_b16 v[{t + 2}:{t + 3}], v{V_TR} offset:{o + 4 * T.YP}", ("T", j, n, 1))
            rdy = cur[0] + 4

            def waits():
                vwait({qtag})
                st.need({("T", j, n, 0), ("T", j, n, 1)})
            gate_fillers(rdy, t, qb, waits)
            fillers.append((rdy, lambda: vmem([f"s_mov_b32 s68, {soff}",
                                               f"buffer_store_dwordx4 v[{t}:{t + 3}], v{V_OUT}, s[60:63], s68 offen" + OST], ("st", j, n))))
            if OPT_WB3 and not T.half and n == OPT_WB3:
                def wb():
                    lab = a.newlabel("nowb3")
                    st.ins("s_cmp_ge_u32 s2, 8")
                    st.ins(f"s_cbranch_scc1 {lab}")
                    a("s_and_b32 s14, s3, 3")
                    a("s_cmp_lg_u32 s14, 0")
                    a(f"s_cbranch_scc1 {lab}")
                    a("buffer_wbl2 sc1")
                    a.label(lab)
                fillers.append((rdy, wb))
        return fn

    for k_, (kind, kk) in enumerate(order[nfirst:]):
        add_aux(1 + 3 * k_, (lambda kind, kk: (lambda: vmem(dma_one(0, kind, kk), ("dma", 0, kind, kk))))(kind, kk))
    rest0 = len(order) - nfirst
    for j in range(1, J):
        start = first_idx[j - 1] + 12
        for k_, (kind, kk) in enumerate(order):
            add_aux(start + 5 * k_, (lambda j, kind, kk: (lambda: vmem(dma_one(j, kind, kk), ("dma", j, kind, kk))))(j, kind, kk))
    if OPT_QT:
        for j in range(J):
            for n in tiles:
                at = first_idx[j] + (2 + 3 * rest0 if j == 0 else -24) + 2 * (n - nlo)

                def mkq(j, n):
                    def fn():
                        r0 = V_QD + 2 * (4 * j + n - nlo)
                        vmem([f"s_mov_b32 s14, {n * 512 + j * 32768}",
                              f"buffer_load_dwordx2 v[{r0}:{r0 + 1}], v{V_Q}, s[56:59], s14 offen"], ("q", j, n))
                    return fn
                add_aux(at, mkq(j, n))

        for j in range(J):
            for n in tiles:
                i = last_of_tile[(j, n)]
                last_in_job = (n == nhi and j + 1 < J)
                add_aux(i + 1 + (0 if last_in_job else 2), epi1(j, n, last_in_job))
                add_aux(i + 1 + 8, epi2(j, n))

    else:
        if T.merged:
            qlist = [(0, k_, nlo + k_, 0) for k_ in range(4)]
        else:
            qlist = [(0, qi, nlo + 2 * qi + G, qi) for qi in range(2)]
        for k_, (tj, ti, tile, ri) in enumerate(qlist):
            at = first_idx[0] + 2 + 3 * rest0 + ((QSTART + QSTEP * k_) if not T.merged else (QSTART_M + QSTEP_M * k_))

            def mkq(tj, ti, tile, k_):
                def fn():
                    r0 = V_QD + 4 * k_
                    vmem([f"s_mov_b32 s14, {tile * 256 * 1280}",
                          f"buffer_load_dwordx4 v[{r0}:{r0 + 3}], v{V_Q}, s[56:59], s14 offen"], ("q", tj, ti))
                return fn
            add_aux(at, mkq(tj, ti, tile, k_))
        for j in range(J):
            for n in tiles:
                i = last_of_tile[(j, n)]
                last_in_job = (n == nhi and j + 1 < J)
                if rev and j + 1 < J:
                    add_aux(first_idx[j + 1], epi1_rows(j, n))
                else:
                    add_aux(i + 1 + (0 if last_in_job else 4), epi1_rows(j, n))
            for n in tiles:
                i = last_of_tile[(j, n)]
                if T.merged and j == 0:
                    continue
                add_aux(i + 1 + 9, epi2_rows(j, n))

    stamp(a, 4, True)
    qa = [ld for ld in loads if ld['kind'] == 'A']
    qb_ = [ld for ld in loads if ld['kind'] == 'B']
    issued = set()
    issue_at = {}
    for j in range(1, J):
        for k_, (kind, kk) in enumerate(order):
            issue_at[("dma", j, kind, kk)] = first_idx[j - 1] + 12 + 5 * k_
    for k_, (kind, kk) in enumerate(order):
        issue_at[("dma", 0, kind, kk)] = -60 if k_ < nfirst else 1 + 3 * (k_ - nfirst) - 20

    def hint(t, i):
        return t in issue_at and i - issue_at[t] > HINT

    def next_free(q, i):
        for ld in q:
            if id(ld) in issued:
                continue
            if ld['free'] < i and available(ld):
                if all((t in landed or t[0] == "patched" or ld['need'] - i < 24 or hint(t, i)) for t in src_pieces(ld)):
                    return ld
        return None

    def issue_loads(i, budget):
        cnt = 0
        while cnt < budget:
            cb_ = next_free(qb_, i) if len(st.q) + 1 <= st.max_out else None
            ca_ = next_free(qa, i) if len(st.q) + 2 <= st.max_out else None
            cand = None
            if cb_ is not None and (ca_ is None or cb_['need'] <= ca_['need']):
                cand = cb_
            elif ca_ is not None:
                cand = ca_
            if cand is None:
                break
            emit_load(cand)
            issued.add(id(cand))
            cnt += 2 if cand['kind'] == 'A' else 1
        return cnt

    if (OPT_PRIO == 1 and G == 0) or (OPT_PRIO == 2 and G == 1):
        a("s_setprio 1")
    noskew = (OPT_REV == 2)
    if G == 1:
        if not noskew:
            a("s_barrier")
        for kind, kk in order[:nfirst]:
            for ln in dma_one(0, kind, kk):
                a(ln)
    if G == 1 and OPT_CPF and OPT_PF:
        nocp = a.newlabel("nocp")
        a("s_cmp_lg_u32 s3, 7")
        a(f"s_cbranch_scc1 {nocp}")
        lab = a.newlabel("pc")
        a("s_getpc_b64 s[82:83]")
        a.label(lab)
        a("v_lshlrev_b32 v94, 7, v1")
        a(f"v_min_u32 v94, L_end_{T.name}-{lab}-4, v94")
        a("global_load_dword v95, v94, s[82:83]")
        a.label(nocp)
    for kind, kk in order[:nfirst]:
        if NOPO and kind == "O":
            vm_absent.add(("dma", 0, kind, kk))
            landed.add(("dma", 0, kind, kk))
        else:
            vm.append(("dma", 0, kind, kk))
    first = True
    for i, x in enumerate(mf):
        cur[0] = i
        if G == 0 and i == 1 and not noskew:
            st.ins("s_barrier")
        if STAMP and FINE and i % FINE == 0 and i // FINE < 7:
            a(f"s_memrealtime s[{ST0 + 2 * (1 + i // FINE)}:{ST0 + 2 * (1 + i // FINE) + 1}]")
        if STAMP and not FINE and STEPSTAMP < 0 and i == 64:
            stamp(a, 6, True)
        if STAMP and STEPSTAMP >= 0 and x['rd'] == STEPSTAMP and (i == 0 or mf[i - 1]['m'] != x['m'] or mf[i - 1]['rd'] != x['rd']):
            a(f"s_memtime s[{ST0 + 2 * ((nhi - x['m']) if rev else x['m'])}:{ST0 + 2 * ((nhi - x['m']) if rev else x['m']) + 1}]")
        for fn in aux.get(i, []):
            fn()
        for q_ in (qb_, qa):
            for ld in q_:
                if ld['need'] <= i and id(ld) not in issued:
                    emit_load(ld)
                    issued.add(id(ld))
        if first:
            stamp(a, 5, True)
            first = False
        nl = issue_loads(i, LB0 if ((x['m'] == 0 and not rev) or (rev and i < 24)) else LB)
        nf = 0
        while fillers and fillers[0][0] <= i and nf < (3 if nl < 2 else 2):
            fillers.pop(0)[1]()
            nf += 1
        st.need({x['atag'], x['btag']})
        ab = V_ACC + 4 * (x['n'] - nlo)
        src_c = "0" if x['first'] else f"v[{ab}:{ab + 3}]"
        bs = V_B + 4 * x['bslot']
        st.ins(f"v_mfma_f32_16x16x32_bf16 v[{ab}:{ab + 3}], a[{4 * x['aslot']}:{4 * x['aslot'] + 3}], v[{bs}:{bs + 3}], {src_c}")
        mf_pos[i] = st.n
    stamp(a, 7, True)
    cur[0] = nM
    for fn in aux.get(nM, []):
        fn()
    while fillers:
        fillers.pop(0)[1]()
    dbg_stamp(a, 3, 512, 86, 87)
    if STAMP:
        stamp_flush(a, 8, 1)
    if G == 1:
        a.label(f"L_end_{T.name}")
    a("s_endpgm")


def emit_conv(a):
    k = "conv_kernel"
    a.raw(f".globl {k}")
    a.raw(".p2align 8")
    a.raw(f".type {k},@function")
    a.label(k)
    a("s_cmp_ge_u32 s2, 240")
    a("s_cbranch_scc1 L_conv_exit")
    stamp(a, 0, True)
    load_kernargs(a)
    if not OPT_CPF:
        code_prefetch(a, "L_conv_exit", 94, 95)
    a("v_lshrrev_b32 v2, 6, v0")
    a("v_and_b32 v1, 63, v0")
    a("s_and_b32 s6, s2, 7")
    a("v_readfirstlane_b32 s3, v2")
    a("s_lshr_b32 s7, s2, 3")
    a("s_mul_i32 s5, s6, 10")
    if OPT_T2F:
        a("s_cmp_lt_u32 s7, 10")
        a("s_cbranch_scc1 L_T2")
        a("s_sub_u32 s7, s7, 10")
    else:
        a("s_cmp_ge_u32 s7, 20")
        a("s_cbranch_scc1 L_T2")
    a("s_cmp_ge_u32 s7, 10")
    a("s_cselect_b32 s4, 1, 0")
    a("s_mul_i32 s8, s4, 10")
    a("s_sub_u32 s7, s7, s8")
    a("s_add_u32 s5, s5, s7")
    emit_conv_body(a, T1)
    a.label("L_T2")
    if not OPT_T2F:
        a("s_sub_u32 s7, s7, 20")
    a("s_cmp_ge_u32 s7, 5")
    a("s_cselect_b32 s4, 1, 0")
    a("s_mul_i32 s8, s4, 5")
    a("s_sub_u32 s7, s7, s8")
    a("s_lshl_b32 s7, s7, 1")
    a("s_add_u32 s5, s5, s7")
    emit_conv_body(a, T2)
    a.label("L_conv_exit")
    a("s_endpgm")


def kd(name, vgpr, sgpr, accum):
    return f""".amdhsa_kernel {name}
  .amdhsa_next_free_vgpr {vgpr}
  .amdhsa_next_free_sgpr {sgpr}
  .amdhsa_accum_offset {accum}
  .amdhsa_group_segment_fixed_size 0
  .amdhsa_kernarg_size 128
  .amdhsa_user_sgpr_count 2
  .amdhsa_user_sgpr_kernarg_segment_ptr 1
  .amdhsa_system_sgpr_workgroup_id_x 1
.end_amdhsa_kernel
"""


HEADER = open("cdna_kernels/" + NAME + ".s.ref").read().split("; Override launch geometry")[0]


def build():
    a = Asm()
    a.raw(HEADER.rstrip("\n"))
    a.raw(f"; @launch kernel=prep_kernel grid=(256,1,1) block=(896,1,1) lds={K1_LDS}")
    a.raw(f"; @launch kernel=conv_kernel grid=(240,1,1) block=(512,1,1) lds={K2_LDS}")
    a.raw('.amdgcn_target "amdgcn-amd-amdhsa--gfx950"')
    a.raw(".text")
    emit_prep(a)
    emit_conv(a)
    a.raw('.section .rodata,"a"')
    a.raw(".p2align 6")
    a.raw(kd("prep_kernel", 128, 102 if (STAMP or DBGT) else 80, 128))
    a.raw(".p2align 6")
    a.raw(kd("conv_kernel", 256, 102 if (STAMP or DBGT) else 84, 96))
    return a.text()


if __name__ == "__main__":
    out = sys.argv[1] if len(sys.argv) > 1 else "cdna_kernels/" + NAME + ".s"
    open(out, "w").write(build())
    print("wrote", out)
```
